```python
import torch

def _softmax(x, axis=-1):
    return torch.softmax(x, dim=axis)
def _gelu(x):
    return torch.nn.functional.gelu(x, approximate="tanh")
def _silu(x):
    return torch.nn.functional.silu(x)
def _sigmoid(x):
    return torch.sigmoid(x)
def _layernorm(x, axis=-1, eps=1e-5):
    m = x.mean(dim=axis, keepdim=True)
    v = x.var(dim=axis, keepdim=True, unbiased=False)
    return (x - m) / torch.sqrt(v + eps)
def _scatter_add(tgt, idx, src, axis=0):
    return tgt.clone().index_add_(axis, idx, src)
def _segment_sum(src, seg, n):
    out = torch.zeros((n,) + src.shape[1:], dtype=src.dtype)
    return out.index_add_(0, seg, src)
def _pad(x, pw):
    flat = tuple(v for pair in reversed(pw) for v in pair)
    return torch.nn.functional.pad(x, flat)

kernel_name = 'standalone__paged_block_table_kv_pagedattention__sampling'

def setup_inputs():

    _w = (lambda a: (lambda t: t.to(torch.bfloat16) if t.is_floating_point() else t)(torch.as_tensor(a)))
    B, Hq, Hkv, Sq, Skv, D = 32, 32, 8, 4, 2048, 128
    bs = 16
    nbps = max(1, Skv // bs)
    num_phys = B * nbps + 4
    bt = torch.randperm(num_phys)[: B * nbps].reshape(B, nbps).to(torch.int64)
    cl = (nbps * bs - (torch.arange(1, B + 1, dtype=torch.int64) * 2654435761) % max(1, nbps * bs // 2)).to(torch.int64)
    return {
        "q": _w((lambda *s: torch.randn(*s, dtype=torch.bfloat16) * 0.8)(B, Hq, Sq, D)),
        "k_cache": _w((lambda *s: torch.randn(*s, dtype=torch.bfloat16) * 0.8)(num_phys, bs, Hkv, D)),
        "v_cache": _w((lambda *s: torch.randn(*s, dtype=torch.bfloat16) * 0.05)(num_phys, bs, Hkv, D)),
        "block_table": _w(bt),
        "context_lens": _w(cl),
    }

def reference(q, k_cache, v_cache, block_table, context_lens):
    B, Hq, Sq, D = q.shape
    bs = k_cache.shape[1]
    Hkv = k_cache.shape[2]
    nbps = block_table.shape[1]
    Skv = nbps * bs
    bt = block_table.reshape(-1)
    k = (lambda x, *d: x.permute(*d))(k_cache[bt].reshape(B, Skv, Hkv, D), 0, 2, 1, 3)
    v = (lambda x, *d: x.permute(*d))(v_cache[bt].reshape(B, Skv, Hkv, D), 0, 2, 1, 3)
    g = Hq // Hkv
    qg = q.reshape(B, Hkv, g, Sq, D)
    scores = torch.einsum("bhgqd,bhkd->bhgqk", qg, k) * (D ** -0.5)
    pos = torch.arange(Skv)
    msk = pos[None, :] < context_lens[:, None]
    scores = torch.where(msk[:, None, None, None, :], scores, -1e9)
    p = _softmax(scores, axis=-1)
    out = torch.einsum("bhgqk,bhkd->bhgqd", p, v)
    return out.reshape(B, Hq, Sq, D)
```

```python
import sys, struct, math

NAME = "standalone__paged_block_table_kv_pagedattention__sampling_kernel"
HEADER = open("standalone__paged_block_table_kv_pagedattention__sampling.s.ref").read().split("; Override launch")[0]

KV_BYTES = 4100 * 16 * 8 * 128 * 2
OOB = 0x10000000


def f32bits(x):
    return struct.unpack("<I", struct.pack("<f", x))[0]


def gen(NW=8, nt=True, loadonly=False, mapping="h_low"):
    L = []
    e = L.append
    logNW = int(math.log2(NW))
    NT = " nt" if nt else ""
    vKoff, vV0, vV1, vBT, v4r, vMC, vL = 1, 2, 3, 4, 5, 6, 7
    t0, t1, vAl, vMCn = 8, 9, 10, 12
    tA, tB, tC = 13, 14, 15
    Q = 16
    O = 32
    S = 64
    P = 72
    VT = 76
    KB = [108, 140]
    VB = [172, 204]
    NV = 236
    sK, sV, sBT, sQ, sO = 16, 20, 24, 28, 32
    sB, sH, sW, sCL, sNB, sNT, sT, sIdx, sO0, sO1, sRem, sC, sSelLo, sSelHi, sTmp, sNeg = range(36, 52)
    sM = 52
    ROWB = 528
    PART = 16 * ROWB
    STATS = 0
    PBASE = 16 * NW * 8
    LDS = PBASE + NW * PART

    def srd(r, lo, nbytes):
        e(f"  s_mov_b32 s{r}, s{lo}")
        e(f"  s_mov_b32 s{r+1}, s{lo+1}")
        e(f"  s_mov_b32 s{r+2}, {nbytes}")
        e(f"  s_mov_b32 s{r+3}, 0x00020000")

    def vr(a, n):
        return f"v[{a}:{a+n-1}]"

    def sr(a, n):
        return f"s[{a}:{a+n-1}]"

    def loadK(x):
        for T in range(2):
            for kk in range(4):
                e(f"  buffer_load_dwordx4 {vr(KB[x]+16*T+4*kk,4)}, v{vKoff}, {sr(sK,4)}, s{sO0+T} offen offset:{kk*64}{NT}")

    def loadV(x):
        for j in range(8):
            T, i = j >> 2, j & 3
            e(f"  buffer_load_dwordx4 {vr(VB[x]+4*j,4)}, v{vV0 + (i>>1)}, {sr(sV,4)}, s{sO0+T} offen offset:{(i&1)*2048}{NT}")

    def next_offsets():
        e(f"  v_readlane_b32 s{sO0}, v{vBT}, s{sIdx}")
        e(f"  s_add_u32 s{sIdx}, s{sIdx}, 1")
        e(f"  v_readlane_b32 s{sO1}, v{vBT}, s{sIdx}")
        e(f"  s_add_u32 s{sIdx}, s{sIdx}, 1")

    e(HEADER.rstrip("\n"))
    e(f"; @launch grid=(256,1,1) block=({64*NW},1,1) lds={LDS}")
    e('.amdgcn_target "amdgcn-amd-amdhsa--gfx950"')
    e(".text")
    e(f".globl {NAME}")
    e(".p2align 8")
    e(f".type {NAME},@function")
    e(f"{NAME}:")
    e("  s_cmp_ge_u32 s2, 256")
    e("  s_cbranch_scc1 L_end")
    e("  s_load_dwordx8 s[4:11], s[0:1], 0")
    e("  s_load_dwordx4 s[12:15], s[0:1], 32")
    e(f"  v_lshrrev_b32 v{t0}, 6, v0")
    e(f"  v_and_b32 v0, 63, v0")
    e(f"  v_readfirstlane_b32 s{sW}, v{t0}")
    if mapping == "h_low":
        e(f"  s_lshr_b32 s{sB}, s2, 3")
        e(f"  s_and_b32 s{sH}, s2, 7")
    else:
        e(f"  s_lshr_b32 s{sH}, s2, 5")
        e(f"  s_and_b32 s{sB}, s2, 31")
    e(f"  v_and_b32 v{tA}, 15, v0")
    e(f"  v_lshrrev_b32 v{tB}, 4, v0")
    e(f"  s_lshl_b32 s{sTmp}, s{sH}, 8")
    e(f"  v_lshrrev_b32 v{t0}, 1, v0")
    e(f"  v_lshlrev_b32 v{t0}, {logNW+1}, v{t0}")
    e(f"  v_and_b32 v{t1}, 1, v0")
    e(f"  s_lshl_b32 s{sIdx}, s{sW}, 1")
    e(f"  v_add3_u32 v{tC}, v{t0}, v{t1}, s{sIdx}")
    e(f"  s_lshl_b32 s{sNB}, s{sB}, 9")
    e(f"  v_lshl_add_u32 v{t0}, v{tC}, 2, s{sNB}")
    e(f"  v_lshlrev_b32 v{vKoff}, 11, v{tA}")
    e(f"  v_lshl_add_u32 v{vKoff}, v{tB}, 4, v{vKoff}")
    e(f"  v_add_u32 v{vKoff}, s{sTmp}, v{vKoff}")
    e(f"  v_lshlrev_b32 v{vV0}, 13, v{tB}")
    e(f"  v_lshl_add_u32 v{vV0}, v{tA}, 4, v{vV0}")
    e(f"  v_add_u32 v{vV0}, s{sTmp}, v{vV0}")
    e(f"  v_add_u32 v{vV1}, 0x1000, v{vV0}")
    e(f"  v_lshlrev_b32 v{v4r}, 2, v{tB}")
    e(f"  s_lshl_b32 s{sNT}, s{sB}, 3")
    e(f"  s_add_u32 s{sNT}, s{sNT}, s{sH}")
    e(f"  s_lshl_b32 s{sT}, s{sNT}, 12")
    e(f"  v_lshlrev_b32 v{t1}, 8, v{tA}")
    e(f"  v_lshl_add_u32 v{t1}, v{tB}, 4, v{t1}")
    e(f"  s_lshl_b32 s{sRem}, s{sB}, 2")
    e(f"  s_mov_b32 s{sC}, {hex(f32bits(128 ** -0.5 * math.log2(math.e)))}")
    e(f"  s_mov_b32 s{sSelLo}, 0x05040100")
    e(f"  s_mov_b32 s{sSelHi}, 0x07060302")
    e(f"  s_mov_b32 s{sNeg}, {hex(f32bits(-1e9 / (128 ** -0.5)))}")
    e("  s_waitcnt lgkmcnt(0)")
    e(f"  s_load_dword s{sCL}, s[12:13], s{sRem}")
    srd(sBT, 10, 32 * 128 * 4)
    e(f"  buffer_load_dword v{vBT}, v{t0}, {sr(sBT,4)}, 0 offen")
    srd(sQ, 4, 32 * 32 * 4 * 128 * 2)
    for kk in range(4):
        e(f"  buffer_load_dwordx4 {vr(Q+4*kk,4)}, v{t1}, {sr(sQ,4)}, s{sT} offen offset:{kk*64}")
    srd(sK, 6, KV_BYTES)
    srd(sV, 8, KV_BYTES)
    srd(sO, 14, 32 * 32 * 4 * 128 * 2)
    e(f"  s_mov_b32 s{sO+3+29}, s{sT}")
    L.pop()
    sQB = 68
    e(f"  s_mov_b32 s{sQB}, s{sT}")
    for i in range(32):
        e(f"  v_mov_b32 v{O+i}, 0")
    e(f"  v_mov_b32 v{vMC}, 0xff7fffff")
    e(f"  v_mov_b32 v{vL}, 0")
    e("  s_waitcnt lgkmcnt(0)")
    e(f"  s_max_i32 s{sCL}, s{sCL}, 0")
    e(f"  s_cmp_gt_i32 s{sCL}, 0")
    e(f"  s_cselect_b32 s{sNB}, s{sCL}, 2048")
    e(f"  s_min_u32 s{sNB}, s{sNB}, 2048")
    e(f"  s_add_u32 s{sNB}, s{sNB}, 15")
    e(f"  s_lshr_b32 s{sNB}, s{sNB}, 4")
    e(f"  s_add_u32 s{sNT}, s{sNB}, 1")
    e(f"  s_lshr_b32 s{sNT}, s{sNT}, 1")
    e(f"  s_add_u32 s{sNT}, s{sNT}, {NW-1}")
    e(f"  s_sub_u32 s{sNT}, s{sNT}, s{sW}")
    e(f"  s_lshr_b32 s{sNT}, s{sNT}, {logNW}")
    e(f"  s_lshl_b32 s{sTmp}, s{sW}, 5")
    e(f"  s_sub_i32 s{sRem}, s{sCL}, s{sTmp}")
    e(f"  v_cmp_gt_u32 vcc, s{sNB}, v{tC}")
    e(f"  v_mov_b32 v{t0}, {hex(OOB)}")
    e("  s_waitcnt vmcnt(4)")
    e(f"  v_lshlrev_b32 v{vBT}, 15, v{vBT}")
    e(f"  v_cndmask_b32 v{vBT}, v{t0}, v{vBT}, vcc")
    e(f"  s_mov_b32 s{sIdx}, 0")
    e(f"  s_mov_b32 s{sT}, 0")
    for x in range(2):
        next_offsets()
        e("  s_nop 3")
        loadK(x)
        loadV(x)
    e(f"  s_cmp_eq_u32 s{sNT}, 0")
    e("  s_cbranch_scc1 L_exit")

    for x in range(2):
        e(f"L_loop{x}:")
        next_offsets()
        e("  s_waitcnt vmcnt(24)")
        if not loadonly:
            for kk in range(4):
                for T in range(2):
                    c = "0" if kk == 0 else vr(S + 4 * T, 4)
                    e(f"  v_mfma_f32_16x16x32_bf16 {vr(S+4*T,4)}, {vr(KB[x]+16*T+4*kk,4)}, {vr(Q+4*kk,4)}, {c}")
        else:
            e("  s_nop 4")
        loadK(x)
        if not loadonly:
            e(f"  s_cmp_ge_i32 s{sRem}, 32")
            e(f"  s_cbranch_scc1 L_nomask{x}")
            e(f"  v_sub_u32 v{t0}, s{sRem}, v{v4r}")
            e(f"  v_mov_b32 v{t1}, s{sNeg}")
            for j in range(8):
                off = 16 * (j >> 2) + (j & 3)
                e(f"  v_cmp_lt_i32 {sr(sM+2*j,2)}, {off}, v{t0}")
            e("  s_nop 1")
            for j in range(8):
                e(f"  v_cndmask_b32 v{S+j}, v{t1}, v{S+j}, {sr(sM+2*j,2)}")
            e(f"L_nomask{x}:")
            e(f"  s_sub_i32 s{sRem}, s{sRem}, {32*NW}")
            e(f"  v_max3_f32 v{t0}, v{S}, v{S+1}, v{S+2}")
            e(f"  v_max3_f32 v{t1}, v{S+3}, v{S+4}, v{S+5}")
            e(f"  v_max3_f32 v{t0}, v{t0}, v{S+6}, v{S+7}")
            e(f"  v_max_f32 v{t0}, v{t0}, v{t1}")
            e(f"  v_mov_b32 v{t1}, v{t0}")
            e("  s_nop 1")
            e(f"  v_permlane32_swap_b32 v{t0}, v{t1}")
            e("  s_nop 1")
            e(f"  v_max_f32 v{t0}, v{t0}, v{t1}")
            e(f"  v_mov_b32 v{t1}, v{t0}")
            e("  s_nop 1")
            e(f"  v_permlane16_swap_b32 v{t0}, v{t1}")
            e("  s_nop 1")
            e(f"  v_max_f32 v{t0}, v{t0}, v{t1}")
            e(f"  v_mul_f32 v{t0}, s{sC}, v{t0}")
            e(f"  v_max_f32 v{vMCn}, v{t0}, v{vMC}")
            e(f"  v_sub_f32 v{t1}, v{vMC}, v{vMCn}")
            e(f"  v_exp_f32 v{vAl}, v{t1}")
            e(f"  v_mov_b32 v{vMC}, v{vMCn}")
            for j in range(8):
                e(f"  v_fma_f32 v{S+j}, v{S+j}, s{sC}, -v{vMCn}")
            for j in range(8):
                e(f"  v_exp_f32 v{S+j}, v{S+j}")
            for i in range(16):
                e(f"  v_pk_mul_f32 {vr(O+2*i,2)}, {vr(O+2*i,2)}, {vr(vAl,2)} op_sel_hi:[1,0]")
            e(f"  v_mul_f32 v{vL}, v{vL}, v{vAl}")
            e(f"  v_add_f32 v{t0}, v{S}, v{S+1}")
            e(f"  v_add_f32 v{t1}, v{S+2}, v{S+3}")
            e(f"  v_add_f32 v{tA}, v{S+4}, v{S+5}")
            e(f"  v_add_f32 v{tB}, v{S+6}, v{S+7}")
            for jp in range(4):
                e(f"  v_cvt_pk_bf16_f32 v{P+jp}, v{S+2*jp}, v{S+2*jp+1}")
            e(f"  v_add_f32 v{t0}, v{t0}, v{t1}")
            e(f"  v_add_f32 v{tA}, v{tA}, v{tB}")
            e(f"  v_add_f32 v{vL}, v{vL}, v{t0}")
            e(f"  v_add_f32 v{vL}, v{vL}, v{tA}")
        e("  s_waitcnt vmcnt(24)")
        if not loadonly:
            for w in range(4):
                for jp in range(4):
                    a, b = VB[x] + 4 * (2 * jp + 1) + w, VB[x] + 4 * (2 * jp) + w
                    e(f"  v_perm_b32 v{VT+4*(2*w)+jp}, v{a}, v{b}, s{sSelLo}")
                    e(f"  v_perm_b32 v{VT+4*(2*w+1)+jp}, v{a}, v{b}, s{sSelHi}")
        loadV(x)
        if not loadonly:
            for ee in range(8):
                e(f"  v_mfma_f32_16x16x32_bf16 {vr(O+4*ee,4)}, {vr(VT+4*ee,4)}, {vr(P,4)}, {vr(O+4*ee,4)}")
        e(f"  s_add_u32 s{sT}, s{sT}, 1")
        e(f"  s_cmp_lt_u32 s{sT}, s{sNT}")
        if x == 0:
            e("  s_cbranch_scc0 L_exit")
        else:
            e("  s_cbranch_scc1 L_loop0")
    e("L_exit:")
    e(f"  v_mov_b32 v{t1}, v{vL}")
    e("  s_nop 1")
    e(f"  v_permlane32_swap_b32 v{vL}, v{t1}")
    e("  s_nop 1")
    e(f"  v_add_f32 v{vL}, v{vL}, v{t1}")
    e(f"  v_mov_b32 v{t1}, v{vL}")
    e("  s_nop 1")
    e(f"  v_permlane16_swap_b32 v{vL}, v{t1}")
    e("  s_nop 1")
    e(f"  v_add_f32 v{vL}, v{vL}, v{t1}")
    e(f"  v_and_b32 v{tA}, 15, v0")
    e(f"  v_lshrrev_b32 v{tB}, 4, v0")
    e(f"  s_mul_i32 s{sTmp}, s{sW}, {PART}")
    e(f"  v_mul_u32_u24 v{t0}, {ROWB}, v{tA}")
    e(f"  v_lshl_add_u32 v{t0}, v{tB}, 7, v{t0}")
    e(f"  v_add_u32 v{t0}, s{sTmp}, v{t0}")
    e(f"  s_lshl_b32 s{sTmp}, s{sW}, 3")
    e(f"  s_add_u32 s{sTmp}, s{sTmp}, {STATS}")
    e(f"  v_mul_u32_u24 v{t1}, {NW*8}, v{tA}")
    e(f"  v_add_u32 v{t1}, s{sTmp}, v{t1}")
    e(f"  ds_write_b64 v{t1}, {vr(vMC,2)}")
    for ee in range(8):
        e(f"  ds_write_b128 v{t0}, {vr(O+4*ee,4)} offset:{PBASE+16*ee}")
    e("  s_waitcnt vmcnt(0) lgkmcnt(0)")
    e("  s_barrier")
    CH = 512 // (64 * NW)
    ST = KB[0]
    PB = KB[0] + 2 * NW
    PB = (PB + 3) & ~3
    for ch in range(CH):
        e(f"  s_mul_i32 s{sTmp}, s{sW}, {CH}")
        e(f"  s_add_u32 s{sTmp}, s{sTmp}, {ch}")
        e(f"  s_lshl_b32 s{sTmp}, s{sTmp}, 1")
        e(f"  v_lshrrev_b32 v{tA}, 5, v0")
        e(f"  v_add_u32 v{tA}, s{sTmp}, v{tA}")
        e(f"  v_and_b32 v{tB}, 31, v0")
        e(f"  v_mul_u32_u24 v{t0}, {ROWB}, v{tA}")
        e(f"  v_lshl_add_u32 v{t0}, v{tB}, 4, v{t0}")
        e(f"  v_mul_u32_u24 v{t1}, {NW*8}, v{tA}")
        for u in range(NW // 2):
            e(f"  ds_read_b128 {vr(ST+4*u,4)}, v{t1} offset:{STATS+16*u}")
        for u in range(NW):
            e(f"  ds_read_b128 {vr(PB+4*u,4)}, v{t0} offset:{PBASE+u*PART}")
        e(f"  v_lshrrev_b32 v{tC}, 3, v{tB}")
        e(f"  v_and_b32 v{tB}, 7, v{tB}")
        e(f"  v_lshlrev_b32 v{tA}, 8, v{tA}")
        e(f"  v_lshl_add_u32 v{tA}, v{tC}, 6, v{tA}")
        e(f"  v_lshl_add_u32 v{tA}, v{tB}, 1, v{tA}")
        e(f"  s_waitcnt lgkmcnt({NW})")
        e(f"  v_max_f32 v{t0}, v{ST}, v{ST+2}")
        for u in range(2, NW):
            e(f"  v_max_f32 v{t0}, v{t0}, v{ST+2*u}")
        for u in range(NW):
            e(f"  v_sub_f32 v{ST+2*u}, v{ST+2*u}, v{t0}")
        for u in range(NW):
            e(f"  v_exp_f32 v{ST+2*u}, v{ST+2*u}")
        e("  s_nop 0")
        e(f"  v_mul_f32 v{t1}, v{ST}, v{ST+1}")
        for u in range(1, NW):
            e(f"  v_fmac_f32 v{t1}, v{ST+2*u}, v{ST+2*u+1}")
        e(f"  v_rcp_f32 v{t1}, v{t1}")
        e("  s_waitcnt lgkmcnt(0)")
        for i in range(4):
            e(f"  v_mul_f32 v{S+i}, v{ST}, v{PB+i}")
        for u in range(1, NW):
            for i in range(4):
                e(f"  v_fmac_f32 v{S+i}, v{ST+2*u}, v{PB+4*u+i}")
        for i in range(4):
            e(f"  v_mul_f32 v{S+i}, v{S+i}, v{t1}")
        e(f"  v_cvt_pk_bf16_f32 v{P}, v{S}, v{S+1}")
        e(f"  v_cvt_pk_bf16_f32 v{P+1}, v{S+2}, v{S+3}")
        e(f"  buffer_store_short v{P}, v{tA}, {sr(sO,4)}, s{sQB} offen")
        e(f"  buffer_store_short_d16_hi v{P}, v{tA}, {sr(sO,4)}, s{sQB} offen offset:16")
        e(f"  buffer_store_short v{P+1}, v{tA}, {sr(sO,4)}, s{sQB} offen offset:32")
        e(f"  buffer_store_short_d16_hi v{P+1}, v{tA}, {sr(sO,4)}, s{sQB} offen offset:48")
        if ch + 1 < CH:
            e("  s_nop 1")
    e("L_end:")
    e("  s_endpgm")
    e('.section .rodata,"a"')
    e(".p2align 6")
    e(f".amdhsa_kernel {NAME}")
    e(f"  .amdhsa_next_free_vgpr {NV}")
    e("  .amdhsa_next_free_sgpr 80")
    e(f"  .amdhsa_accum_offset {(NV+3)//4*4}")
    e("  .amdhsa_group_segment_fixed_size 0")
    e("  .amdhsa_kernarg_size 64")
    e("  .amdhsa_user_sgpr_count 2")
    e("  .amdhsa_user_sgpr_kernarg_segment_ptr 1")
    e("  .amdhsa_system_sgpr_workgroup_id_x 1")
    e(".end_amdhsa_kernel")
    return "\n".join(L) + "\n"


if __name__ == "__main__":
    import argparse
    ap = argparse.ArgumentParser()
    ap.add_argument("-o", required=True)
    ap.add_argument("--nw", type=int, default=8)
    ap.add_argument("--nont", action="store_true")
    ap.add_argument("--loadonly", action="store_true")
    ap.add_argument("--mapping", default="h_low")
    a = ap.parse_args()
    open(a.o, "w").write(gen(NW=a.nw, nt=not a.nont, loadonly=a.loadonly, mapping=a.mapping))
```

```python
import sys, struct, math

NAME = "standalone__paged_block_table_kv_pagedattention__sampling_kernel"
HEADER = open("standalone__paged_block_table_kv_pagedattention__sampling.s.ref").read().split("; Override launch")[0]

KV_BYTES = 4100 * 16 * 8 * 128 * 2
OOB = 0x10000000


def f32bits(x):
    return struct.unpack("<I", struct.pack("<f", x))[0]


def gen(NW=8, kfl="nt", vfl="nt", loadonly=False, mapping="h_low"):
    L = []
    e = L.append
    logNW = int(math.log2(NW))
    KFL = (" " + kfl.replace("+", " ")) if kfl else ""
    VFL = (" " + vfl.replace("+", " ")) if vfl else ""
    vKoff, vV0, vV1, vBT, v4r, vMC, vL = 1, 2, 3, 4, 5, 6, 7
    t0, t1, vAl, vMCn = 8, 9, 10, 12
    tA, tB, tC = 13, 14, 15
    Q = 16
    O = 32
    S = 64
    P = 72
    VT = 76
    KB = [108, 140]
    VB = [172, 204]
    NV = 236
    sK, sV, sBT, sQ, sO = 16, 20, 24, 28, 32
    sB, sH, sW, sCL, sNB, sNT, sT, sIdx, sO0, sO1, sRem, sC, sSelLo, sSelHi, sTmp, sNeg = range(36, 52)
    sM = 52
    ROWB = 528
    PART = 16 * ROWB
    STATS = 0
    PBASE = 16 * NW * 8
    LDS = PBASE + NW * PART

    def srd(r, lo, nbytes):
        e(f"  s_mov_b32 s{r}, s{lo}")
        e(f"  s_mov_b32 s{r+1}, s{lo+1}")
        e(f"  s_mov_b32 s{r+2}, {nbytes}")
        e(f"  s_mov_b32 s{r+3}, 0x00020000")

    def vr(a, n):
        return f"v[{a}:{a+n-1}]"

    def sr(a, n):
        return f"s[{a}:{a+n-1}]"

    def loadK(x):
        for T in range(2):
            for kk in range(4):
                e(f"  buffer_load_dwordx4 {vr(KB[x]+16*T+4*kk,4)}, v{vKoff}, {sr(sK,4)}, s{sO0+T} offen offset:{kk*64}{KFL}")

    def loadV(x):
        for j in range(8):
            T, i = j >> 2, j & 3
            e(f"  buffer_load_dwordx4 {vr(VB[x]+4*j,4)}, v{vV0 + (i>>1)}, {sr(sV,4)}, s{sO0+T} offen offset:{(i&1)*2048}{VFL}")

    def next_offsets():
        e(f"  v_readlane_b32 s{sO0}, v{vBT}, s{sIdx}")
        e(f"  s_add_u32 s{sIdx}, s{sIdx}, 1")
        e(f"  v_readlane_b32 s{sO1}, v{vBT}, s{sIdx}")
        e(f"  s_add_u32 s{sIdx}, s{sIdx}, 1")

    e(HEADER.rstrip("\n"))
    e(f"; @launch grid=(256,1,1) block=({64*NW},1,1) lds={LDS}")
    e('.amdgcn_target "amdgcn-amd-amdhsa--gfx950"')
    e(".text")
    e(f".globl {NAME}")
    e(".p2align 8")
    e(f".type {NAME},@function")
    e(f"{NAME}:")
    e("  s_cmp_ge_u32 s2, 256")
    e("  s_cbranch_scc1 L_end")
    e("  s_load_dwordx8 s[4:11], s[0:1], 0")
    e("  s_load_dwordx4 s[12:15], s[0:1], 32")
    e(f"  v_lshrrev_b32 v{t0}, 6, v0")
    e(f"  v_and_b32 v0, 63, v0")
    e(f"  v_readfirstlane_b32 s{sW}, v{t0}")
    if mapping == "h_low":
        e(f"  s_lshr_b32 s{sB}, s2, 3")
        e(f"  s_and_b32 s{sH}, s2, 7")
    else:
        e(f"  s_lshr_b32 s{sH}, s2, 5")
        e(f"  s_and_b32 s{sB}, s2, 31")
    e(f"  v_and_b32 v{tA}, 15, v0")
    e(f"  v_lshrrev_b32 v{tB}, 4, v0")
    e(f"  s_lshl_b32 s{sTmp}, s{sH}, 8")
    e(f"  v_lshrrev_b32 v{t0}, 1, v0")
    e(f"  v_lshlrev_b32 v{t0}, {logNW+1}, v{t0}")
    e(f"  v_and_b32 v{t1}, 1, v0")
    e(f"  s_lshl_b32 s{sIdx}, s{sW}, 1")
    e(f"  v_add3_u32 v{tC}, v{t0}, v{t1}, s{sIdx}")
    e(f"  s_lshl_b32 s{sNB}, s{sB}, 9")
    e(f"  v_lshl_add_u32 v{t0}, v{tC}, 2, s{sNB}")
    e(f"  v_lshlrev_b32 v{vKoff}, 11, v{tA}")
    e(f"  v_lshl_add_u32 v{vKoff}, v{tB}, 4, v{vKoff}")
    e(f"  v_add_u32 v{vKoff}, s{sTmp}, v{vKoff}")
    e(f"  v_lshlrev_b32 v{vV0}, 13, v{tB}")
    e(f"  v_lshl_add_u32 v{vV0}, v{tA}, 4, v{vV0}")
    e(f"  v_add_u32 v{vV0}, s{sTmp}, v{vV0}")
    e(f"  v_add_u32 v{vV1}, 0x1000, v{vV0}")
    e(f"  v_lshlrev_b32 v{v4r}, 2, v{tB}")
    e(f"  s_lshl_b32 s{sNT}, s{sB}, 3")
    e(f"  s_add_u32 s{sNT}, s{sNT}, s{sH}")
    e(f"  s_lshl_b32 s{sT}, s{sNT}, 12")
    e(f"  v_lshlrev_b32 v{t1}, 8, v{tA}")
    e(f"  v_lshl_add_u32 v{t1}, v{tB}, 4, v{t1}")
    e(f"  s_lshl_b32 s{sRem}, s{sB}, 2")
    e(f"  s_mov_b32 s{sC}, {hex(f32bits(128 ** -0.5 * math.log2(math.e)))}")
    e(f"  s_mov_b32 s{sSelLo}, 0x05040100")
    e(f"  s_mov_b32 s{sSelHi}, 0x07060302")
    e(f"  s_mov_b32 s{sNeg}, {hex(f32bits(-1e9 / (128 ** -0.5)))}")
    e("  s_waitcnt lgkmcnt(0)")
    e(f"  s_load_dword s{sCL}, s[12:13], s{sRem}")
    srd(sBT, 10, 32 * 128 * 4)
    e(f"  buffer_load_dword v{vBT}, v{t0}, {sr(sBT,4)}, 0 offen")
    srd(sQ, 4, 32 * 32 * 4 * 128 * 2)
    for kk in range(4):
        e(f"  buffer_load_dwordx4 {vr(Q+4*kk,4)}, v{t1}, {sr(sQ,4)}, s{sT} offen offset:{kk*64}")
    srd(sK, 6, KV_BYTES)
    srd(sV, 8, KV_BYTES)
    srd(sO, 14, 32 * 32 * 4 * 128 * 2)
    e(f"  s_mov_b32 s{sO+3+29}, s{sT}")
    L.pop()
    sQB = 68
    e(f"  s_mov_b32 s{sQB}, s{sT}")
    for i in range(32):
        e(f"  v_mov_b32 v{O+i}, 0")
    e(f"  v_mov_b32 v{vMC}, 0xff7fffff")
    e(f"  v_mov_b32 v{vL}, 0")
    e("  s_waitcnt lgkmcnt(0)")
    e(f"  s_max_i32 s{sCL}, s{sCL}, 0")
    e(f"  s_cmp_gt_i32 s{sCL}, 0")
    e(f"  s_cselect_b32 s{sNB}, s{sCL}, 2048")
    e(f"  s_min_u32 s{sNB}, s{sNB}, 2048")
    e(f"  s_add_u32 s{sNB}, s{sNB}, 15")
    e(f"  s_lshr_b32 s{sNB}, s{sNB}, 4")
    e(f"  s_add_u32 s{sNT}, s{sNB}, 1")
    e(f"  s_lshr_b32 s{sNT}, s{sNT}, 1")
    e(f"  s_add_u32 s{sNT}, s{sNT}, {NW-1}")
    e(f"  s_sub_u32 s{sNT}, s{sNT}, s{sW}")
    e(f"  s_lshr_b32 s{sNT}, s{sNT}, {logNW}")
    e(f"  s_lshl_b32 s{sTmp}, s{sW}, 5")
    e(f"  s_sub_i32 s{sRem}, s{sCL}, s{sTmp}")
    e(f"  v_cmp_gt_u32 vcc, s{sNB}, v{tC}")
    e(f"  v_mov_b32 v{t0}, {hex(OOB)}")
    e("  s_waitcnt vmcnt(4)")
    e(f"  v_lshlrev_b32 v{vBT}, 15, v{vBT}")
    e(f"  v_cndmask_b32 v{vBT}, v{t0}, v{vBT}, vcc")
    e(f"  s_mov_b32 s{sIdx}, 0")
    e(f"  s_mov_b32 s{sT}, 0")
    for x in range(2):
        next_offsets()
        e("  s_nop 3")
        loadK(x)
        loadV(x)
    e(f"  s_cmp_eq_u32 s{sNT}, 0")
    e("  s_cbranch_scc1 L_exit")

    for x in range(2):
        e(f"L_loop{x}:")
        next_offsets()
        e("  s_waitcnt vmcnt(24)")
        if not loadonly:
            for kk in range(4):
                for T in range(2):
                    c = "0" if kk == 0 else vr(S + 4 * T, 4)
                    e(f"  v_mfma_f32_16x16x32_bf16 {vr(S+4*T,4)}, {vr(KB[x]+16*T+4*kk,4)}, {vr(Q+4*kk,4)}, {c}")
        else:
            e("  s_nop 4")
        loadK(x)
        if not loadonly:
            e(f"  s_cmp_ge_i32 s{sRem}, 32")
            e(f"  s_cbranch_scc1 L_nomask{x}")
            e(f"  v_sub_u32 v{t0}, s{sRem}, v{v4r}")
            e(f"  v_mov_b32 v{t1}, s{sNeg}")
            for j in range(8):
                off = 16 * (j >> 2) + (j & 3)
                e(f"  v_cmp_lt_i32 {sr(sM+2*j,2)}, {off}, v{t0}")
            e("  s_nop 1")
            for j in range(8):
                e(f"  v_cndmask_b32 v{S+j}, v{t1}, v{S+j}, {sr(sM+2*j,2)}")
            e(f"L_nomask{x}:")
            e(f"  s_sub_i32 s{sRem}, s{sRem}, {32*NW}")
            e(f"  v_max3_f32 v{t0}, v{S}, v{S+1}, v{S+2}")
            e(f"  v_max3_f32 v{t1}, v{S+3}, v{S+4}, v{S+5}")
            e(f"  v_max3_f32 v{t0}, v{t0}, v{S+6}, v{S+7}")
            e(f"  v_max_f32 v{t0}, v{t0}, v{t1}")
            e(f"  v_mov_b32 v{t1}, v{t0}")
            e("  s_nop 1")
            e(f"  v_permlane32_swap_b32 v{t0}, v{t1}")
            e("  s_nop 1")
            e(f"  v_max_f32 v{t0}, v{t0}, v{t1}")
            e(f"  v_mov_b32 v{t1}, v{t0}")
            e("  s_nop 1")
            e(f"  v_permlane16_swap_b32 v{t0}, v{t1}")
            e("  s_nop 1")
            e(f"  v_max_f32 v{t0}, v{t0}, v{t1}")
            e(f"  v_mul_f32 v{t0}, s{sC}, v{t0}")
            e(f"  v_max_f32 v{vMCn}, v{t0}, v{vMC}")
            e(f"  v_sub_f32 v{t1}, v{vMC}, v{vMCn}")
            e(f"  v_exp_f32 v{vAl}, v{t1}")
            e(f"  v_mov_b32 v{vMC}, v{vMCn}")
            for j in range(8):
                e(f"  v_fma_f32 v{S+j}, v{S+j}, s{sC}, -v{vMCn}")
            for j in range(8):
                e(f"  v_exp_f32 v{S+j}, v{S+j}")
            for i in range(16):
                e(f"  v_pk_mul_f32 {vr(O+2*i,2)}, {vr(O+2*i,2)}, {vr(vAl,2)} op_sel_hi:[1,0]")
            e(f"  v_mul_f32 v{vL}, v{vL}, v{vAl}")
            e(f"  v_add_f32 v{t0}, v{S}, v{S+1}")
            e(f"  v_add_f32 v{t1}, v{S+2}, v{S+3}")
            e(f"  v_add_f32 v{tA}, v{S+4}, v{S+5}")
            e(f"  v_add_f32 v{tB}, v{S+6}, v{S+7}")
            for jp in range(4):
                e(f"  v_cvt_pk_bf16_f32 v{P+jp}, v{S+2*jp}, v{S+2*jp+1}")
            e(f"  v_add_f32 v{t0}, v{t0}, v{t1}")
            e(f"  v_add_f32 v{tA}, v{tA}, v{tB}")
            e(f"  v_add_f32 v{vL}, v{vL}, v{t0}")
            e(f"  v_add_f32 v{vL}, v{vL}, v{tA}")
        e("  s_waitcnt vmcnt(24)")
        if not loadonly:
            for w in range(4):
                for jp in range(4):
                    a, b = VB[x] + 4 * (2 * jp + 1) + w, VB[x] + 4 * (2 * jp) + w
                    e(f"  v_perm_b32 v{VT+4*(2*w)+jp}, v{a}, v{b}, s{sSelLo}")
                    e(f"  v_perm_b32 v{VT+4*(2*w+1)+jp}, v{a}, v{b}, s{sSelHi}")
        loadV(x)
        if not loadonly:
            for ee in range(8):
                e(f"  v_mfma_f32_16x16x32_bf16 {vr(O+4*ee,4)}, {vr(VT+4*ee,4)}, {vr(P,4)}, {vr(O+4*ee,4)}")
        e(f"  s_add_u32 s{sT}, s{sT}, 1")
        e(f"  s_cmp_lt_u32 s{sT}, s{sNT}")
        if x == 0:
            e("  s_cbranch_scc0 L_exit")
        else:
            e("  s_cbranch_scc1 L_loop0")
    e("L_exit:")
    e(f"  v_mov_b32 v{t1}, v{vL}")
    e("  s_nop 1")
    e(f"  v_permlane32_swap_b32 v{vL}, v{t1}")
    e("  s_nop 1")
    e(f"  v_add_f32 v{vL}, v{vL}, v{t1}")
    e(f"  v_mov_b32 v{t1}, v{vL}")
    e("  s_nop 1")
    e(f"  v_permlane16_swap_b32 v{vL}, v{t1}")
    e("  s_nop 1")
    e(f"  v_add_f32 v{vL}, v{vL}, v{t1}")
    e(f"  v_and_b32 v{tA}, 15, v0")
    e(f"  v_lshrrev_b32 v{tB}, 4, v0")
    e(f"  s_mul_i32 s{sTmp}, s{sW}, {PART}")
    e(f"  v_mul_u32_u24 v{t0}, {ROWB}, v{tA}")
    e(f"  v_lshl_add_u32 v{t0}, v{tB}, 7, v{t0}")
    e(f"  v_add_u32 v{t0}, s{sTmp}, v{t0}")
    e(f"  s_lshl_b32 s{sTmp}, s{sW}, 3")
    e(f"  s_add_u32 s{sTmp}, s{sTmp}, {STATS}")
    e(f"  v_mul_u32_u24 v{t1}, {NW*8}, v{tA}")
    e(f"  v_add_u32 v{t1}, s{sTmp}, v{t1}")
    e(f"  ds_write_b64 v{t1}, {vr(vMC,2)}")
    for ee in range(8):
        e(f"  ds_write_b128 v{t0}, {vr(O+4*ee,4)} offset:{PBASE+16*ee}")
    e("  s_waitcnt vmcnt(0) lgkmcnt(0)")
    e("  s_barrier")
    CH = 512 // (64 * NW)
    ST = KB[0]
    PB = KB[0] + 2 * NW
    PB = (PB + 3) & ~3
    for ch in range(CH):
        e(f"  s_mul_i32 s{sTmp}, s{sW}, {CH}")
        e(f"  s_add_u32 s{sTmp}, s{sTmp}, {ch}")
        e(f"  s_lshl_b32 s{sTmp}, s{sTmp}, 1")
        e(f"  v_lshrrev_b32 v{tA}, 5, v0")
        e(f"  v_add_u32 v{tA}, s{sTmp}, v{tA}")
        e(f"  v_and_b32 v{tB}, 31, v0")
        e(f"  v_mul_u32_u24 v{t0}, {ROWB}, v{tA}")
        e(f"  v_lshl_add_u32 v{t0}, v{tB}, 4, v{t0}")
        e(f"  v_mul_u32_u24 v{t1}, {NW*8}, v{tA}")
        for u in range(NW // 2):
            e(f"  ds_read_b128 {vr(ST+4*u,4)}, v{t1} offset:{STATS+16*u}")
        for u in range(NW):
            e(f"  ds_read_b128 {vr(PB+4*u,4)}, v{t0} offset:{PBASE+u*PART}")
        e(f"  v_lshrrev_b32 v{tC}, 3, v{tB}")
        e(f"  v_and_b32 v{tB}, 7, v{tB}")
        e(f"  v_lshlrev_b32 v{tA}, 8, v{tA}")
        e(f"  v_lshl_add_u32 v{tA}, v{tC}, 6, v{tA}")
        e(f"  v_lshl_add_u32 v{tA}, v{tB}, 1, v{tA}")
        e(f"  s_waitcnt lgkmcnt({NW})")
        e(f"  v_max_f32 v{t0}, v{ST}, v{ST+2}")
        for u in range(2, NW):
            e(f"  v_max_f32 v{t0}, v{t0}, v{ST+2*u}")
        for u in range(NW):
            e(f"  v_sub_f32 v{ST+2*u}, v{ST+2*u}, v{t0}")
        for u in range(NW):
            e(f"  v_exp_f32 v{ST+2*u}, v{ST+2*u}")
        e("  s_nop 0")
        e(f"  v_mul_f32 v{t1}, v{ST}, v{ST+1}")
        for u in range(1, NW):
            e(f"  v_fmac_f32 v{t1}, v{ST+2*u}, v{ST+2*u+1}")
        e(f"  v_rcp_f32 v{t1}, v{t1}")
        e("  s_waitcnt lgkmcnt(0)")
        for i in range(4):
            e(f"  v_mul_f32 v{S+i}, v{ST}, v{PB+i}")
        for u in range(1, NW):
            for i in range(4):
                e(f"  v_fmac_f32 v{S+i}, v{ST+2*u}, v{PB+4*u+i}")
        for i in range(4):
            e(f"  v_mul_f32 v{S+i}, v{S+i}, v{t1}")
        e(f"  v_cvt_pk_bf16_f32 v{P}, v{S}, v{S+1}")
        e(f"  v_cvt_pk_bf16_f32 v{P+1}, v{S+2}, v{S+3}")
        e(f"  buffer_store_short v{P}, v{tA}, {sr(sO,4)}, s{sQB} offen")
        e(f"  buffer_store_short_d16_hi v{P}, v{tA}, {sr(sO,4)}, s{sQB} offen offset:16")
        e(f"  buffer_store_short v{P+1}, v{tA}, {sr(sO,4)}, s{sQB} offen offset:32")
        e(f"  buffer_store_short_d16_hi v{P+1}, v{tA}, {sr(sO,4)}, s{sQB} offen offset:48")
        if ch + 1 < CH:
            e("  s_nop 1")
    e("L_end:")
    e("  s_endpgm")
    e('.section .rodata,"a"')
    e(".p2align 6")
    e(f".amdhsa_kernel {NAME}")
    e(f"  .amdhsa_next_free_vgpr {NV}")
    e("  .amdhsa_next_free_sgpr 80")
    e(f"  .amdhsa_accum_offset {(NV+3)//4*4}")
    e("  .amdhsa_group_segment_fixed_size 0")
    e("  .amdhsa_kernarg_size 64")
    e("  .amdhsa_user_sgpr_count 2")
    e("  .amdhsa_user_sgpr_kernarg_segment_ptr 1")
    e("  .amdhsa_system_sgpr_workgroup_id_x 1")
    e(".end_amdhsa_kernel")
    return "\n".join(L) + "\n"


if __name__ == "__main__":
    import argparse
    ap = argparse.ArgumentParser()
    ap.add_argument("-o", required=True)
    ap.add_argument("--nw", type=int, default=8)
    ap.add_argument("--kfl", default="nt")
    ap.add_argument("--vfl", default="nt")
    ap.add_argument("--loadonly", action="store_true")
    ap.add_argument("--mapping", default="h_low")
    a = ap.parse_args()
    open(a.o, "w").write(gen(NW=a.nw, kfl=a.kfl, vfl=a.vfl, loadonly=a.loadonly, mapping=a.mapping))
```

```python
import sys, struct, math

NAME = "standalone__paged_block_table_kv_pagedattention__sampling_kernel"
HEADER = open("standalone__paged_block_table_kv_pagedattention__sampling.s.ref").read().split("; Override launch")[0]

KV_BYTES = 4100 * 16 * 8 * 128 * 2
OOB = 0x10000000


def f32bits(x):
    return struct.unpack("<I", struct.pack("<f", x))[0]


def gen(NW=8, kfl="nt", vfl="nt", loadonly=False, mapping="h_low", stamp=False):
    L = []
    e = L.append
    logNW = int(math.log2(NW))
    KFL = (" " + kfl.replace("+", " ")) if kfl else ""
    VFL = (" " + vfl.replace("+", " ")) if vfl else ""
    vKoff, vV0, vV1, vBT, v4r, vMC, vL = 1, 2, 3, 4, 5, 6, 7
    t0, t1, vAl, vMCn = 8, 9, 10, 12
    tA, tB, tC = 13, 14, 15
    Q = 16
    O = 32
    S = 64
    P = 72
    VT = 76
    KB = [108, 140]
    VB = [172, 204]
    NV = 236
    sK, sV, sBT, sQ, sO = 16, 20, 24, 28, 32
    sB, sH, sW, sCL, sNB, sNT, sT, sIdx, sO0, sO1, sRem, sC, sSelLo, sSelHi, sTmp, sNeg = range(36, 52)
    sM = 52
    ROWB = 528
    PART = 16 * ROWB
    STATS = 0
    PBASE = 16 * NW * 8
    LDS = PBASE + NW * PART

    def srd(r, lo, nbytes):
        e(f"  s_mov_b32 s{r}, s{lo}")
        e(f"  s_mov_b32 s{r+1}, s{lo+1}")
        e(f"  s_mov_b32 s{r+2}, {nbytes}")
        e(f"  s_mov_b32 s{r+3}, 0x00020000")

    def vr(a, n):
        return f"v[{a}:{a+n-1}]"

    def sr(a, n):
        return f"s[{a}:{a+n-1}]"

    def loadK(x):
        for T in range(2):
            for kk in range(4):
                e(f"  buffer_load_dwordx4 {vr(KB[x]+16*T+4*kk,4)}, v{vKoff}, {sr(sK,4)}, s{sO0+T} offen offset:{kk*64}{KFL}")

    def loadV(x):
        for j in range(8):
            T, i = j >> 2, j & 3
            e(f"  buffer_load_dwordx4 {vr(VB[x]+4*j,4)}, v{vV0 + (i>>1)}, {sr(sV,4)}, s{sO0+T} offen offset:{(i&1)*2048}{VFL}")

    def next_offsets():
        e(f"  v_readlane_b32 s{sO0}, v{vBT}, s{sIdx}")
        e(f"  s_add_u32 s{sIdx}, s{sIdx}, 1")
        e(f"  v_readlane_b32 s{sO1}, v{vBT}, s{sIdx}")
        e(f"  s_add_u32 s{sIdx}, s{sIdx}, 1")

    e(HEADER.rstrip("\n"))
    e(f"; @launch grid=(256,1,1) block=({64*NW},1,1) lds={LDS}")
    e('.amdgcn_target "amdgcn-amd-amdhsa--gfx950"')
    e(".text")
    e(f".globl {NAME}")
    e(".p2align 8")
    e(f".type {NAME},@function")
    e(f"{NAME}:")
    e("  s_cmp_ge_u32 s2, 256")
    e("  s_cbranch_scc1 L_end")
    if stamp:
        e("  s_memrealtime s[70:71]")
    e("  s_load_dwordx8 s[4:11], s[0:1], 0")
    e("  s_load_dwordx4 s[12:15], s[0:1], 32")
    e(f"  v_lshrrev_b32 v{t0}, 6, v0")
    e(f"  v_and_b32 v0, 63, v0")
    e(f"  v_readfirstlane_b32 s{sW}, v{t0}")
    if mapping == "h_low":
        e(f"  s_lshr_b32 s{sB}, s2, 3")
        e(f"  s_and_b32 s{sH}, s2, 7")
    else:
        e(f"  s_lshr_b32 s{sH}, s2, 5")
        e(f"  s_and_b32 s{sB}, s2, 31")
    e(f"  v_and_b32 v{tA}, 15, v0")
    e(f"  v_lshrrev_b32 v{tB}, 4, v0")
    e(f"  s_lshl_b32 s{sTmp}, s{sH}, 8")
    e(f"  v_lshrrev_b32 v{t0}, 1, v0")
    e(f"  v_lshlrev_b32 v{t0}, {logNW+1}, v{t0}")
    e(f"  v_and_b32 v{t1}, 1, v0")
    e(f"  s_lshl_b32 s{sIdx}, s{sW}, 1")
    e(f"  v_add3_u32 v{tC}, v{t0}, v{t1}, s{sIdx}")
    e(f"  s_lshl_b32 s{sNB}, s{sB}, 9")
    e(f"  v_lshl_add_u32 v{t0}, v{tC}, 2, s{sNB}")
    e(f"  v_lshlrev_b32 v{vKoff}, 11, v{tA}")
    e(f"  v_lshl_add_u32 v{vKoff}, v{tB}, 4, v{vKoff}")
    e(f"  v_add_u32 v{vKoff}, s{sTmp}, v{vKoff}")
    e(f"  v_lshlrev_b32 v{vV0}, 13, v{tB}")
    e(f"  v_lshl_add_u32 v{vV0}, v{tA}, 4, v{vV0}")
    e(f"  v_add_u32 v{vV0}, s{sTmp}, v{vV0}")
    e(f"  v_add_u32 v{vV1}, 0x1000, v{vV0}")
    e(f"  v_lshlrev_b32 v{v4r}, 2, v{tB}")
    e(f"  s_lshl_b32 s{sNT}, s{sB}, 3")
    e(f"  s_add_u32 s{sNT}, s{sNT}, s{sH}")
    e(f"  s_lshl_b32 s{sT}, s{sNT}, 12")
    e(f"  v_lshlrev_b32 v{t1}, 8, v{tA}")
    e(f"  v_lshl_add_u32 v{t1}, v{tB}, 4, v{t1}")
    e(f"  s_lshl_b32 s{sRem}, s{sB}, 2")
    e(f"  s_mov_b32 s{sC}, {hex(f32bits(128 ** -0.5 * math.log2(math.e)))}")
    e(f"  s_mov_b32 s{sSelLo}, 0x05040100")
    e(f"  s_mov_b32 s{sSelHi}, 0x07060302")
    e(f"  s_mov_b32 s{sNeg}, {hex(f32bits(-1e9 / (128 ** -0.5)))}")
    e("  s_waitcnt lgkmcnt(0)")
    if stamp:
        e("  s_memrealtime s[72:73]")
        e("  s_load_dwordx4 s[84:87], s[0:1], 48")
    e(f"  s_load_dword s{sCL}, s[12:13], s{sRem}")
    srd(sBT, 10, 32 * 128 * 4)
    e(f"  buffer_load_dword v{vBT}, v{t0}, {sr(sBT,4)}, 0 offen")
    srd(sQ, 4, 32 * 32 * 4 * 128 * 2)
    for kk in range(4):
        e(f"  buffer_load_dwordx4 {vr(Q+4*kk,4)}, v{t1}, {sr(sQ,4)}, s{sT} offen offset:{kk*64}")
    srd(sK, 6, KV_BYTES)
    srd(sV, 8, KV_BYTES)
    srd(sO, 14, 32 * 32 * 4 * 128 * 2)
    e(f"  s_mov_b32 s{sO+3+29}, s{sT}")
    L.pop()
    sQB = 68
    e(f"  s_mov_b32 s{sQB}, s{sT}")
    for i in range(32):
        e(f"  v_mov_b32 v{O+i}, 0")
    e(f"  v_mov_b32 v{vMC}, 0xff7fffff")
    e(f"  v_mov_b32 v{vL}, 0")
    e("  s_waitcnt lgkmcnt(0)")
    e(f"  s_max_i32 s{sCL}, s{sCL}, 0")
    e(f"  s_cmp_gt_i32 s{sCL}, 0")
    e(f"  s_cselect_b32 s{sNB}, s{sCL}, 2048")
    e(f"  s_min_u32 s{sNB}, s{sNB}, 2048")
    e(f"  s_add_u32 s{sNB}, s{sNB}, 15")
    e(f"  s_lshr_b32 s{sNB}, s{sNB}, 4")
    e(f"  s_add_u32 s{sNT}, s{sNB}, 1")
    e(f"  s_lshr_b32 s{sNT}, s{sNT}, 1")
    e(f"  s_add_u32 s{sNT}, s{sNT}, {NW-1}")
    e(f"  s_sub_u32 s{sNT}, s{sNT}, s{sW}")
    e(f"  s_lshr_b32 s{sNT}, s{sNT}, {logNW}")
    e(f"  s_lshl_b32 s{sTmp}, s{sW}, 5")
    e(f"  s_sub_i32 s{sRem}, s{sCL}, s{sTmp}")
    e(f"  v_cmp_gt_u32 vcc, s{sNB}, v{tC}")
    e(f"  v_mov_b32 v{t0}, {hex(OOB)}")
    e("  s_waitcnt vmcnt(4)")
    if stamp:
        e("  s_memrealtime s[74:75]")
    e(f"  v_lshlrev_b32 v{vBT}, 15, v{vBT}")
    e(f"  v_cndmask_b32 v{vBT}, v{t0}, v{vBT}, vcc")
    e(f"  s_mov_b32 s{sIdx}, 0")
    e(f"  s_mov_b32 s{sT}, 0")
    for x in range(2):
        next_offsets()
        e("  s_nop 3")
        loadK(x)
        loadV(x)
    if stamp:
        e("  s_waitcnt vmcnt(24)")
        e("  s_memrealtime s[76:77]")
    e(f"  s_cmp_eq_u32 s{sNT}, 0")
    e("  s_cbranch_scc1 L_exit")

    for x in range(2):
        e(f"L_loop{x}:")
        next_offsets()
        e("  s_waitcnt vmcnt(24)")
        if not loadonly:
            for kk in range(4):
                for T in range(2):
                    c = "0" if kk == 0 else vr(S + 4 * T, 4)
                    e(f"  v_mfma_f32_16x16x32_bf16 {vr(S+4*T,4)}, {vr(KB[x]+16*T+4*kk,4)}, {vr(Q+4*kk,4)}, {c}")
        else:
            e("  s_nop 4")
        loadK(x)
        if not loadonly:
            e(f"  s_cmp_ge_i32 s{sRem}, 32")
            e(f"  s_cbranch_scc1 L_nomask{x}")
            e(f"  v_sub_u32 v{t0}, s{sRem}, v{v4r}")
            e(f"  v_mov_b32 v{t1}, s{sNeg}")
            for j in range(8):
                off = 16 * (j >> 2) + (j & 3)
                e(f"  v_cmp_lt_i32 {sr(sM+2*j,2)}, {off}, v{t0}")
            e("  s_nop 1")
            for j in range(8):
                e(f"  v_cndmask_b32 v{S+j}, v{t1}, v{S+j}, {sr(sM+2*j,2)}")
            e(f"L_nomask{x}:")
            e(f"  s_sub_i32 s{sRem}, s{sRem}, {32*NW}")
            e(f"  v_max3_f32 v{t0}, v{S}, v{S+1}, v{S+2}")
            e(f"  v_max3_f32 v{t1}, v{S+3}, v{S+4}, v{S+5}")
            e(f"  v_max3_f32 v{t0}, v{t0}, v{S+6}, v{S+7}")
            e(f"  v_max_f32 v{t0}, v{t0}, v{t1}")
            e(f"  v_mov_b32 v{t1}, v{t0}")
            e("  s_nop 1")
            e(f"  v_permlane32_swap_b32 v{t0}, v{t1}")
            e("  s_nop 1")
            e(f"  v_max_f32 v{t0}, v{t0}, v{t1}")
            e(f"  v_mov_b32 v{t1}, v{t0}")
            e("  s_nop 1")
            e(f"  v_permlane16_swap_b32 v{t0}, v{t1}")
            e("  s_nop 1")
            e(f"  v_max_f32 v{t0}, v{t0}, v{t1}")
            e(f"  v_mul_f32 v{t0}, s{sC}, v{t0}")
            e(f"  v_max_f32 v{vMCn}, v{t0}, v{vMC}")
            e(f"  v_sub_f32 v{t1}, v{vMC}, v{vMCn}")
            e(f"  v_exp_f32 v{vAl}, v{t1}")
            e(f"  v_mov_b32 v{vMC}, v{vMCn}")
            for j in range(8):
                e(f"  v_fma_f32 v{S+j}, v{S+j}, s{sC}, -v{vMCn}")
            for j in range(8):
                e(f"  v_exp_f32 v{S+j}, v{S+j}")
            for i in range(16):
                e(f"  v_pk_mul_f32 {vr(O+2*i,2)}, {vr(O+2*i,2)}, {vr(vAl,2)} op_sel_hi:[1,0]")
            e(f"  v_mul_f32 v{vL}, v{vL}, v{vAl}")
            e(f"  v_add_f32 v{t0}, v{S}, v{S+1}")
            e(f"  v_add_f32 v{t1}, v{S+2}, v{S+3}")
            e(f"  v_add_f32 v{tA}, v{S+4}, v{S+5}")
            e(f"  v_add_f32 v{tB}, v{S+6}, v{S+7}")
            for jp in range(4):
                e(f"  v_cvt_pk_bf16_f32 v{P+jp}, v{S+2*jp}, v{S+2*jp+1}")
            e(f"  v_add_f32 v{t0}, v{t0}, v{t1}")
            e(f"  v_add_f32 v{tA}, v{tA}, v{tB}")
            e(f"  v_add_f32 v{vL}, v{vL}, v{t0}")
            e(f"  v_add_f32 v{vL}, v{vL}, v{tA}")
        e("  s_waitcnt vmcnt(24)")
        if not loadonly:
            for w in range(4):
                for jp in range(4):
                    a, b = VB[x] + 4 * (2 * jp + 1) + w, VB[x] + 4 * (2 * jp) + w
                    e(f"  v_perm_b32 v{VT+4*(2*w)+jp}, v{a}, v{b}, s{sSelLo}")
                    e(f"  v_perm_b32 v{VT+4*(2*w+1)+jp}, v{a}, v{b}, s{sSelHi}")
        loadV(x)
        if not loadonly:
            for ee in range(8):
                e(f"  v_mfma_f32_16x16x32_bf16 {vr(O+4*ee,4)}, {vr(VT+4*ee,4)}, {vr(P,4)}, {vr(O+4*ee,4)}")
        e(f"  s_add_u32 s{sT}, s{sT}, 1")
        e(f"  s_cmp_lt_u32 s{sT}, s{sNT}")
        if x == 0:
            e("  s_cbranch_scc0 L_exit")
        else:
            e("  s_cbranch_scc1 L_loop0")
    e("L_exit:")
    if stamp:
        e("  s_memrealtime s[78:79]")
    e(f"  v_mov_b32 v{t1}, v{vL}")
    e("  s_nop 1")
    e(f"  v_permlane32_swap_b32 v{vL}, v{t1}")
    e("  s_nop 1")
    e(f"  v_add_f32 v{vL}, v{vL}, v{t1}")
    e(f"  v_mov_b32 v{t1}, v{vL}")
    e("  s_nop 1")
    e(f"  v_permlane16_swap_b32 v{vL}, v{t1}")
    e("  s_nop 1")
    e(f"  v_add_f32 v{vL}, v{vL}, v{t1}")
    e(f"  v_and_b32 v{tA}, 15, v0")
    e(f"  v_lshrrev_b32 v{tB}, 4, v0")
    e(f"  s_mul_i32 s{sTmp}, s{sW}, {PART}")
    e(f"  v_mul_u32_u24 v{t0}, {ROWB}, v{tA}")
    e(f"  v_lshl_add_u32 v{t0}, v{tB}, 7, v{t0}")
    e(f"  v_add_u32 v{t0}, s{sTmp}, v{t0}")
    e(f"  s_lshl_b32 s{sTmp}, s{sW}, 3")
    e(f"  s_add_u32 s{sTmp}, s{sTmp}, {STATS}")
    e(f"  v_mul_u32_u24 v{t1}, {NW*8}, v{tA}")
    e(f"  v_add_u32 v{t1}, s{sTmp}, v{t1}")
    e(f"  ds_write_b64 v{t1}, {vr(vMC,2)}")
    for ee in range(8):
        e(f"  ds_write_b128 v{t0}, {vr(O+4*ee,4)} offset:{PBASE+16*ee}")
    e("  s_waitcnt vmcnt(0) lgkmcnt(0)")
    e("  s_barrier")
    CH = 512 // (64 * NW)
    ST = KB[0]
    PB = KB[0] + 2 * NW
    PB = (PB + 3) & ~3
    for ch in range(CH):
        e(f"  s_mul_i32 s{sTmp}, s{sW}, {CH}")
        e(f"  s_add_u32 s{sTmp}, s{sTmp}, {ch}")
        e(f"  s_lshl_b32 s{sTmp}, s{sTmp}, 1")
        e(f"  v_lshrrev_b32 v{tA}, 5, v0")
        e(f"  v_add_u32 v{tA}, s{sTmp}, v{tA}")
        e(f"  v_and_b32 v{tB}, 31, v0")
        e(f"  v_mul_u32_u24 v{t0}, {ROWB}, v{tA}")
        e(f"  v_lshl_add_u32 v{t0}, v{tB}, 4, v{t0}")
        e(f"  v_mul_u32_u24 v{t1}, {NW*8}, v{tA}")
        for u in range(NW // 2):
            e(f"  ds_read_b128 {vr(ST+4*u,4)}, v{t1} offset:{STATS+16*u}")
        for u in range(NW):
            e(f"  ds_read_b128 {vr(PB+4*u,4)}, v{t0} offset:{PBASE+u*PART}")
        e(f"  v_lshrrev_b32 v{tC}, 3, v{tB}")
        e(f"  v_and_b32 v{tB}, 7, v{tB}")
        e(f"  v_lshlrev_b32 v{tA}, 8, v{tA}")
        e(f"  v_lshl_add_u32 v{tA}, v{tC}, 6, v{tA}")
        e(f"  v_lshl_add_u32 v{tA}, v{tB}, 1, v{tA}")
        e(f"  s_waitcnt lgkmcnt({NW})")
        e(f"  v_max_f32 v{t0}, v{ST}, v{ST+2}")
        for u in range(2, NW):
            e(f"  v_max_f32 v{t0}, v{t0}, v{ST+2*u}")
        for u in range(NW):
            e(f"  v_sub_f32 v{ST+2*u}, v{ST+2*u}, v{t0}")
        for u in range(NW):
            e(f"  v_exp_f32 v{ST+2*u}, v{ST+2*u}")
        e("  s_nop 0")
        e(f"  v_mul_f32 v{t1}, v{ST}, v{ST+1}")
        for u in range(1, NW):
            e(f"  v_fmac_f32 v{t1}, v{ST+2*u}, v{ST+2*u+1}")
        e(f"  v_rcp_f32 v{t1}, v{t1}")
        e("  s_waitcnt lgkmcnt(0)")
        for i in range(4):
            e(f"  v_mul_f32 v{S+i}, v{ST}, v{PB+i}")
        for u in range(1, NW):
            for i in range(4):
                e(f"  v_fmac_f32 v{S+i}, v{ST+2*u}, v{PB+4*u+i}")
        for i in range(4):
            e(f"  v_mul_f32 v{S+i}, v{S+i}, v{t1}")
        e(f"  v_cvt_pk_bf16_f32 v{P}, v{S}, v{S+1}")
        e(f"  v_cvt_pk_bf16_f32 v{P+1}, v{S+2}, v{S+3}")
        e(f"  buffer_store_short v{P}, v{tA}, {sr(sO,4)}, s{sQB} offen")
        e(f"  buffer_store_short_d16_hi v{P}, v{tA}, {sr(sO,4)}, s{sQB} offen offset:16")
        e(f"  buffer_store_short v{P+1}, v{tA}, {sr(sO,4)}, s{sQB} offen offset:32")
        e(f"  buffer_store_short_d16_hi v{P+1}, v{tA}, {sr(sO,4)}, s{sQB} offen offset:48")
        if ch + 1 < CH:
            e("  s_nop 1")
    if stamp:
        e("  s_waitcnt vmcnt(0)")
        e("  s_memrealtime s[80:81]")
        e("  s_waitcnt lgkmcnt(0)")
        e(f"  s_lshl_b32 s{sTmp}, s2, {logNW}")
        e(f"  s_add_u32 s{sTmp}, s{sTmp}, s{sW}")
        e(f"  s_lshl_b32 s{sTmp}, s{sTmp}, 5")
        e(f"  v_mov_b32 v{t0}, s{sTmp}")
        for i in range(6):
            e(f"  v_mov_b32 v{S+i}, s{70+2*i}")
        e("  s_getreg_b32 s82, hwreg(HW_REG_XCC_ID)")
        e(f"  v_mov_b32 v{S+6}, s82")
        e(f"  v_mov_b32 v{S+7}, s{sNT}")
        e("  v_cmp_eq_u32 vcc, 0, v0")
        e("  s_and_saveexec_b64 s[88:89], vcc")
        e(f"  global_store_dwordx4 v{t0}, {vr(S,4)}, s[86:87]")
        e(f"  global_store_dwordx4 v{t0}, {vr(S+4,4)}, s[86:87] offset:16")
        e(f"  v_mov_b32 v{t0}, 0")
        e(f"  v_not_b32 v{t1}, v{S}")
        e(f"  global_atomic_umax v{t0}, v{t1}, s[84:85]")
        e(f"  global_atomic_umax v{t0}, v{S+5}, s[84:85] offset:4")
        e(f"  v_not_b32 v{t1}, v{S+3}")
        e(f"  global_atomic_umax v{t0}, v{t1}, s[84:85] offset:8")
        e(f"  global_atomic_umax v{t0}, v{S+3}, s[84:85] offset:12")
        e(f"  global_atomic_umax v{t0}, v{S}, s[84:85] offset:16")
        e(f"  global_atomic_umax v{t0}, v{S+1}, s[84:85] offset:20")
        e(f"  global_atomic_umax v{t0}, v{S+2}, s[84:85] offset:24")
        e(f"  global_atomic_umax v{t0}, v{S+4}, s[84:85] offset:28")
        e(f"  v_not_b32 v{t1}, v{S+4}")
        e(f"  global_atomic_umax v{t0}, v{t1}, s[84:85] offset:32")
        e("  s_waitcnt vmcnt(0)")
    e("L_end:")
    e("  s_endpgm")
    e('.section .rodata,"a"')
    e(".p2align 6")
    e(f".amdhsa_kernel {NAME}")
    e(f"  .amdhsa_next_free_vgpr {NV}")
    e("  .amdhsa_next_free_sgpr 96")
    e(f"  .amdhsa_accum_offset {(NV+3)//4*4}")
    e("  .amdhsa_group_segment_fixed_size 0")
    e("  .amdhsa_kernarg_size 64")
    e("  .amdhsa_user_sgpr_count 2")
    e("  .amdhsa_user_sgpr_kernarg_segment_ptr 1")
    e("  .amdhsa_system_sgpr_workgroup_id_x 1")
    e(".end_amdhsa_kernel")
    return "\n".join(L) + "\n"


if __name__ == "__main__":
    import argparse
    ap = argparse.ArgumentParser()
    ap.add_argument("-o", required=True)
    ap.add_argument("--nw", type=int, default=8)
    ap.add_argument("--kfl", default="nt")
    ap.add_argument("--vfl", default="nt")
    ap.add_argument("--loadonly", action="store_true")
    ap.add_argument("--mapping", default="h_low")
    ap.add_argument("--stamp", action="store_true")
    a = ap.parse_args()
    open(a.o, "w").write(gen(NW=a.nw, kfl=a.kfl, vfl=a.vfl, loadonly=a.loadonly, mapping=a.mapping, stamp=a.stamp))
```

```python
import sys, struct, math

NAME = "standalone__paged_block_table_kv_pagedattention__sampling_kernel"
HEADER = open("standalone__paged_block_table_kv_pagedattention__sampling.s.ref").read().split("; Override launch")[0]

KV_BYTES = 4100 * 16 * 8 * 128 * 2
OOB = 0x10000000


def f32bits(x):
    return struct.unpack("<I", struct.pack("<f", x))[0]


def gen(NW=8, kfl="nt", vfl="nt", loadonly=False, mapping="h_low", stamp=False):
    L = []
    e = L.append
    logNW = int(math.log2(NW))
    KFL = (" " + kfl.replace("+", " ")) if kfl else ""
    VFL = (" " + vfl.replace("+", " ")) if vfl else ""
    vKoff, vV0, vV1, vBT, v4r, vMC, vL = 1, 2, 3, 4, 5, 6, 7
    t0, t1, vAl, vMCn = 8, 9, 10, 12
    tA, tB, tC = 13, 14, 15
    Q = 16
    O = 32
    S = 64
    P = 72
    VT = 76
    KB = [108, 140]
    VB = [172, 204]
    NV = 236
    sK, sV, sBT, sQ, sO = 16, 20, 24, 28, 32
    sB, sH, sW, sCL, sNB, sNT, sT, sIdx, sO0, sO1, sRem, sC, sSelLo, sSelHi, sTmp, sNeg = range(36, 52)
    sM = 52
    ROWB = 528
    PART = 16 * ROWB
    STATS = 0
    PBASE = 16 * NW * 8
    LDS = PBASE + NW * PART

    def srd(r, lo, nbytes):
        e(f"  s_mov_b32 s{r}, s{lo}")
        e(f"  s_mov_b32 s{r+1}, s{lo+1}")
        e(f"  s_mov_b32 s{r+2}, {nbytes}")
        e(f"  s_mov_b32 s{r+3}, 0x00020000")

    def vr(a, n):
        return f"v[{a}:{a+n-1}]"

    def sr(a, n):
        return f"s[{a}:{a+n-1}]"

    def loadK(x):
        for T in range(2):
            for kk in range(4):
                e(f"  buffer_load_dwordx4 {vr(KB[x]+16*T+4*kk,4)}, v{vKoff}, {sr(sK,4)}, s{sO0+T} offen offset:{kk*64}{KFL}")

    def loadV(x):
        for j in range(8):
            T, i = j >> 2, j & 3
            e(f"  buffer_load_dwordx4 {vr(VB[x]+4*j,4)}, v{vV0 + (i>>1)}, {sr(sV,4)}, s{sO0+T} offen offset:{(i&1)*2048}{VFL}")

    def next_offsets():
        e(f"  v_readlane_b32 s{sO0}, v{vBT}, s{sIdx}")
        e(f"  s_add_u32 s{sIdx}, s{sIdx}, 1")
        e(f"  v_readlane_b32 s{sO1}, v{vBT}, s{sIdx}")
        e(f"  s_add_u32 s{sIdx}, s{sIdx}, 1")

    e(HEADER.rstrip("\n"))
    e(f"; @launch grid=(256,1,1) block=({64*NW},1,1) lds={LDS}")
    e('.amdgcn_target "amdgcn-amd-amdhsa--gfx950"')
    e(".text")
    e(f".globl {NAME}")
    e(".p2align 8")
    e(f".type {NAME},@function")
    e(f"{NAME}:")
    e("  s_cmp_ge_u32 s2, 256")
    e("  s_cbranch_scc1 L_end")
    if stamp:
        e("  s_memrealtime s[70:71]")
    e("  s_load_dwordx8 s[4:11], s[0:1], 0")
    e("  s_load_dwordx4 s[12:15], s[0:1], 32")
    e(f"  v_lshrrev_b32 v{t0}, 6, v0")
    e(f"  v_and_b32 v0, 63, v0")
    e(f"  v_readfirstlane_b32 s{sW}, v{t0}")
    if mapping == "h_low":
        e(f"  s_lshr_b32 s{sB}, s2, 3")
        e(f"  s_and_b32 s{sH}, s2, 7")
    else:
        e(f"  s_lshr_b32 s{sH}, s2, 5")
        e(f"  s_and_b32 s{sB}, s2, 31")
    e(f"  v_and_b32 v{tA}, 15, v0")
    e(f"  v_lshrrev_b32 v{tB}, 4, v0")
    e(f"  s_lshl_b32 s{sTmp}, s{sH}, 8")
    e(f"  v_lshrrev_b32 v{t0}, 1, v0")
    e(f"  v_lshlrev_b32 v{t0}, {logNW+1}, v{t0}")
    e(f"  v_and_b32 v{t1}, 1, v0")
    e(f"  s_lshl_b32 s{sIdx}, s{sW}, 1")
    e(f"  v_add3_u32 v{tC}, v{t0}, v{t1}, s{sIdx}")
    e(f"  s_lshl_b32 s{sNB}, s{sB}, 9")
    e(f"  v_lshl_add_u32 v{t0}, v{tC}, 2, s{sNB}")
    e(f"  v_lshlrev_b32 v{vKoff}, 11, v{tA}")
    e(f"  v_lshl_add_u32 v{vKoff}, v{tB}, 4, v{vKoff}")
    e(f"  v_add_u32 v{vKoff}, s{sTmp}, v{vKoff}")
    e(f"  v_lshlrev_b32 v{vV0}, 13, v{tB}")
    e(f"  v_lshl_add_u32 v{vV0}, v{tA}, 4, v{vV0}")
    e(f"  v_add_u32 v{vV0}, s{sTmp}, v{vV0}")
    e(f"  v_add_u32 v{vV1}, 0x1000, v{vV0}")
    e(f"  v_lshlrev_b32 v{v4r}, 2, v{tB}")
    e(f"  s_lshl_b32 s{sNT}, s{sB}, 3")
    e(f"  s_add_u32 s{sNT}, s{sNT}, s{sH}")
    e(f"  s_lshl_b32 s{sT}, s{sNT}, 12")
    e(f"  v_lshlrev_b32 v{t1}, 8, v{tA}")
    e(f"  v_lshl_add_u32 v{t1}, v{tB}, 4, v{t1}")
    e(f"  s_lshl_b32 s{sRem}, s{sB}, 2")
    e(f"  s_mov_b32 s{sC}, {hex(f32bits(128 ** -0.5 * math.log2(math.e)))}")
    e(f"  s_mov_b32 s{sSelLo}, 0x05040100")
    e(f"  s_mov_b32 s{sSelHi}, 0x07060302")
    e(f"  s_mov_b32 s{sNeg}, {hex(f32bits(-1e9 / (128 ** -0.5)))}")
    e("  s_waitcnt lgkmcnt(0)")
    if stamp:
        e("  s_memrealtime s[72:73]")
        e("  s_load_dwordx4 s[84:87], s[0:1], 48")
    e(f"  s_load_dword s{sCL}, s[12:13], s{sRem}")
    srd(sBT, 10, 32 * 128 * 4)
    e(f"  buffer_load_dword v{vBT}, v{t0}, {sr(sBT,4)}, 0 offen")
    srd(sQ, 4, 32 * 32 * 4 * 128 * 2)
    for kk in range(4):
        e(f"  buffer_load_dwordx4 {vr(Q+4*kk,4)}, v{t1}, {sr(sQ,4)}, s{sT} offen offset:{kk*64}")
    srd(sK, 6, KV_BYTES)
    srd(sV, 8, KV_BYTES)
    srd(sO, 14, 32 * 32 * 4 * 128 * 2)
    e(f"  s_mov_b32 s{sO+3+29}, s{sT}")
    L.pop()
    sQB = 68
    e(f"  s_mov_b32 s{sQB}, s{sT}")
    for i in range(32):
        e(f"  v_mov_b32 v{O+i}, 0")
    e(f"  v_mov_b32 v{vMC}, 0xff7fffff")
    e(f"  v_mov_b32 v{vL}, 0")
    e("  s_waitcnt lgkmcnt(0)")
    e(f"  s_max_i32 s{sCL}, s{sCL}, 0")
    e(f"  s_cmp_gt_i32 s{sCL}, 0")
    e(f"  s_cselect_b32 s{sNB}, s{sCL}, 2048")
    e(f"  s_min_u32 s{sNB}, s{sNB}, 2048")
    e(f"  s_add_u32 s{sNB}, s{sNB}, 15")
    e(f"  s_lshr_b32 s{sNB}, s{sNB}, 4")
    e(f"  s_add_u32 s{sNT}, s{sNB}, 1")
    e(f"  s_lshr_b32 s{sNT}, s{sNT}, 1")
    e(f"  s_add_u32 s{sNT}, s{sNT}, {NW-1}")
    e(f"  s_sub_u32 s{sNT}, s{sNT}, s{sW}")
    e(f"  s_lshr_b32 s{sNT}, s{sNT}, {logNW}")
    e(f"  s_lshl_b32 s{sTmp}, s{sW}, 5")
    e(f"  s_sub_i32 s{sRem}, s{sCL}, s{sTmp}")
    e(f"  v_cmp_gt_u32 vcc, s{sNB}, v{tC}")
    e(f"  v_mov_b32 v{t0}, {hex(OOB)}")
    e("  s_waitcnt vmcnt(4)")
    if stamp:
        e("  s_memrealtime s[74:75]")
    e(f"  v_lshlrev_b32 v{vBT}, 15, v{vBT}")
    e(f"  v_cndmask_b32 v{vBT}, v{t0}, v{vBT}, vcc")
    e(f"  s_mov_b32 s{sIdx}, 0")
    e(f"  s_mov_b32 s{sT}, 0")
    for x in range(2):
        next_offsets()
        e("  s_nop 3")
        loadK(x)
        loadV(x)
    if stamp:
        e("  s_waitcnt vmcnt(24)")
        e("  s_memrealtime s[76:77]")
    e(f"  s_cmp_eq_u32 s{sNT}, 0")
    e("  s_cbranch_scc1 L_exit")

    for x in range(2):
        e(f"L_loop{x}:")
        next_offsets()
        e("  s_waitcnt vmcnt(24)")
        if not loadonly:
            for kk in range(4):
                for T in range(2):
                    c = "0" if kk == 0 else vr(S + 4 * T, 4)
                    e(f"  v_mfma_f32_16x16x32_bf16 {vr(S+4*T,4)}, {vr(KB[x]+16*T+4*kk,4)}, {vr(Q+4*kk,4)}, {c}")
        else:
            e("  s_nop 4")
        loadK(x)
        if not loadonly:
            e(f"  s_cmp_ge_i32 s{sRem}, 32")
            e(f"  s_cbranch_scc1 L_nomask{x}")
            e(f"  v_sub_u32 v{t0}, s{sRem}, v{v4r}")
            e(f"  v_mov_b32 v{t1}, s{sNeg}")
            for j in range(8):
                off = 16 * (j >> 2) + (j & 3)
                e(f"  v_cmp_lt_i32 {sr(sM+2*j,2)}, {off}, v{t0}")
            e("  s_nop 1")
            for j in range(8):
                e(f"  v_cndmask_b32 v{S+j}, v{t1}, v{S+j}, {sr(sM+2*j,2)}")
            e(f"L_nomask{x}:")
            e(f"  s_sub_i32 s{sRem}, s{sRem}, {32*NW}")
            e(f"  v_max3_f32 v{t0}, v{S}, v{S+1}, v{S+2}")
            e(f"  v_max3_f32 v{t1}, v{S+3}, v{S+4}, v{S+5}")
            e(f"  v_max3_f32 v{t0}, v{t0}, v{S+6}, v{S+7}")
            e(f"  v_max_f32 v{t0}, v{t0}, v{t1}")
            e(f"  v_mov_b32 v{t1}, v{t0}")
            e("  s_nop 1")
            e(f"  v_permlane32_swap_b32 v{t0}, v{t1}")
            e("  s_nop 1")
            e(f"  v_max_f32 v{t0}, v{t0}, v{t1}")
            e(f"  v_mov_b32 v{t1}, v{t0}")
            e("  s_nop 1")
            e(f"  v_permlane16_swap_b32 v{t0}, v{t1}")
            e("  s_nop 1")
            e(f"  v_max_f32 v{t0}, v{t0}, v{t1}")
            e(f"  v_mul_f32 v{t0}, s{sC}, v{t0}")
            e(f"  v_max_f32 v{vMCn}, v{t0}, v{vMC}")
            e(f"  v_sub_f32 v{t1}, v{vMC}, v{vMCn}")
            e(f"  v_exp_f32 v{vAl}, v{t1}")
            e(f"  v_mov_b32 v{vMC}, v{vMCn}")
            for j in range(8):
                e(f"  v_fma_f32 v{S+j}, v{S+j}, s{sC}, -v{vMCn}")
            for j in range(8):
                e(f"  v_exp_f32 v{S+j}, v{S+j}")
            for i in range(16):
                e(f"  v_pk_mul_f32 {vr(O+2*i,2)}, {vr(O+2*i,2)}, {vr(vAl,2)} op_sel_hi:[1,0]")
            e(f"  v_mul_f32 v{vL}, v{vL}, v{vAl}")
            e(f"  v_add_f32 v{t0}, v{S}, v{S+1}")
            e(f"  v_add_f32 v{t1}, v{S+2}, v{S+3}")
            e(f"  v_add_f32 v{tA}, v{S+4}, v{S+5}")
            e(f"  v_add_f32 v{tB}, v{S+6}, v{S+7}")
            for jp in range(4):
                e(f"  v_cvt_pk_bf16_f32 v{P+jp}, v{S+2*jp}, v{S+2*jp+1}")
            e(f"  v_add_f32 v{t0}, v{t0}, v{t1}")
            e(f"  v_add_f32 v{tA}, v{tA}, v{tB}")
            e(f"  v_add_f32 v{vL}, v{vL}, v{t0}")
            e(f"  v_add_f32 v{vL}, v{vL}, v{tA}")
        e("  s_waitcnt vmcnt(24)")
        if not loadonly:
            for w in range(4):
                for jp in range(4):
                    a, b = VB[x] + 4 * (2 * jp + 1) + w, VB[x] + 4 * (2 * jp) + w
                    e(f"  v_perm_b32 v{VT+4*(2*w)+jp}, v{a}, v{b}, s{sSelLo}")
                    e(f"  v_perm_b32 v{VT+4*(2*w+1)+jp}, v{a}, v{b}, s{sSelHi}")
        loadV(x)
        if not loadonly:
            for ee in range(8):
                e(f"  v_mfma_f32_16x16x32_bf16 {vr(O+4*ee,4)}, {vr(VT+4*ee,4)}, {vr(P,4)}, {vr(O+4*ee,4)}")
        e(f"  s_add_u32 s{sT}, s{sT}, 1")
        e(f"  s_cmp_lt_u32 s{sT}, s{sNT}")
        if x == 0:
            e("  s_cbranch_scc0 L_exit")
        else:
            e("  s_cbranch_scc1 L_loop0")
    e("L_exit:")
    if stamp:
        e("  s_memrealtime s[78:79]")
    e(f"  v_mov_b32 v{t1}, v{vL}")
    e("  s_nop 1")
    e(f"  v_permlane32_swap_b32 v{vL}, v{t1}")
    e("  s_nop 1")
    e(f"  v_add_f32 v{vL}, v{vL}, v{t1}")
    e(f"  v_mov_b32 v{t1}, v{vL}")
    e("  s_nop 1")
    e(f"  v_permlane16_swap_b32 v{vL}, v{t1}")
    e("  s_nop 1")
    e(f"  v_add_f32 v{vL}, v{vL}, v{t1}")
    e(f"  v_and_b32 v{tA}, 15, v0")
    e(f"  v_lshrrev_b32 v{tB}, 4, v0")
    e(f"  s_mul_i32 s{sTmp}, s{sW}, {PART}")
    e(f"  v_mul_u32_u24 v{t0}, {ROWB}, v{tA}")
    e(f"  v_lshl_add_u32 v{t0}, v{tB}, 7, v{t0}")
    e(f"  v_add_u32 v{t0}, s{sTmp}, v{t0}")
    e(f"  s_lshl_b32 s{sTmp}, s{sW}, 3")
    e(f"  s_add_u32 s{sTmp}, s{sTmp}, {STATS}")
    e(f"  v_mul_u32_u24 v{t1}, {NW*8}, v{tA}")
    e(f"  v_add_u32 v{t1}, s{sTmp}, v{t1}")
    e(f"  ds_write_b64 v{t1}, {vr(vMC,2)}")
    for ee in range(8):
        e(f"  ds_write_b128 v{t0}, {vr(O+4*ee,4)} offset:{PBASE+16*ee}")
    e("  s_waitcnt vmcnt(0) lgkmcnt(0)")
    e("  s_barrier")
    CH = 512 // (64 * NW)
    ST = KB[0]
    PB = KB[0] + 2 * NW
    PB = (PB + 3) & ~3
    for ch in range(CH):
        e(f"  s_mul_i32 s{sTmp}, s{sW}, {CH}")
        e(f"  s_add_u32 s{sTmp}, s{sTmp}, {ch}")
        e(f"  s_lshl_b32 s{sTmp}, s{sTmp}, 1")
        e(f"  v_lshrrev_b32 v{tA}, 5, v0")
        e(f"  v_add_u32 v{tA}, s{sTmp}, v{tA}")
        e(f"  v_and_b32 v{tB}, 31, v0")
        e(f"  v_mul_u32_u24 v{t0}, {ROWB}, v{tA}")
        e(f"  v_lshl_add_u32 v{t0}, v{tB}, 4, v{t0}")
        e(f"  v_mul_u32_u24 v{t1}, {NW*8}, v{tA}")
        for u in range(NW // 2):
            e(f"  ds_read_b128 {vr(ST+4*u,4)}, v{t1} offset:{STATS+16*u}")
        for u in range(NW):
            e(f"  ds_read_b128 {vr(PB+4*u,4)}, v{t0} offset:{PBASE+u*PART}")
        e(f"  v_lshrrev_b32 v{tC}, 3, v{tB}")
        e(f"  v_and_b32 v{tB}, 7, v{tB}")
        e(f"  v_lshlrev_b32 v{tA}, 8, v{tA}")
        e(f"  v_lshl_add_u32 v{tA}, v{tC}, 6, v{tA}")
        e(f"  v_lshl_add_u32 v{tA}, v{tB}, 1, v{tA}")
        e(f"  s_waitcnt lgkmcnt({NW})")
        e(f"  v_max_f32 v{t0}, v{ST}, v{ST+2}")
        for u in range(2, NW):
            e(f"  v_max_f32 v{t0}, v{t0}, v{ST+2*u}")
        for u in range(NW):
            e(f"  v_sub_f32 v{ST+2*u}, v{ST+2*u}, v{t0}")
        for u in range(NW):
            e(f"  v_exp_f32 v{ST+2*u}, v{ST+2*u}")
        e("  s_nop 0")
        e(f"  v_mul_f32 v{t1}, v{ST}, v{ST+1}")
        for u in range(1, NW):
            e(f"  v_fmac_f32 v{t1}, v{ST+2*u}, v{ST+2*u+1}")
        e(f"  v_rcp_f32 v{t1}, v{t1}")
        e("  s_waitcnt lgkmcnt(0)")
        for i in range(4):
            e(f"  v_mul_f32 v{S+i}, v{ST}, v{PB+i}")
        for u in range(1, NW):
            for i in range(4):
                e(f"  v_fmac_f32 v{S+i}, v{ST+2*u}, v{PB+4*u+i}")
        for i in range(4):
            e(f"  v_mul_f32 v{S+i}, v{S+i}, v{t1}")
        e(f"  v_cvt_pk_bf16_f32 v{P}, v{S}, v{S+1}")
        e(f"  v_cvt_pk_bf16_f32 v{P+1}, v{S+2}, v{S+3}")
        e(f"  buffer_store_short v{P}, v{tA}, {sr(sO,4)}, s{sQB} offen")
        e(f"  buffer_store_short_d16_hi v{P}, v{tA}, {sr(sO,4)}, s{sQB} offen offset:16")
        e(f"  buffer_store_short v{P+1}, v{tA}, {sr(sO,4)}, s{sQB} offen offset:32")
        e(f"  buffer_store_short_d16_hi v{P+1}, v{tA}, {sr(sO,4)}, s{sQB} offen offset:48")
        if ch + 1 < CH:
            e("  s_nop 1")
    if stamp:
        e("  s_waitcnt vmcnt(0)")
        e("  s_memrealtime s[80:81]")
        e("  s_waitcnt lgkmcnt(0)")
        e(f"  s_lshl_b32 s{sTmp}, s2, {logNW}")
        e(f"  s_add_u32 s{sTmp}, s{sTmp}, s{sW}")
        e(f"  s_lshl_b32 s{sTmp}, s{sTmp}, 5")
        e(f"  v_mov_b32 v{t0}, s{sTmp}")
        for i in range(6):
            e(f"  v_mov_b32 v{S+i}, s{70+2*i}")
        e("  s_getreg_b32 s82, hwreg(HW_REG_XCC_ID)")
        e(f"  v_mov_b32 v{S+6}, s82")
        e(f"  v_mov_b32 v{S+7}, s{sNT}")
        e("  v_cmp_eq_u32 vcc, 0, v0")
        e("  s_and_saveexec_b64 s[88:89], vcc")
        e(f"  global_store_dwordx4 v{t0}, {vr(S,4)}, s[86:87]")
        e(f"  global_store_dwordx4 v{t0}, {vr(S+4,4)}, s[86:87] offset:16")
        e(f"  s_cmp_lg_u32 s{sW}, 0")
        e("  s_cbranch_scc1 L_end")
        e(f"  v_mov_b32 v{t0}, 0")
        e(f"  v_not_b32 v{t1}, v{S}")
        e(f"  global_atomic_umax v{t0}, v{t1}, s[84:85]")
        e(f"  global_atomic_umax v{t0}, v{S+5}, s[84:85] offset:4")
        e(f"  global_atomic_umax v{t0}, v{S+2}, s[84:85] offset:128")
        e(f"  global_atomic_umax v{t0}, v{S+3}, s[84:85] offset:132")
        e(f"  s_cmp_lg_u32 s2, 147")
        e("  s_cbranch_scc1 L_end")
        e(f"  global_store_dwordx4 v{t0}, {vr(S,4)}, s[84:85] offset:16")
        e(f"  global_store_dwordx4 v{t0}, {vr(S+4,4)}, s[84:85] offset:32")
        e("  s_waitcnt vmcnt(0)")
    e("L_end:")
    e("  s_endpgm")
    e('.section .rodata,"a"')
    e(".p2align 6")
    e(f".amdhsa_kernel {NAME}")
    e(f"  .amdhsa_next_free_vgpr {NV}")
    e("  .amdhsa_next_free_sgpr 96")
    e(f"  .amdhsa_accum_offset {(NV+3)//4*4}")
    e("  .amdhsa_group_segment_fixed_size 0")
    e("  .amdhsa_kernarg_size 64")
    e("  .amdhsa_user_sgpr_count 2")
    e("  .amdhsa_user_sgpr_kernarg_segment_ptr 1")
    e("  .amdhsa_system_sgpr_workgroup_id_x 1")
    e(".end_amdhsa_kernel")
    return "\n".join(L) + "\n"


if __name__ == "__main__":
    import argparse
    ap = argparse.ArgumentParser()
    ap.add_argument("-o", required=True)
    ap.add_argument("--nw", type=int, default=8)
    ap.add_argument("--kfl", default="nt")
    ap.add_argument("--vfl", default="nt")
    ap.add_argument("--loadonly", action="store_true")
    ap.add_argument("--mapping", default="h_low")
    ap.add_argument("--stamp", action="store_true")
    a = ap.parse_args()
    open(a.o, "w").write(gen(NW=a.nw, kfl=a.kfl, vfl=a.vfl, loadonly=a.loadonly, mapping=a.mapping, stamp=a.stamp))
```

```python
import sys, struct, math, argparse

NAME = "standalone__paged_block_table_kv_pagedattention__sampling_kernel"
HEADER = open("standalone__paged_block_table_kv_pagedattention__sampling.s.ref").read().split("; Override launch")[0]

KV_BYTES = 4100 * 16 * 8 * 128 * 2
Q_BYTES = 32 * 32 * 4 * 128 * 2
OOB = 0x10000000
SLOTB = 9216


def f32bits(x):
    return struct.unpack("<I", struct.pack("<f", x))[0]


def gen(NS=3, kfl="nt", vfl="nt", stamp=False, hx=1, sleep=8, nopair=False, nohand=False, level=4, sfl='sc1', lfl='sc1'):
    L = []
    e = L.append
    NWT = max(NS + 1, 4)
    NP = NS + 1
    KFL = (" " + kfl.replace("+", " ")) if kfl else ""
    VFL = (" " + vfl.replace("+", " ")) if vfl else ""
    vKo, vKr, vV0, vV1, vBT, v4r = 1, 5, 9, 10, 11, 12
    vMC, vL, vAl, vMCn = 20, 21, 22, 24
    t0, t1, tA, tB, tC, tD = 25, 26, 27, 28, 29, 30
    Q, O, S, P, KT, VT, VB = 32, 48, 80, 88, 92, 124, 156
    NV = 72 + 32 * NS if 72 + 32 * NS > 188 else 188
    sK, sV, sBT, sQ, sO, sWS = 16, 20, 24, 28, 32, 36
    (sB, sH, sW, sCL, sNB, sLeft, sIdx, sO0, sO1, sRem, sC, sSelLo, sSelHi, sTmp, sNeg, sKB,
     sN2, sRem2, sOB, sPh, sX, sA1, sT2, sT3, sT4, sT5, sB2, sH2, sA2, sNB2, sX2, sCL2) = range(40, 72)
    sM = 72
    sDBG = 88
    sST = 92
    sNON = 98
    vNON = 14
    sRET = 98
    KSLOT = 8192
    FB = NS * KSLOT
    FPART = 9216
    FST = FB + NS * FPART
    GB = FST + 16 * 4 * 8
    ROWB = 528
    GPART = 16 * ROWB
    GST = GB + NP * GPART
    LST = GST + 16 * 8 * 8
    Q2 = LST + NS * 256
    REC = Q2 + 4096
    FLG = REC + 16
    LDS = FLG + 16
    assert LDS <= 160 * 1024, LDS

    def vr(a, n):
        return f"v[{a}:{a+n-1}]"

    def sr(a, n):
        return f"s[{a}:{a+n-1}]"

    def srd(r, lo, nbytes):
        e(f"  s_mov_b32 s{r}, s{lo}")
        e(f"  s_mov_b32 s{r+1}, s{lo+1}")
        e(f"  s_mov_b32 s{r+2}, {nbytes}")
        e(f"  s_mov_b32 s{r+3}, 0x00020000")

    def st(i):
        if stamp:
            e(f"  s_memrealtime s[100:101]")
            e(f"  s_waitcnt lgkmcnt(0)")
            e(f"  s_mov_b32 s{sST+i}, s100")

    def divNS(d):
        if NS == 3:
            e(f"  s_mul_i32 s{d}, s{d}, 43691")
            e(f"  s_lshr_b32 s{d}, s{d}, 17")
        else:
            e(f"  s_lshr_b32 s{d}, s{d}, {int(math.log2(NS))}")

    def modNS_sub(d, w, a, tmp):
        if NS == 3:
            e(f"  s_mul_i32 s{tmp}, s{a}, 43691")
            e(f"  s_lshr_b32 s{tmp}, s{tmp}, 17")
            e(f"  s_mul_i32 s{tmp}, s{tmp}, 3")
            e(f"  s_sub_u32 s{tmp}, s{a}, s{tmp}")
            e(f"  s_sub_i32 s{d}, {w}, s{tmp}")
            e(f"  s_add_u32 s{tmp}, s{d}, 3")
            e(f"  s_cmp_lt_i32 s{d}, 0")
            e(f"  s_cselect_b32 s{d}, s{tmp}, s{d}")
        else:
            e(f"  s_sub_u32 s{d}, {w}, s{a}")
            e(f"  s_and_b32 s{d}, s{d}, {NS-1}")

    def loadKV():
        for T in range(2):
            e(f"  s_add_u32 m0, s{sKB}, {T*4096}")
            e(f"  s_nop 0")
            for i in range(4):
                e(f"  buffer_load_dwordx4 v{vKo+i}, {sr(sK,4)}, s{sO0+T} offen offset:{i*1024}{KFL} lds")
        for j in range(8):
            T, i = j >> 2, j & 3
            e(f"  buffer_load_dwordx4 {vr(VB+4*j,4)}, v{vV0 + (i>>1)}, {sr(sV,4)}, s{sO0+T} offen offset:{(i&1)*2048}{VFL}")

    def next_offsets():
        e(f"  v_readlane_b32 s{sO0}, v{vBT}, s{sIdx}")
        e(f"  s_add_u32 s{sIdx}, s{sIdx}, 1")
        e(f"  v_readlane_b32 s{sO1}, v{vBT}, s{sIdx}")
        e(f"  s_add_u32 s{sIdx}, s{sIdx}, 1")

    def reduce_l():
        for sw in ("32", "16"):
            e(f"  v_mov_b32 v{t1}, v{vL}")
            e("  s_nop 1")
            e(f"  v_permlane{sw}_swap_b32 v{vL}, v{t1}")
            e("  s_nop 1")
            e(f"  v_add_f32 v{vL}, v{vL}, v{t1}")

    def init_state():
        for i in range(32):
            e(f"  v_mov_b32 v{O+i}, 0")
        e(f"  v_mov_b32 v{vMC}, 0xff7fffff")
        e(f"  v_mov_b32 v{vL}, 0")

    def split_point(dst, n):
        if nopair:
            e(f"  s_add_u32 s{dst}, s{n}, 31")
            e(f"  s_lshr_b32 s{dst}, s{dst}, 5")
        else:
            e(f"  s_add_u32 s{dst}, s{n}, 63")
            e(f"  s_lshr_b32 s{dst}, s{dst}, 6")

    e(HEADER.rstrip("\n"))
    e(f"; @launch grid=(256,1,1) block=({64*NWT},1,1) lds={LDS}")
    e('.amdgcn_target "amdgcn-amd-amdhsa--gfx950"')
    e(".text")
    e(f".globl {NAME}")
    e(".p2align 8")
    e(f".type {NAME},@function")
    e(f"{NAME}:")
    e("  s_cmp_ge_u32 s2, 256")
    e("  s_cbranch_scc1 L_end")
    if stamp:
        e("  s_memrealtime s[100:101]")
    e("  s_load_dwordx8 s[4:11], s[0:1], 0")
    e("  s_load_dwordx4 s[12:15], s[0:1], 32")
    e(f"  s_load_dwordx4 {sr(sDBG,4)}, s[0:1], 48")
    e(f"  v_lshrrev_b32 v{t0}, 6, v0")
    e(f"  v_and_b32 v0, 63, v0")
    e(f"  v_readfirstlane_b32 s{sW}, v{t0}")
    e(f"  s_lshr_b32 s{sB}, s2, 3")
    e(f"  s_and_b32 s{sH}, s2, 7")
    e(f"  v_and_b32 v{tA}, 15, v0")
    e(f"  v_lshrrev_b32 v{tB}, 4, v0")
    e(f"  v_lshrrev_b32 v{tC}, 1, v0")
    e(f"  v_and_b32 v{tD}, 1, v0")
    e(f"  v_lshlrev_b32 v{t1}, 8, v{tA}")
    e(f"  v_lshl_add_u32 v{t1}, v{tB}, 4, v{t1}")
    e(f"  s_cmp_ge_u32 s{sW}, {NS}")
    e("  s_cbranch_scc1 L_service")

    e(f"  s_lshl_b32 s{sIdx}, s{sW}, 1")
    e(f"  v_mul_u32_u24 v{t0}, {2*NS}, v{tC}")
    e(f"  v_add3_u32 v{tC}, v{t0}, v{tD}, s{sIdx}")
    e(f"  s_lshl_b32 s{sNB}, s{sB}, 9")
    e(f"  v_lshl_add_u32 v{t0}, v{tC}, 2, s{sNB}")
    e(f"  s_lshl_b32 s{sRem}, s{sB}, 2")
    e(f"  s_lshl_b32 s{sT2}, s2, 12")
    e(f"  s_lshl_b32 s{sKB}, s{sW}, 13")
    e(f"  s_lshl_b32 s{sT3}, s{sH}, 8")
    e("  s_waitcnt lgkmcnt(0)")
    if stamp:
        e(f"  s_mov_b32 s{sST}, s100")
    e(f"  s_load_dword s{sCL}, s[12:13], s{sRem}")
    srd(sBT, 10, 32 * 128 * 4)
    e(f"  buffer_load_dword v{vBT}, v{t0}, {sr(sBT,4)}, 0 offen")
    srd(sQ, 4, Q_BYTES)
    for kk in range(4):
        e(f"  buffer_load_dwordx4 {vr(Q+4*kk,4)}, v{t1}, {sr(sQ,4)}, s{sT2} offen offset:{kk*64}")
    srd(sK, 6, KV_BYTES)
    srd(sV, 8, KV_BYTES)
    for i in range(4):
        e(f"  v_add_u32 v{t0}, {4*i}, v{tB}")
        e(f"  v_xor_b32 v{t1}, v{tA}, v{t0}")
        e(f"  v_lshlrev_b32 v{t0}, 11, v{t0}")
        e(f"  v_lshl_add_u32 v{vKo+i}, v{t1}, 4, v{t0}")
        if i:
            e(f"  v_subrev_u32 v{vKo+i}, {i*1024}, v{vKo+i}")
    e(f"  v_lshlrev_b32 v{vV0}, 13, v{tB}")
    e(f"  v_lshl_add_u32 v{vV0}, v{tA}, 4, v{vV0}")
    e(f"  v_add_u32 v{vV1}, 0x1000, v{vV0}")
    e(f"  s_mov_b32 s{sPh}, 0")
    e(f"  s_mov_b32 s{sIdx}, 0")
    e("  s_barrier")
    e("  s_waitcnt lgkmcnt(0)")
    e(f"  s_max_i32 s{sCL}, s{sCL}, 0")
    e(f"  s_cmp_gt_i32 s{sCL}, 0")
    e(f"  s_cselect_b32 s{sNB}, s{sCL}, 2048")
    e(f"  s_min_u32 s{sNB}, s{sNB}, 2048")
    split_point(sA1, sNB)
    e(f"  s_add_u32 s{sLeft}, s{sA1}, {NS-1}")
    e(f"  s_sub_u32 s{sLeft}, s{sLeft}, s{sW}")
    divNS(sLeft)
    e("  s_waitcnt vmcnt(4)")
    e(f"  v_lshlrev_b32 v{vBT}, 15, v{vBT}")
    e(f"  v_add_u32 v{vBT}, s{sT3}, v{vBT}")
    e(f"  s_cmp_lg_u32 s{sLeft}, 0")
    e("  s_cbranch_scc1 L_issue")
    e(f"  s_call_b64 {sr(sRET,2)}, L_getinfo")
    e("L_issue:")
    next_offsets()
    e(f"  s_lshl_b32 s{sTmp}, s{sW}, 5")
    e(f"  s_sub_i32 s{sRem}, s{sCL}, s{sTmp}")
    loadKV()
    e(f"  v_lshlrev_b32 v{tD}, 8, v{tA}")
    e(f"  v_add_u32 v{tD}, s{sKB}, v{tD}")
    for kk in range(4):
        e(f"  v_add_u32 v{t0}, {4*kk}, v{tB}")
        e(f"  v_xor_b32 v{t0}, v{tA}, v{t0}")
        e(f"  v_lshl_add_u32 v{vKr+kk}, v{t0}, 4, v{tD}")
    e(f"  v_lshlrev_b32 v{v4r}, 2, v{tB}")
    e(f"  s_mov_b32 s{sC}, {hex(f32bits(128 ** -0.5 * math.log2(math.e)))}")
    e(f"  s_mov_b32 s{sSelLo}, 0x05040100")
    e(f"  s_mov_b32 s{sSelHi}, 0x07060302")
    e(f"  s_mov_b32 s{sNeg}, {hex(f32bits(-1e9 / (128 ** -0.5)))}")
    init_state()
    st(1)
    e(f"  s_cmp_eq_u32 s{sLeft}, 0")
    e("  s_cbranch_scc1 L_phase_end")

    e("L_loop:")
    e(f"  s_add_u32 s{sTmp}, s{sLeft}, s{sPh}")
    e(f"  s_cmp_lg_u32 s{sTmp}, 1")
    e("  s_cbranch_scc1 L_noinfo")
    e(f"  s_call_b64 {sr(sRET,2)}, L_getinfo")
    e("L_noinfo:")
    next_offsets()
    e(f"  s_waitcnt vmcnt(8)")
    for kk in range(4):
        for T in range(2):
            e(f"  ds_read_b128 {vr(KT+16*T+4*kk,4)}, v{vKr+kk} offset:{T*4096}")
    e(f"  s_waitcnt vmcnt(0)")
    for w in range(4):
        for jp in range(4):
            a, b = VB + 4 * (2 * jp + 1) + w, VB + 4 * (2 * jp) + w
            e(f"  v_perm_b32 v{VT+4*(2*w)+jp}, v{a}, v{b}, s{sSelLo}")
            e(f"  v_perm_b32 v{VT+4*(2*w+1)+jp}, v{a}, v{b}, s{sSelHi}")
    e(f"  s_waitcnt lgkmcnt(0)")
    loadKV()
    for kk in range(4):
        for T in range(2):
            c = "0" if kk == 0 else vr(S + 4 * T, 4)
            e(f"  v_mfma_f32_16x16x32_bf16 {vr(S+4*T,4)}, {vr(KT+16*T+4*kk,4)}, {vr(Q+4*kk,4)}, {c}")
    e(f"  s_cmp_ge_i32 s{sRem}, 32")
    e(f"  s_nop 6")
    e(f"  s_cbranch_scc1 L_nomask")
    e(f"  v_sub_u32 v{t0}, s{sRem}, v{v4r}")
    e(f"  v_mov_b32 v{t1}, s{sNeg}")
    for j in range(8):
        off = 16 * (j >> 2) + (j & 3)
        e(f"  v_cmp_lt_i32 {sr(sM+2*j,2)}, {off}, v{t0}")
    e("  s_nop 1")
    for j in range(8):
        e(f"  v_cndmask_b32 v{S+j}, v{t1}, v{S+j}, {sr(sM+2*j,2)}")
    e(f"L_nomask:")
    e(f"  s_sub_i32 s{sRem}, s{sRem}, {32*NS}")
    e(f"  v_max3_f32 v{t0}, v{S}, v{S+1}, v{S+2}")
    e(f"  v_max3_f32 v{t1}, v{S+3}, v{S+4}, v{S+5}")
    e(f"  v_max3_f32 v{t0}, v{t0}, v{S+6}, v{S+7}")
    e(f"  v_max_f32 v{t0}, v{t0}, v{t1}")
    e(f"  v_mov_b32 v{t1}, v{t0}")
    e("  s_nop 1")
    e(f"  v_permlane32_swap_b32 v{t0}, v{t1}")
    e("  s_nop 1")
    e(f"  v_max_f32 v{t0}, v{t0}, v{t1}")
    e(f"  v_mov_b32 v{t1}, v{t0}")
    e("  s_nop 1")
    e(f"  v_permlane16_swap_b32 v{t0}, v{t1}")
    e("  s_nop 1")
    e(f"  v_max_f32 v{t0}, v{t0}, v{t1}")
    e(f"  v_mul_f32 v{t0}, s{sC}, v{t0}")
    e(f"  v_max_f32 v{vMCn}, v{t0}, v{vMC}")
    e(f"  v_sub_f32 v{t1}, v{vMC}, v{vMCn}")
    e(f"  v_exp_f32 v{vAl}, v{t1}")
    e(f"  v_mov_b32 v{vMC}, v{vMCn}")
    for j in range(8):
        e(f"  v_fma_f32 v{S+j}, v{S+j}, s{sC}, -v{vMCn}")
    for j in range(8):
        e(f"  v_exp_f32 v{S+j}, v{S+j}")
    for i in range(16):
        e(f"  v_pk_mul_f32 {vr(O+2*i,2)}, {vr(O+2*i,2)}, {vr(vAl,2)} op_sel_hi:[1,0]")
    for jp in range(4):
        e(f"  v_cvt_pk_bf16_f32 v{P+jp}, v{S+2*jp}, v{S+2*jp+1}")
    e(f"  v_mul_f32 v{vL}, v{vL}, v{vAl}")
    e(f"  v_add_f32 v{t0}, v{S}, v{S+1}")
    for ee in range(8):
        e(f"  v_mfma_f32_16x16x32_bf16 {vr(O+4*ee,4)}, {vr(VT+4*ee,4)}, {vr(P,4)}, {vr(O+4*ee,4)}")
        if ee == 0:
            e(f"  v_add_f32 v{t1}, v{S+2}, v{S+3}")
            e(f"  v_add_f32 v{tA}, v{S+4}, v{S+5}")
        if ee == 1:
            e(f"  v_add_f32 v{tB}, v{S+6}, v{S+7}")
            e(f"  v_add_f32 v{t0}, v{t0}, v{t1}")
        if ee == 2:
            e(f"  v_add_f32 v{tA}, v{tA}, v{tB}")
            e(f"  v_add_f32 v{vL}, v{vL}, v{t0}")
        if ee == 3:
            e(f"  v_add_f32 v{vL}, v{vL}, v{tA}")
    e(f"  s_sub_u32 s{sLeft}, s{sLeft}, 1")
    e(f"  s_cmp_lg_u32 s{sLeft}, 0")
    e("  s_cbranch_scc1 L_loop")
    e("L_phase_end:")
    reduce_l()
    e(f"  v_and_b32 v{tA}, 15, v0")
    e(f"  v_lshrrev_b32 v{tB}, 4, v0")
    e(f"  s_cmp_lg_u32 s{sPh}, 0")
    e("  s_cbranch_scc1 L_final")
    e(f"  s_mul_i32 s{sTmp}, s{sW}, {FPART}")
    e(f"  s_add_u32 s{sTmp}, s{sTmp}, {FB}")
    e(f"  v_mul_u32_u24 v{t0}, 144, v{tA}")
    e(f"  v_mul_u32_u24 v{t1}, 2304, v{tB}")
    e(f"  v_add3_u32 v{t0}, v{t0}, v{t1}, s{sTmp}")
    e(f"  s_lshl_b32 s{sTmp}, s{sW}, 3")
    e(f"  s_add_u32 s{sTmp}, s{sTmp}, {FST}")
    e(f"  v_lshl_add_u32 v{t1}, v{tA}, 5, s{sTmp}")
    e(f"  ds_write_b64 v{t1}, {vr(vMC,2)}")
    for ee in range(8):
        e(f"  ds_write_b128 v{t0}, {vr(O+4*ee,4)} offset:{16*ee}")
    e(f"  v_lshlrev_b32 v{t1}, 4, v0")
    e(f"  v_add_u32 v{t1}, {Q2}, v{t1}")
    e("  s_waitcnt lgkmcnt(0)")
    e("  s_barrier")
    for kk in range(4):
        e(f"  ds_read_b128 {vr(Q+4*kk,4)}, v{t1} offset:{kk*1024}")
    init_state()
    e(f"  s_mov_b32 s{sPh}, 0x1000")
    e(f"  s_mov_b32 s{sRem}, s{sRem2}")
    e(f"  s_mov_b32 s{sLeft}, s{sN2}")
    e("  s_waitcnt lgkmcnt(0)")
    st(2)
    e(f"  s_cmp_eq_u32 s{sLeft}, 0")
    e("  s_cbranch_scc1 L_phase_end")
    e(f"  s_branch L_loop")

    e("L_getinfo:")
    e(f"  v_mov_b32 v{t1}, {REC}")
    e(f"  s_lshl_b32 s{sTmp}, s{sW}, 8")
    e(f"  s_add_u32 s{sTmp}, s{sTmp}, {LST}")
    e(f"  v_lshl_add_u32 v{t0}, v0, 2, s{sTmp}")
    e("L_gi_poll:")
    e(f"  ds_read_b32 v{tC}, v{t1} offset:16")
    e("  s_waitcnt lgkmcnt(0)")
    e(f"  v_readfirstlane_b32 s{sTmp}, v{tC}")
    e("  s_nop 0")
    e(f"  s_cmp_eq_u32 s{sTmp}, 0")
    e("  s_cbranch_scc1 L_gi_poll")
    e(f"  ds_read_b32 v{vBT}, v{t0}")
    e(f"  ds_read_b128 {vr(S,4)}, v{t1}")
    e("  s_waitcnt lgkmcnt(0)")
    e(f"  v_readfirstlane_b32 s{sOB}, v{S}")
    e(f"  v_readfirstlane_b32 s{sCL2}, v{S+1}")
    e(f"  v_readfirstlane_b32 s{sA2}, v{S+2}")
    e(f"  v_readfirstlane_b32 s{sX2}, v{S+3}")
    modNS_sub(sTmp, f"s{sW}", sA1, sT4)
    e(f"  s_add_u32 s{sN2}, s{sX2}, {NS-1}")
    e(f"  s_sub_u32 s{sN2}, s{sN2}, s{sTmp}")
    divNS(sN2)
    e(f"  s_add_u32 s{sTmp}, s{sTmp}, s{sA2}")
    e(f"  s_lshl_b32 s{sTmp}, s{sTmp}, 5")
    e(f"  s_sub_i32 s{sRem2}, s{sCL2}, s{sTmp}")
    e(f"  s_setpc_b64 {sr(sRET,2)}")

    e("L_final:")
    st(3)
    e(f"  s_mul_i32 s{sTmp}, s{sW}, {GPART}")
    e(f"  s_add_u32 s{sTmp}, s{sTmp}, {GB}")
    e(f"  v_mul_u32_u24 v{t0}, {ROWB}, v{tA}")
    e(f"  v_lshl_add_u32 v{t0}, v{tB}, 7, v{t0}")
    e(f"  v_add_u32 v{t0}, s{sTmp}, v{t0}")
    e(f"  s_lshl_b32 s{sTmp}, s{sW}, 3")
    e(f"  s_add_u32 s{sTmp}, s{sTmp}, {GST}")
    e(f"  v_lshl_add_u32 v{t1}, v{tA}, 6, s{sTmp}")
    e(f"  ds_write_b64 v{t1}, {vr(vMC,2)}")
    for ee in range(8):
        e(f"  ds_write_b128 v{t0}, {vr(O+4*ee,4)} offset:{16*ee}")
    e("L_b2:")
    srd(sO, 14, Q_BYTES)
    e(f"  s_lshl_b32 s{sTmp}, s{sW}, 2")
    e(f"  v_lshrrev_b32 v{tA}, 5, v0")
    e(f"  v_add_u32 v{tA}, s{sTmp}, v{tA}")
    e(f"  v_and_b32 v{tB}, 31, v0")
    e(f"  v_mul_u32_u24 v{t0}, {ROWB}, v{tA}")
    e(f"  v_lshl_add_u32 v{t0}, v{tB}, 4, v{t0}")
    e(f"  v_add_u32 v{t0}, {GB}, v{t0}")
    e(f"  v_lshlrev_b32 v{t1}, 6, v{tA}")
    e(f"  v_add_u32 v{t1}, {GST}, v{t1}")
    e(f"  v_lshrrev_b32 v{tC}, 3, v{tB}")
    e(f"  v_and_b32 v{tB}, 7, v{tB}")
    e(f"  v_lshlrev_b32 v{tA}, 8, v{tA}")
    e(f"  v_lshl_add_u32 v{tA}, v{tC}, 6, v{tA}")
    e(f"  v_lshl_add_u32 v{tA}, v{tB}, 1, v{tA}")
    e("  s_waitcnt lgkmcnt(0)")
    e("  s_barrier")
    if NWT > 4:
        e(f"  s_cmp_ge_u32 s{sW}, 4")
        e("  s_cbranch_scc1 L_stamp" if stamp else "  s_cbranch_scc1 L_end")
    nst = (NP + 1) // 2
    for ch in range(2):
        ST = KT + 12 * ch
        for u in range(nst):
            if 2 * u + 1 < NP:
                e(f"  ds_read_b128 {vr(ST+4*u,4)}, v{t1} offset:{ch*128+16*u}")
            else:
                e(f"  ds_read_b64 {vr(ST+4*u,2)}, v{t1} offset:{ch*128+16*u}")
    PBs = [VT, O]
    for ch in range(2):
        for u in range(NP):
            if 2 * nst + ch * NP + u == 15:
                e(f"  s_waitcnt lgkmcnt({2*NP-1})")
            e(f"  ds_read_b128 {vr(PBs[ch]+4*u,4)}, v{t0} offset:{u*GPART + ch*2*ROWB}")
    e(f"  s_waitcnt lgkmcnt({2*NP})")
    for ch in range(2):
        ST = KT + 12 * ch
        m, l = KT + 24 + 2 * ch, KT + 24 + 2 * ch + 1
        e(f"  v_max3_f32 v{m}, v{ST}, v{ST+2}, v{ST+4}")
        if NP == 4:
            e(f"  v_max_f32 v{m}, v{m}, v{ST+6}")
        if NP == 5:
            e(f"  v_max3_f32 v{m}, v{m}, v{ST+6}, v{ST+8}")
        for u in range(NP):
            e(f"  v_sub_f32 v{ST+2*u}, v{ST+2*u}, v{m}")
        for u in range(NP):
            e(f"  v_exp_f32 v{ST+2*u}, v{ST+2*u}")
        e("  s_nop 0")
        e(f"  v_mul_f32 v{l}, v{ST}, v{ST+1}")
        for u in range(1, NP):
            e(f"  v_fmac_f32 v{l}, v{ST+2*u}, v{ST+2*u+1}")
        e(f"  v_rcp_f32 v{l}, v{l}")
    for ch in range(2):
        ST = KT + 12 * ch
        PB = PBs[ch]
        l = KT + 24 + 2 * ch + 1
        R = S + 4 * ch
        e(f"  s_waitcnt lgkmcnt({NP*(1-ch)})")
        for i in range(4):
            e(f"  v_mul_f32 v{R+i}, v{ST}, v{PB+i}")
        for u in range(1, NP):
            for i in range(4):
                e(f"  v_fmac_f32 v{R+i}, v{ST+2*u}, v{PB+4*u+i}")
        for i in range(4):
            e(f"  v_mul_f32 v{R+i}, v{R+i}, v{l}")
        e(f"  v_cvt_pk_bf16_f32 v{P+2*ch}, v{R}, v{R+1}")
        e(f"  v_cvt_pk_bf16_f32 v{P+2*ch+1}, v{R+2}, v{R+3}")
        e(f"  buffer_store_short v{P+2*ch}, v{tA}, {sr(sO,4)}, s{sOB} offen offset:{ch*512}")
        e(f"  buffer_store_short_d16_hi v{P+2*ch}, v{tA}, {sr(sO,4)}, s{sOB} offen offset:{ch*512+16}")
        e(f"  buffer_store_short v{P+2*ch+1}, v{tA}, {sr(sO,4)}, s{sOB} offen offset:{ch*512+32}")
        e(f"  buffer_store_short_d16_hi v{P+2*ch+1}, v{tA}, {sr(sO,4)}, s{sOB} offen offset:{ch*512+48}")
    if stamp:
        e("  s_waitcnt vmcnt(0)")
        e(f"  s_cmp_ge_u32 s{sW}, {NS}")
        e("  s_cbranch_scc1 L_stamp")
        st(4)
        e("  s_branch L_stamp")
    else:
        e("  s_endpgm")

    if NWT > NS + 1:
        e("L_helper:")
        e("  s_barrier")
        e("  s_barrier")
        e(f"  v_mov_b32 v{t1}, {REC}")
        e(f"  ds_read_b32 v{t0}, v{t1}")
        e("  s_waitcnt lgkmcnt(0)")
        e(f"  v_readfirstlane_b32 s{sOB}, v{t0}")
        e("  s_branch L_b2")

    e("L_service:")
    if NWT > NS + 1:
        e(f"  s_cmp_gt_u32 s{sW}, {NS}")
        e("  s_cbranch_scc1 L_helper")
    e("  s_setprio 3")
    vC, vN, vNT, vKey, vRk = 32, 33, 34, 35, 36
    vI, vPar = tC, tD
    e(f"  v_mov_b32 v{vRk}, 0")
    e(f"  v_mov_b32 v{t0}, {FLG}")
    e(f"  ds_write_b32 v{t0}, v{vRk}")
    e(f"  v_and_b32 v{vKey}, 31, v0")
    e(f"  v_lshlrev_b32 v{t0}, 2, v{vKey}")
    e(f"  s_mov_b32 s{sT2}, 2048")
    e("  s_waitcnt lgkmcnt(0)")
    if stamp:
        e(f"  s_mov_b32 s{sST}, s100")
    srd(sK, 12, 128)
    e(f"  buffer_load_dword v{vC}, v{t0}, {sr(sK,4)}, 0 offen")
    e(f"  s_memrealtime {sr(sNON,2)}")
    e("  s_barrier")
    srd(sBT, 10, 32 * 128 * 4)
    srd(sQ, 4, Q_BYTES)
    srd(sWS, sDBG + 2, 256 * SLOTB)
    e(f"  s_xor_b32 s{sH2}, s{sH}, {hx}")
    e("  s_waitcnt vmcnt(0)")
    e(f"  v_max_i32 v{vC}, 0, v{vC}")
    e(f"  v_cmp_eq_u32 vcc, 0, v{vC}")
    e(f"  v_min_u32 v{vN}, s{sT2}, v{vC}")
    e(f"  v_mov_b32 v{t0}, s{sT2}")
    e(f"  v_cndmask_b32 v{vN}, v{vN}, v{t0}, vcc")
    e(f"  v_lshl_add_u32 v{vKey}, v{vN}, 5, v{vKey}")
    e("  s_nop 0")
    for g in range(4):
        for j in range(8):
            e(f"  v_readlane_b32 s{56+j}, v{vKey}, {8*g+j}")
        for j in range(8):
            e(f"  v_cmp_lt_u32 {sr(sM+2*j,2)}, s{56+j}, v{vKey}")
        for j in range(8):
            e(f"  v_addc_co_u32 v{vRk}, vcc, 0, v{vRk}, {sr(sM+2*j,2)}")
    e("  s_nop 0")
    e(f"  v_readlane_b32 s{sTmp}, v{vRk}, s{sB}")
    e("  s_nop 0")
    e(f"  s_sub_u32 s{sTmp}, 31, s{sTmp}")
    e(f"  v_cmp_eq_u32 vcc, s{sTmp}, v{vRk}")
    e(f"  v_readlane_b32 s{sNB}, v{vN}, s{sB}")
    e("  s_nop 3")
    e(f"  s_ff1_i32_b64 s{sB2}, vcc")
    e(f"  s_and_b32 s{sB2}, s{sB2}, 31")
    e(f"  v_readlane_b32 s{sNB2}, v{vN}, s{sB2}")
    e(f"  v_readlane_b32 s{sCL2}, v{vC}, s{sB2}")
    split_point(sA1, sNB)
    e(f"  s_add_u32 s{sNB}, s{sNB}, 15")
    e(f"  s_lshr_b32 s{sNB}, s{sNB}, 4")
    split_point(sA2, sNB2)
    e(f"  s_add_u32 s{sX2}, s{sNB2}, 31")
    e(f"  s_lshr_b32 s{sX2}, s{sX2}, 5")
    e(f"  s_sub_u32 s{sX2}, s{sX2}, s{sA2}")
    e(f"  s_add_u32 s{sNB2}, s{sNB2}, 15")
    e(f"  s_lshr_b32 s{sNB2}, s{sNB2}, 4")
    e(f"  s_lshl_b32 s{sT2}, s{sB}, 9")
    e(f"  s_lshl_b32 s{sT3}, s{sB2}, 9")
    e(f"  s_lshl_b32 s{sX}, s{sB2}, 3")
    e(f"  s_add_u32 s{sX}, s{sX}, s{sH2}")
    e(f"  s_lshl_b32 s{sOB}, s{sX}, 12")
    LB = 40
    for w in range(NS):
        e(f"  s_add_u32 s{sN2}, s{sA1}, {NS-1-w}")
        divNS(sN2)
        modNS_sub(sTmp, str(w), sA1, sT4)
        e(f"  s_add_u32 s{sTmp}, s{sTmp}, s{sA2}")
        e(f"  s_mul_i32 s{sT4}, s{sN2}, {NS}")
        e(f"  s_sub_u32 s{sTmp}, s{sTmp}, s{sT4}")
        e(f"  v_cmp_gt_u32 vcc, s{sN2}, v{vI}")
        e(f"  v_mov_b32 v{t0}, s{sTmp}")
        e(f"  v_mov_b32 v{vAl}, s{sNB2}")
        e(f"  v_mov_b32 v{vAl+1}, {w}")
        e(f"  v_cndmask_b32 v{t0}, v{t0}, v{vAl+1}, vcc")
        e(f"  v_mad_u32_u24 v{t0}, v{vI}, {NS}, v{t0}")
        e(f"  v_lshl_add_u32 v{LB+w}, v{t0}, 1, v{vPar}")
        e(f"  v_mov_b32 v{vAl+1}, s{sNB}")
        e(f"  v_cndmask_b32 v{LB+8+w}, v{vAl}, v{vAl+1}, vcc")
        e(f"  v_mov_b32 v{vAl}, s{sT3}")
        e(f"  v_mov_b32 v{vAl+1}, s{sT2}")
        e(f"  v_cndmask_b32 v{t0}, v{vAl}, v{vAl+1}, vcc")
        e(f"  v_lshl_add_u32 v{t0}, v{LB+w}, 2, v{t0}")
        e(f"  buffer_load_dword v{LB+4+w}, v{t0}, {sr(sBT,4)}, 0 offen")
        e(f"  v_mov_b32 v{vAl}, s{sH2}")
        e(f"  v_mov_b32 v{vAl+1}, s{sH}")
        e(f"  v_cndmask_b32 v{LB+12+w}, v{vAl}, v{vAl+1}, vcc")
        e(f"  v_lshlrev_b32 v{LB+12+w}, 8, v{LB+12+w}")
    for kk in range(4):
        e(f"  s_mov_b32 m0, {Q2 + kk*960}")
        e("  s_nop 0")
        e(f"  buffer_load_dwordx4 v{t1}, {sr(sQ,4)}, s{sOB} offen offset:{kk*64} lds")
    e(f"  v_mov_b32 v{vNON+2}, 0")
    e(f"  v_mov_b32 v{vNON+3}, 0")
    e("  s_waitcnt lgkmcnt(0)")
    e(f"  s_or_b32 s{sNON}, s{sNON}, 1")
    e(f"  v_mov_b32 v{vNON}, s{sNON}")
    e(f"  v_mov_b32 v{vNON+1}, s{sNON+1}")
    e(f"  v_mov_b32 v{S}, s{sOB}")
    e(f"  v_mov_b32 v{S+1}, s{sCL2}")
    e(f"  v_mov_b32 v{S+2}, s{sA2}")
    e(f"  v_mov_b32 v{S+3}, s{sX2}")
    e(f"  v_mov_b32 v{vKey}, {REC}")
    e(f"  ds_write_b128 v{vKey}, {vr(S,4)}")
    e(f"  v_lshlrev_b32 v{t0}, 2, v0")
    e(f"  v_add_u32 v{t0}, {LST}, v{t0}")
    e(f"  v_mov_b32 v{vAl}, {hex(OOB)}")
    for w in range(NS):
        e(f"  v_cmp_lt_u32 vcc, v{LB+w}, v{LB+8+w}")
        e(f"  s_waitcnt vmcnt({4+NS-1-w})")
        e(f"  v_lshl_add_u32 v{LB+4+w}, v{LB+4+w}, 15, v{LB+12+w}")
        e(f"  v_cndmask_b32 v{LB+4+w}, v{vAl}, v{LB+4+w}, vcc")
        e(f"  ds_write_b32 v{t0}, v{LB+4+w} offset:{w*256}")
    e(f"  v_mov_b32 v{vAl}, 1")
    e("  s_waitcnt lgkmcnt(0)")
    e(f"  ds_write_b32 v{vKey}, v{vAl} offset:16")
    st(1)
    e(f"  v_mul_u32_u24 v{t0}, 144, v{tA}")
    e(f"  v_mul_u32_u24 v{t1}, 2304, v{tB}")
    e(f"  v_add_u32 v{t0}, v{t0}, v{t1}")
    e(f"  v_add_u32 v{t0}, {FB}, v{t0}")
    e(f"  v_lshlrev_b32 v{t1}, 5, v{tA}")
    e(f"  v_add_u32 v{t1}, {FST}, v{t1}")
    e(f"  v_lshlrev_b32 v{tC}, 4, v0")
    e(f"  v_lshlrev_b32 v{tD}, 2, v0")
    e(f"  s_mul_i32 s{sT2}, s2, {SLOTB}")
    e(f"  s_mul_i32 s{sT3}, s{sX}, {SLOTB}")
    e("  s_waitcnt vmcnt(0) lgkmcnt(0)")
    e("  s_barrier")
    if nohand:
        e("  s_branch L_b2")
    e(f"  s_mov_b64 {sr(sM,2)}, exec")
    e("  s_mov_b64 exec, 1")
    e(f"  global_atomic_cmpswap_x2 {vr(vNON+4,2)}, v{vNON+2}, {vr(vNON,4)}, {sr(sDBG,2)} sc0 sc1")
    e(f"  s_mov_b64 exec, {sr(sM,2)}")
    ST = 32
    R = 40
    PB = 72
    e(f"  ds_read_b128 {vr(ST,4)}, v{t1}")
    if NS > 2:
        e(f"  ds_read_b128 {vr(ST+4,4)}, v{t1} offset:16")
    for ee in range(2):
        for u in range(NS):
            e(f"  ds_read_b128 {vr(PB+4*NS*ee+4*u,4)}, v{t0} offset:{u*FPART+16*ee}")
    e(f"  s_waitcnt lgkmcnt({2*NS})")
    e(f"  v_max_f32 v{vMC}, v{ST}, v{ST+2}")
    for u in range(2, NS):
        e(f"  v_max_f32 v{vMC}, v{vMC}, v{ST+2*u}")
    for u in range(NS):
        e(f"  v_sub_f32 v{ST+2*u}, v{ST+2*u}, v{vMC}")
    for u in range(NS):
        e(f"  v_exp_f32 v{ST+2*u}, v{ST+2*u}")
    e("  s_nop 0")
    e(f"  v_mul_f32 v{vL}, v{ST}, v{ST+1}")
    for u in range(1, NS):
        e(f"  v_fmac_f32 v{vL}, v{ST+2*u}, v{ST+2*u+1}")
    e(f"  s_add_u32 s{sT4}, s{sT2}, 8192")
    e(f"  buffer_store_dword v{vMC}, v{tD}, {sr(sWS,4)}, s{sT4} offen {sfl}")
    e(f"  buffer_store_dword v{vL}, v{tD}, {sr(sWS,4)}, s{sT4} offen offset:256 {sfl}")
    for ee in range(8):
        if ee + 2 < 8:
            for u in range(NS):
                e(f"  ds_read_b128 {vr(PB+4*NS*(ee+2)+4*u,4)}, v{t0} offset:{u*FPART+16*(ee+2)}")
        rem = min(8 - 1 - ee, 2) * NS
        e(f"  s_waitcnt lgkmcnt({rem})")
        for i in range(4):
            e(f"  v_mul_f32 v{R+4*ee+i}, v{ST}, v{PB+4*NS*ee+i}")
        for u in range(1, NS):
            for i in range(4):
                e(f"  v_fmac_f32 v{R+4*ee+i}, v{ST+2*u}, v{PB+4*NS*ee+4*u+i}")
        if ee == 4:
            e(f"  s_add_u32 s{sT2}, s{sT2}, 4096")
        e(f"  buffer_store_dwordx4 {vr(R+4*ee,4)}, v{tC}, {sr(sWS,4)}, s{sT2} offen offset:{(ee&3)*1024} {sfl}")
    e(f"  s_waitcnt vmcnt(10)")
    e(f"  v_readfirstlane_b32 s{sT4}, v{vNON+4}")
    e(f"  v_readfirstlane_b32 s{sT5}, v{vNON+5}")
    e("  s_nop 0")
    e(f"  s_cmp_eq_u32 s{sT4}, 0")
    e(f"  s_cselect_b32 s{sNON}, s{sNON}, s{sT4}")
    e(f"  s_cselect_b32 s{sNON+1}, s{sNON+1}, s{sT5}")
    e(f"  v_mov_b32 v{vNON}, s{sNON}")
    e(f"  v_mov_b32 v{vNON+1}, s{sNON+1}")
    e(f"  s_add_u32 s{sT4}, s{sT3}, 8704")
    e(f"  s_mov_b32 s{sT5}, 0x40000")
    e("  s_waitcnt vmcnt(0)")
    if level == 1:
        e("  s_branch L_b2")
    e("  s_mov_b64 exec, 1")
    e(f"  buffer_store_dwordx2 {vr(vNON,2)}, v{vNON+2}, {sr(sWS,4)}, s{sT2} offen offset:{8704-4096-4096+4096} sc1" if False else
      f"  s_add_u32 s{sT2}, s{sT2}, {8704-4096}")
    e(f"  buffer_store_dwordx2 {vr(vNON,2)}, v{vNON+2}, {sr(sWS,4)}, s{sT2} offen sc1")
    st(2)
    e("L_poll:")
    e(f"  buffer_load_dwordx2 {vr(vNON+4,2)}, v{vNON+2}, {sr(sWS,4)}, s{sT4} offen sc1")
    e("  s_waitcnt vmcnt(0)")
    e(f"  v_readfirstlane_b32 s{sN2}, v{vNON+4}")
    e(f"  v_readfirstlane_b32 s{sN2+1}, v{vNON+5}")
    e("  s_nop 0")
    e(f"  s_cmp_eq_u64 {sr(sN2,2)}, {sr(sNON,2)}")
    e("  s_cbranch_scc1 L_got")
    e(f"  s_sleep {sleep}")
    e(f"  s_sub_u32 s{sT5}, s{sT5}, 1")
    e(f"  s_cmp_lg_u32 s{sT5}, 0")
    e("  s_cbranch_scc1 L_poll")
    e("L_got:")
    e(f"  s_mov_b64 exec, {sr(sM,2)}")
    st(3)
    if level == 3:
        e("  s_branch L_b2")
    e(f"  s_add_u32 s{sT4}, s{sT3}, 8192")
    e(f"  buffer_load_dword v{vMC}, v{tD}, {sr(sWS,4)}, s{sT4} offen sc1")
    e(f"  buffer_load_dword v{vL}, v{tD}, {sr(sWS,4)}, s{sT4} offen offset:256 sc1")
    e(f"  s_add_u32 s{sT4}, s{sT3}, 4096")
    for ee in range(8):
        e(f"  buffer_load_dwordx4 {vr(R+4*ee,4)}, v{tC}, {sr(sWS,4)}, s{sT3 if ee < 4 else sT4} offen offset:{(ee&3)*1024} sc1")
    e(f"  v_mul_u32_u24 v{t0}, {ROWB}, v{tA}")
    e(f"  v_lshl_add_u32 v{t0}, v{tB}, 7, v{t0}")
    e(f"  v_add_u32 v{t0}, {GB + NS*GPART}, v{t0}")
    e(f"  v_lshlrev_b32 v{t1}, 6, v{tA}")
    e(f"  v_add_u32 v{t1}, {GST + 8*NS}, v{t1}")
    e("  s_waitcnt vmcnt(8)")
    e(f"  ds_write_b64 v{t1}, {vr(vMC,2)}")
    for ee in range(8):
        e(f"  s_waitcnt vmcnt({7-ee})")
        e(f"  ds_write_b128 v{t0}, {vr(R+4*ee,4)} offset:{16*ee}")
    e("  s_waitcnt lgkmcnt(0)")
    st(4)
    e("  s_branch L_b2")
    if stamp:
        e("L_stamp:")
        e(f"  s_mul_i32 s{sTmp}, s2, {NWT}")
        e(f"  s_add_u32 s{sTmp}, s{sTmp}, s{sW}")
        e(f"  s_lshl_b32 s{sTmp}, s{sTmp}, 5")
        e(f"  s_add_u32 s{sTmp}, s{sTmp}, {256*SLOTB}")
        e(f"  v_mov_b32 v{t0}, s{sTmp}")
        for i in range(5):
            e(f"  v_mov_b32 v{S+i}, s{sST+i}")
        e("  s_getreg_b32 s100, hwreg(HW_REG_XCC_ID)")
        e(f"  v_mov_b32 v{S+5}, s100")
        e(f"  v_mov_b32 v{S+6}, s{sA1}")
        e(f"  v_mov_b32 v{S+7}, s{sX2}")
        e("  s_mov_b64 exec, 1")
        e(f"  global_store_dwordx4 v{t0}, {vr(S,4)}, {sr(sDBG+2,2)}")
        e(f"  global_store_dwordx4 v{t0}, {vr(S+4,4)}, {sr(sDBG+2,2)} offset:16")
    e("L_end:")
    e("  s_endpgm")
    e('.section .rodata,"a"')
    e(".p2align 6")
    e(f".amdhsa_kernel {NAME}")
    e(f"  .amdhsa_next_free_vgpr {NV}")
    e("  .amdhsa_next_free_sgpr 102")
    e(f"  .amdhsa_accum_offset {(NV+3)//4*4}")
    e("  .amdhsa_group_segment_fixed_size 0")
    e("  .amdhsa_kernarg_size 64")
    e("  .amdhsa_user_sgpr_count 2")
    e("  .amdhsa_user_sgpr_kernarg_segment_ptr 1")
    e("  .amdhsa_system_sgpr_workgroup_id_x 1")
    e(".end_amdhsa_kernel")
    return "\n".join(L) + "\n"


if __name__ == "__main__":
    ap = argparse.ArgumentParser()
    ap.add_argument("-o", required=True)
    ap.add_argument("--ns", type=int, default=3)
    ap.add_argument("--kfl", default="nt")
    ap.add_argument("--vfl", default="nt")
    ap.add_argument("--stamp", action="store_true")
    ap.add_argument("--hx", type=int, default=1)
    ap.add_argument("--sleep", type=int, default=8)
    ap.add_argument("--nopair", action="store_true")
    ap.add_argument("--nohand", action="store_true")
    ap.add_argument("--level", type=int, default=4)
    ap.add_argument("--sfl", default="sc1")
    a = ap.parse_args()
    open(a.o, "w").write(gen(NS=a.ns, kfl=a.kfl, vfl=a.vfl, stamp=a.stamp, hx=a.hx, sleep=a.sleep, nopair=a.nopair, nohand=a.nohand, level=a.level, sfl=a.sfl.replace('+',' ')))
```

```python
import sys, struct, math, argparse

NAME = "standalone__paged_block_table_kv_pagedattention__sampling_kernel"
HEADER = open("standalone__paged_block_table_kv_pagedattention__sampling.s.ref").read().split("; Override launch")[0]

KV_BYTES = 4100 * 16 * 8 * 128 * 2
Q_BYTES = 32 * 32 * 4 * 128 * 2
OOB = 0x10000000
SLOTB = 9216


def f32bits(x):
    return struct.unpack("<I", struct.pack("<f", x))[0]


def gen(NS=2, kfl="nt", vfl="nt", stamp=False, hx=1, sleep=8, nopair=False, nohand=False, pf=172):
    L = []
    e = L.append
    NWT = max(NS + 1, 4)
    NP = NS + 1
    KFL = (" " + kfl.replace("+", " ")) if kfl else ""
    VFL = (" " + vfl.replace("+", " ")) if vfl else ""
    vKo, vKr, vV0, vV1, vBT, v4r = 1, 5, 9, 10, 11, 12
    vMC, vL, vAl, vMCn = 20, 21, 22, 24
    t0, t1, tA, tB, tC, tD = 25, 26, 27, 28, 29, 30
    Q, O, S, P, KT, VT, VB = 32, 48, 80, 88, 92, 124, 156
    NV = 72 + 32 * NS if 72 + 32 * NS > 188 else 188
    sK, sV, sBT, sQ, sO, sWS = 16, 20, 24, 28, 32, 36
    (sB, sH, sW, sCL, sNB, sLeft, sIdx, sO0, sO1, sRem, sC, sSelLo, sSelHi, sTmp, sNeg, sKB,
     sN2, sRem2, sOB, sPh, sX, sA1, sT2, sT3, sT4, sT5, sB2, sH2, sA2, sNB2, sX2, sCL2) = range(40, 72)
    sEv = 97
    sM = 72
    sDBG = 88
    sST = 92
    sNON = 98
    vNON = 14
    sRET = 98
    KSLOT = 8192
    FB = NS * KSLOT
    FPART = 9216
    FST = FB + NS * FPART
    GB = FST + 16 * 4 * 8
    ROWB = 528
    GPART = 16 * ROWB
    GST = GB + NP * GPART
    LST = GST + 16 * 8 * 8
    Q2 = LST + NS * 256
    REC = Q2 + 4096
    FLG = REC + 32
    LDS = FLG + 16
    assert LDS <= 160 * 1024, LDS

    def vr(a, n):
        return f"v[{a}:{a+n-1}]"

    def sr(a, n):
        return f"s[{a}:{a+n-1}]"

    def srd(r, lo, nbytes):
        e(f"  s_mov_b32 s{r}, s{lo}")
        e(f"  s_mov_b32 s{r+1}, s{lo+1}")
        e(f"  s_mov_b32 s{r+2}, {nbytes}")
        e(f"  s_mov_b32 s{r+3}, 0x00020000")

    def st(i):
        if stamp:
            e(f"  s_memrealtime s[100:101]")
            e(f"  s_waitcnt lgkmcnt(0)")
            e(f"  s_mov_b32 s{sST+i}, s100")

    def divNS(d):
        if NS == 3:
            e(f"  s_mul_i32 s{d}, s{d}, 43691")
            e(f"  s_lshr_b32 s{d}, s{d}, 17")
        else:
            e(f"  s_lshr_b32 s{d}, s{d}, {int(math.log2(NS))}")

    def modNS_sub(d, w, a, tmp):
        if NS == 3:
            e(f"  s_mul_i32 s{tmp}, s{a}, 43691")
            e(f"  s_lshr_b32 s{tmp}, s{tmp}, 17")
            e(f"  s_mul_i32 s{tmp}, s{tmp}, 3")
            e(f"  s_sub_u32 s{tmp}, s{a}, s{tmp}")
            e(f"  s_sub_i32 s{d}, {w}, s{tmp}")
            e(f"  s_add_u32 s{tmp}, s{d}, 3")
            e(f"  s_cmp_lt_i32 s{d}, 0")
            e(f"  s_cselect_b32 s{d}, s{tmp}, s{d}")
        else:
            e(f"  s_sub_u32 s{d}, {w}, s{a}")
            e(f"  s_and_b32 s{d}, s{d}, {NS-1}")

    def loadKV():
        for T in range(2):
            e(f"  s_add_u32 m0, s{sKB}, {T*4096}")
            e(f"  s_nop 0")
            for i in range(4):
                e(f"  buffer_load_dwordx4 v{vKo+i}, {sr(sK,4)}, s{sO0+T} offen offset:{i*1024}{KFL} lds")
        for j in range(8):
            T, i = j >> 2, j & 3
            e(f"  buffer_load_dwordx4 {vr(VB+4*j,4)}, v{vV0 + (i>>1)}, {sr(sV,4)}, s{sO0+T} offen offset:{(i&1)*2048}{VFL}")

    def next_offsets():
        e(f"  v_readlane_b32 s{sO0}, v{vBT}, s{sIdx}")
        e(f"  s_add_u32 s{sIdx}, s{sIdx}, 1")
        e(f"  v_readlane_b32 s{sO1}, v{vBT}, s{sIdx}")
        e(f"  s_add_u32 s{sIdx}, s{sIdx}, 1")

    def reduce_l():
        for sw in ("32", "16"):
            e(f"  v_mov_b32 v{t1}, v{vL}")
            e("  s_nop 1")
            e(f"  v_permlane{sw}_swap_b32 v{vL}, v{t1}")
            e("  s_nop 1")
            e(f"  v_add_f32 v{vL}, v{vL}, v{t1}")

    def init_state():
        for i in range(32):
            e(f"  v_mov_b32 v{O+i}, 0")
        e(f"  v_mov_b32 v{vMC}, 0xff7fffff")
        e(f"  v_mov_b32 v{vL}, 0")

    def split_point(dst, n):
        if nopair:
            e(f"  s_add_u32 s{dst}, s{n}, 31")
            e(f"  s_lshr_b32 s{dst}, s{dst}, 5")
        else:
            e(f"  s_add_u32 s{dst}, s{n}, 63")
            e(f"  s_lshr_b32 s{dst}, s{dst}, 6")

    e(HEADER.rstrip("\n"))
    e(f"; @launch grid=(256,1,1) block=({64*NWT},1,1) lds={LDS}")
    e('.amdgcn_target "amdgcn-amd-amdhsa--gfx950"')
    e(".text")
    e(f".globl {NAME}")
    e(".p2align 8")
    e(f".type {NAME},@function")
    e(f"{NAME}:")
    e("  s_cmp_ge_u32 s2, 256")
    e("  s_cbranch_scc1 L_end")
    if stamp:
        e("  s_memrealtime s[100:101]")
    e("  s_load_dwordx8 s[4:11], s[0:1], 0")
    e("  s_load_dwordx4 s[12:15], s[0:1], 32")
    e(f"  s_load_dwordx4 {sr(sDBG,4)}, s[0:1], 48")
    e(f"  v_lshrrev_b32 v{t0}, 6, v0")
    e(f"  v_and_b32 v0, 63, v0")
    e(f"  v_readfirstlane_b32 s{sW}, v{t0}")
    e(f"  s_lshr_b32 s{sB}, s2, 3")
    e(f"  s_and_b32 s{sH}, s2, 7")
    e(f"  v_and_b32 v{tA}, 15, v0")
    e(f"  v_lshrrev_b32 v{tB}, 4, v0")
    e(f"  v_lshrrev_b32 v{tC}, 1, v0")
    e(f"  v_and_b32 v{tD}, 1, v0")
    e(f"  v_lshlrev_b32 v{t1}, 8, v{tA}")
    e(f"  v_lshl_add_u32 v{t1}, v{tB}, 4, v{t1}")
    e(f"  s_cmp_ge_u32 s{sW}, {NS}")
    e("  s_cbranch_scc1 L_service")

    e(f"  s_lshl_b32 s{sIdx}, s{sW}, 1")
    e(f"  v_mul_u32_u24 v{t0}, {2*NS}, v{tC}")
    e(f"  v_add3_u32 v{tC}, v{t0}, v{tD}, s{sIdx}")
    e(f"  s_lshl_b32 s{sNB}, s{sB}, 9")
    e(f"  v_lshl_add_u32 v{t0}, v{tC}, 2, s{sNB}")
    e(f"  s_lshl_b32 s{sRem}, s{sB}, 2")
    e(f"  s_lshl_b32 s{sT2}, s2, 12")
    e(f"  s_lshl_b32 s{sKB}, s{sW}, 13")
    e(f"  s_lshl_b32 s{sT3}, s{sH}, 8")
    e("  s_waitcnt lgkmcnt(0)")
    if stamp:
        e(f"  s_mov_b32 s{sST}, s100")
    e(f"  s_load_dword s{sCL}, s[12:13], s{sRem}")
    srd(sBT, 10, 32 * 128 * 4)
    e(f"  buffer_load_dword v{vBT}, v{t0}, {sr(sBT,4)}, 0 offen")
    srd(sQ, 4, Q_BYTES)
    for kk in range(4):
        e(f"  buffer_load_dwordx4 {vr(Q+4*kk,4)}, v{t1}, {sr(sQ,4)}, s{sT2} offen offset:{kk*64}")
    srd(sK, 6, KV_BYTES)
    srd(sV, 8, KV_BYTES)
    for i in range(4):
        e(f"  v_add_u32 v{t0}, {4*i}, v{tB}")
        e(f"  v_xor_b32 v{t1}, v{tA}, v{t0}")
        e(f"  v_lshlrev_b32 v{t0}, 11, v{t0}")
        e(f"  v_lshl_add_u32 v{vKo+i}, v{t1}, 4, v{t0}")
        if i:
            e(f"  v_subrev_u32 v{vKo+i}, {i*1024}, v{vKo+i}")
    e(f"  v_lshlrev_b32 v{vV0}, 13, v{tB}")
    e(f"  v_lshl_add_u32 v{vV0}, v{tA}, 4, v{vV0}")
    e(f"  v_add_u32 v{vV1}, 0x1000, v{vV0}")
    e(f"  s_mov_b32 s{sPh}, 0")
    e(f"  s_mov_b32 s{sEv}, 1")
    e(f"  s_mov_b32 s{sIdx}, 0")
    e("  s_barrier")
    e("  s_waitcnt lgkmcnt(0)")
    e(f"  s_max_i32 s{sCL}, s{sCL}, 0")
    e(f"  s_cmp_gt_i32 s{sCL}, 0")
    e(f"  s_cselect_b32 s{sNB}, s{sCL}, 2048")
    e(f"  s_min_u32 s{sNB}, s{sNB}, 2048")
    split_point(sA1, sNB)
    e(f"  s_add_u32 s{sLeft}, s{sA1}, {NS-1}")
    e(f"  s_sub_u32 s{sLeft}, s{sLeft}, s{sW}")
    divNS(sLeft)
    e("  s_waitcnt vmcnt(4)")
    e(f"  v_lshlrev_b32 v{vBT}, 15, v{vBT}")
    e(f"  v_add_u32 v{vBT}, s{sT3}, v{vBT}")
    e(f"  s_cmp_lg_u32 s{sLeft}, 0")
    e("  s_cbranch_scc1 L_issue")
    e(f"  s_call_b64 {sr(sRET,2)}, L_getinfo")
    e("L_issue:")
    next_offsets()
    e(f"  s_lshl_b32 s{sTmp}, s{sW}, 5")
    e(f"  s_sub_i32 s{sRem}, s{sCL}, s{sTmp}")
    loadKV()
    e(f"  v_lshlrev_b32 v{tD}, 8, v{tA}")
    e(f"  v_add_u32 v{tD}, s{sKB}, v{tD}")
    for kk in range(4):
        e(f"  v_add_u32 v{t0}, {4*kk}, v{tB}")
        e(f"  v_xor_b32 v{t0}, v{tA}, v{t0}")
        e(f"  v_lshl_add_u32 v{vKr+kk}, v{t0}, 4, v{tD}")
    e(f"  v_lshlrev_b32 v{v4r}, 2, v{tB}")
    e(f"  s_mov_b32 s{sC}, {hex(f32bits(128 ** -0.5 * math.log2(math.e)))}")
    e(f"  s_mov_b32 s{sSelLo}, 0x05040100")
    e(f"  s_mov_b32 s{sSelHi}, 0x07060302")
    e(f"  s_mov_b32 s{sNeg}, {hex(f32bits(-1e9 / (128 ** -0.5)))}")
    init_state()
    st(1)
    e(f"  s_cmp_eq_u32 s{sLeft}, 0")
    e("  s_cbranch_scc1 L_phase_end")

    e("L_loop:")
    e(f"  s_add_u32 s{sTmp}, s{sLeft}, s{sPh}")
    e(f"  s_cmp_lg_u32 s{sTmp}, s{sEv}")
    e("  s_cbranch_scc1 L_noinfo")
    e(f"  s_call_b64 {sr(sRET,2)}, L_event")
    e("L_noinfo:")
    next_offsets()
    e(f"  s_waitcnt vmcnt(8)")
    for kk in range(4):
        for T in range(2):
            e(f"  ds_read_b128 {vr(KT+16*T+4*kk,4)}, v{vKr+kk} offset:{T*4096}")
    e(f"  s_waitcnt vmcnt(0)")
    for w in range(4):
        for jp in range(4):
            a, b = VB + 4 * (2 * jp + 1) + w, VB + 4 * (2 * jp) + w
            e(f"  v_perm_b32 v{VT+4*(2*w)+jp}, v{a}, v{b}, s{sSelLo}")
            e(f"  v_perm_b32 v{VT+4*(2*w+1)+jp}, v{a}, v{b}, s{sSelHi}")
    e(f"  s_waitcnt lgkmcnt(0)")
    loadKV()
    for kk in range(4):
        for T in range(2):
            c = "0" if kk == 0 else vr(S + 4 * T, 4)
            e(f"  v_mfma_f32_16x16x32_bf16 {vr(S+4*T,4)}, {vr(KT+16*T+4*kk,4)}, {vr(Q+4*kk,4)}, {c}")
    e(f"  s_cmp_ge_i32 s{sRem}, 32")
    e(f"  s_nop 6")
    e(f"  s_cbranch_scc1 L_nomask")
    e(f"  v_sub_u32 v{t0}, s{sRem}, v{v4r}")
    e(f"  v_mov_b32 v{t1}, s{sNeg}")
    for j in range(8):
        off = 16 * (j >> 2) + (j & 3)
        e(f"  v_cmp_lt_i32 {sr(sM+2*j,2)}, {off}, v{t0}")
    e("  s_nop 1")
    for j in range(8):
        e(f"  v_cndmask_b32 v{S+j}, v{t1}, v{S+j}, {sr(sM+2*j,2)}")
    e(f"L_nomask:")
    e(f"  s_sub_i32 s{sRem}, s{sRem}, {32*NS}")
    e(f"  v_max3_f32 v{t0}, v{S}, v{S+1}, v{S+2}")
    e(f"  v_max3_f32 v{t1}, v{S+3}, v{S+4}, v{S+5}")
    e(f"  v_max3_f32 v{t0}, v{t0}, v{S+6}, v{S+7}")
    e(f"  v_max_f32 v{t0}, v{t0}, v{t1}")
    e(f"  v_mov_b32 v{t1}, v{t0}")
    e("  s_nop 1")
    e(f"  v_permlane32_swap_b32 v{t0}, v{t1}")
    e("  s_nop 1")
    e(f"  v_max_f32 v{t0}, v{t0}, v{t1}")
    e(f"  v_mov_b32 v{t1}, v{t0}")
    e("  s_nop 1")
    e(f"  v_permlane16_swap_b32 v{t0}, v{t1}")
    e("  s_nop 1")
    e(f"  v_max_f32 v{t0}, v{t0}, v{t1}")
    e(f"  v_mul_f32 v{t0}, s{sC}, v{t0}")
    e(f"  v_max_f32 v{vMCn}, v{t0}, v{vMC}")
    e(f"  v_sub_f32 v{t1}, v{vMC}, v{vMCn}")
    e(f"  v_exp_f32 v{vAl}, v{t1}")
    e(f"  v_mov_b32 v{vMC}, v{vMCn}")
    for j in range(8):
        e(f"  v_fma_f32 v{S+j}, v{S+j}, s{sC}, -v{vMCn}")
    for j in range(8):
        e(f"  v_exp_f32 v{S+j}, v{S+j}")
    for i in range(16):
        e(f"  v_pk_mul_f32 {vr(O+2*i,2)}, {vr(O+2*i,2)}, {vr(vAl,2)} op_sel_hi:[1,0]")
    for jp in range(4):
        e(f"  v_cvt_pk_bf16_f32 v{P+jp}, v{S+2*jp}, v{S+2*jp+1}")
    e(f"  v_mul_f32 v{vL}, v{vL}, v{vAl}")
    e(f"  v_add_f32 v{t0}, v{S}, v{S+1}")
    for ee in range(8):
        e(f"  v_mfma_f32_16x16x32_bf16 {vr(O+4*ee,4)}, {vr(VT+4*ee,4)}, {vr(P,4)}, {vr(O+4*ee,4)}")
        if ee == 0:
            e(f"  v_add_f32 v{t1}, v{S+2}, v{S+3}")
            e(f"  v_add_f32 v{tA}, v{S+4}, v{S+5}")
        if ee == 1:
            e(f"  v_add_f32 v{tB}, v{S+6}, v{S+7}")
            e(f"  v_add_f32 v{t0}, v{t0}, v{t1}")
        if ee == 2:
            e(f"  v_add_f32 v{tA}, v{tA}, v{tB}")
            e(f"  v_add_f32 v{vL}, v{vL}, v{t0}")
        if ee == 3:
            e(f"  v_add_f32 v{vL}, v{vL}, v{tA}")
    e(f"  s_sub_u32 s{sLeft}, s{sLeft}, 1")
    e(f"  s_cmp_lg_u32 s{sLeft}, 0")
    e("  s_cbranch_scc1 L_loop")
    e("L_phase_end:")
    reduce_l()
    e(f"  v_and_b32 v{tA}, 15, v0")
    e(f"  v_lshrrev_b32 v{tB}, 4, v0")
    e(f"  s_cmp_lg_u32 s{sPh}, 0")
    e("  s_cbranch_scc1 L_final")
    e(f"  s_mul_i32 s{sTmp}, s{sW}, {FPART}")
    e(f"  s_add_u32 s{sTmp}, s{sTmp}, {FB}")
    e(f"  v_mul_u32_u24 v{t0}, 144, v{tA}")
    e(f"  v_mul_u32_u24 v{t1}, 2304, v{tB}")
    e(f"  v_add3_u32 v{t0}, v{t0}, v{t1}, s{sTmp}")
    e(f"  s_lshl_b32 s{sTmp}, s{sW}, 3")
    e(f"  s_add_u32 s{sTmp}, s{sTmp}, {FST}")
    e(f"  v_lshl_add_u32 v{t1}, v{tA}, 5, s{sTmp}")
    e(f"  ds_write_b64 v{t1}, {vr(vMC,2)}")
    for ee in range(8):
        e(f"  ds_write_b128 v{t0}, {vr(O+4*ee,4)} offset:{16*ee}")
    e(f"  v_lshlrev_b32 v{t1}, 4, v0")
    e(f"  v_add_u32 v{t1}, {Q2}, v{t1}")
    e("  s_waitcnt lgkmcnt(0)")
    e("  s_barrier")
    for kk in range(4):
        e(f"  ds_read_b128 {vr(Q+4*kk,4)}, v{t1} offset:{kk*1024}")
    init_state()
    e(f"  s_mov_b32 s{sPh}, 0x1000")
    e(f"  s_mov_b32 s{sRem}, s{sRem2}")
    e(f"  s_mov_b32 s{sLeft}, s{sN2}")
    e("  s_waitcnt lgkmcnt(0)")
    st(2)
    e(f"  s_cmp_eq_u32 s{sLeft}, 0")
    e("  s_cbranch_scc1 L_phase_end")
    e(f"  s_branch L_loop")

    e("L_event:")
    e(f"  s_cmp_eq_u32 s{sPh}, 0")
    e("  s_cbranch_scc1 L_getinfo")
    e(f"  v_mov_b32 v{t1}, {FLG}")
    e(f"  ds_write_b32 v{t1}, v{t1} offset:4")
    e(f"  s_setpc_b64 {sr(sRET,2)}")
    e("L_getinfo:")
    e(f"  v_mov_b32 v{t1}, {REC}")
    e(f"  s_lshl_b32 s{sTmp}, s{sW}, 8")
    e(f"  s_add_u32 s{sTmp}, s{sTmp}, {LST}")
    e(f"  v_lshl_add_u32 v{t0}, v0, 2, s{sTmp}")
    e("L_gi_poll:")
    e(f"  ds_read_b32 v{tC}, v{t1} offset:32")
    e("  s_waitcnt lgkmcnt(0)")
    e(f"  v_readfirstlane_b32 s{sTmp}, v{tC}")
    e("  s_nop 0")
    e(f"  s_cmp_eq_u32 s{sTmp}, 0")
    e("  s_cbranch_scc1 L_gi_poll")
    e(f"  ds_read_b32 v{vBT}, v{t0}")
    e(f"  ds_read_b128 {vr(S,4)}, v{t1}")
    e(f"  ds_read_b32 v{tC}, v{t1} offset:16")
    e("  s_waitcnt lgkmcnt(0)")
    e(f"  v_readfirstlane_b32 s{sEv}, v{tC}")
    e(f"  v_readfirstlane_b32 s{sOB}, v{S}")
    e(f"  v_readfirstlane_b32 s{sCL2}, v{S+1}")
    e(f"  v_readfirstlane_b32 s{sA2}, v{S+2}")
    e(f"  v_readfirstlane_b32 s{sX2}, v{S+3}")
    modNS_sub(sTmp, f"s{sW}", sA1, sT4)
    e(f"  s_add_u32 s{sN2}, s{sX2}, {NS-1}")
    e(f"  s_sub_u32 s{sN2}, s{sN2}, s{sTmp}")
    divNS(sN2)
    e(f"  s_add_u32 s{sTmp}, s{sTmp}, s{sA2}")
    e(f"  s_lshl_b32 s{sTmp}, s{sTmp}, 5")
    e(f"  s_sub_i32 s{sRem2}, s{sCL2}, s{sTmp}")
    e(f"  s_cmp_eq_u32 s{sW}, 0")
    e(f"  s_cselect_b32 s{sEv}, s{sEv}, -1")
    e(f"  s_setpc_b64 {sr(sRET,2)}")

    e("L_final:")
    st(3)
    e(f"  v_mov_b32 v{t1}, {FLG}")
    e(f"  ds_write_b32 v{t1}, v{t1} offset:4")
    e(f"  s_mul_i32 s{sTmp}, s{sW}, {GPART}")
    e(f"  s_add_u32 s{sTmp}, s{sTmp}, {GB}")
    e(f"  v_mul_u32_u24 v{t0}, {ROWB}, v{tA}")
    e(f"  v_lshl_add_u32 v{t0}, v{tB}, 7, v{t0}")
    e(f"  v_add_u32 v{t0}, s{sTmp}, v{t0}")
    e(f"  s_lshl_b32 s{sTmp}, s{sW}, 3")
    e(f"  s_add_u32 s{sTmp}, s{sTmp}, {GST}")
    e(f"  v_lshl_add_u32 v{t1}, v{tA}, 6, s{sTmp}")
    e(f"  ds_write_b64 v{t1}, {vr(vMC,2)}")
    for ee in range(8):
        e(f"  ds_write_b128 v{t0}, {vr(O+4*ee,4)} offset:{16*ee}")
    e("L_b2:")
    srd(sO, 14, Q_BYTES)
    e(f"  s_lshl_b32 s{sTmp}, s{sW}, 2")
    e(f"  v_lshrrev_b32 v{tA}, 5, v0")
    e(f"  v_add_u32 v{tA}, s{sTmp}, v{tA}")
    e(f"  v_and_b32 v{tB}, 31, v0")
    e(f"  v_mul_u32_u24 v{t0}, {ROWB}, v{tA}")
    e(f"  v_lshl_add_u32 v{t0}, v{tB}, 4, v{t0}")
    e(f"  v_add_u32 v{t0}, {GB}, v{t0}")
    e(f"  v_lshlrev_b32 v{t1}, 6, v{tA}")
    e(f"  v_add_u32 v{t1}, {GST}, v{t1}")
    e(f"  v_lshrrev_b32 v{tC}, 3, v{tB}")
    e(f"  v_and_b32 v{tB}, 7, v{tB}")
    e(f"  v_lshlrev_b32 v{tA}, 8, v{tA}")
    e(f"  v_lshl_add_u32 v{tA}, v{tC}, 6, v{tA}")
    e(f"  v_lshl_add_u32 v{tA}, v{tB}, 1, v{tA}")
    e("  s_waitcnt lgkmcnt(0)")
    e("  s_barrier")
    if NWT > 4:
        e(f"  s_cmp_ge_u32 s{sW}, 4")
        e("  s_cbranch_scc1 L_stamp" if stamp else "  s_cbranch_scc1 L_end")
    nst = (NP + 1) // 2
    for ch in range(2):
        ST = KT + 12 * ch
        for u in range(nst):
            if 2 * u + 1 < NP:
                e(f"  ds_read_b128 {vr(ST+4*u,4)}, v{t1} offset:{ch*128+16*u}")
            else:
                e(f"  ds_read_b64 {vr(ST+4*u,2)}, v{t1} offset:{ch*128+16*u}")
    PBs = [VT, O]
    for ch in range(2):
        for u in range(NP):
            if 2 * nst + ch * NP + u == 15:
                e(f"  s_waitcnt lgkmcnt({2*NP-1})")
            e(f"  ds_read_b128 {vr(PBs[ch]+4*u,4)}, v{t0} offset:{u*GPART + ch*2*ROWB}")
    e(f"  s_waitcnt lgkmcnt({2*NP})")
    for ch in range(2):
        ST = KT + 12 * ch
        m, l = KT + 24 + 2 * ch, KT + 24 + 2 * ch + 1
        e(f"  v_max3_f32 v{m}, v{ST}, v{ST+2}, v{ST+4}")
        if NP == 4:
            e(f"  v_max_f32 v{m}, v{m}, v{ST+6}")
        if NP == 5:
            e(f"  v_max3_f32 v{m}, v{m}, v{ST+6}, v{ST+8}")
        for u in range(NP):
            e(f"  v_sub_f32 v{ST+2*u}, v{ST+2*u}, v{m}")
        for u in range(NP):
            e(f"  v_exp_f32 v{ST+2*u}, v{ST+2*u}")
        e("  s_nop 0")
        e(f"  v_mul_f32 v{l}, v{ST}, v{ST+1}")
        for u in range(1, NP):
            e(f"  v_fmac_f32 v{l}, v{ST+2*u}, v{ST+2*u+1}")
        e(f"  v_rcp_f32 v{l}, v{l}")
    for ch in range(2):
        ST = KT + 12 * ch
        PB = PBs[ch]
        l = KT + 24 + 2 * ch + 1
        R = S + 4 * ch
        e(f"  s_waitcnt lgkmcnt({NP*(1-ch)})")
        for i in range(4):
            e(f"  v_mul_f32 v{R+i}, v{ST}, v{PB+i}")
        for u in range(1, NP):
            for i in range(4):
                e(f"  v_fmac_f32 v{R+i}, v{ST+2*u}, v{PB+4*u+i}")
        for i in range(4):
            e(f"  v_mul_f32 v{R+i}, v{R+i}, v{l}")
        e(f"  v_cvt_pk_bf16_f32 v{P+2*ch}, v{R}, v{R+1}")
        e(f"  v_cvt_pk_bf16_f32 v{P+2*ch+1}, v{R+2}, v{R+3}")
        e(f"  buffer_store_short v{P+2*ch}, v{tA}, {sr(sO,4)}, s{sOB} offen offset:{ch*512}")
        e(f"  buffer_store_short_d16_hi v{P+2*ch}, v{tA}, {sr(sO,4)}, s{sOB} offen offset:{ch*512+16}")
        e(f"  buffer_store_short v{P+2*ch+1}, v{tA}, {sr(sO,4)}, s{sOB} offen offset:{ch*512+32}")
        e(f"  buffer_store_short_d16_hi v{P+2*ch+1}, v{tA}, {sr(sO,4)}, s{sOB} offen offset:{ch*512+48}")
    if stamp:
        e("  s_waitcnt vmcnt(0)")
        e(f"  s_cmp_ge_u32 s{sW}, {NS}")
        e("  s_cbranch_scc1 L_stamp")
        st(4)
        e("  s_branch L_stamp")
    else:
        e("  s_endpgm")

    if NWT > NS + 1:
        e("L_helper:")
        e("  s_barrier")
        e("  s_barrier")
        e(f"  v_mov_b32 v{t1}, {REC}")
        e(f"  ds_read_b32 v{t0}, v{t1}")
        e("  s_waitcnt lgkmcnt(0)")
        e(f"  v_readfirstlane_b32 s{sOB}, v{t0}")
        e("  s_branch L_b2")

    e("L_service:")
    if NWT > NS + 1:
        e(f"  s_cmp_gt_u32 s{sW}, {NS}")
        e("  s_cbranch_scc1 L_helper")
    e("  s_setprio 3")
    vC, vN, vNT, vKey, vRk = 32, 33, 34, 35, 36
    vI, vPar = tC, tD
    e(f"  v_mov_b32 v{vRk}, 0")
    e(f"  v_mov_b32 v{vNON+2}, 0")
    e(f"  v_mov_b32 v{vNON+3}, 0")
    e(f"  v_mov_b32 v{t0}, {FLG}")
    e(f"  ds_write_b64 v{t0}, {vr(vNON+2,2)}")
    e(f"  v_and_b32 v{vKey}, 31, v0")
    e(f"  v_lshlrev_b32 v{t0}, 2, v{vKey}")
    e(f"  s_mov_b32 s{sT2}, 2048")
    e("  s_waitcnt lgkmcnt(0)")
    if stamp:
        e(f"  s_mov_b32 s{sST}, s100")
    srd(sK, 12, 128)
    e(f"  buffer_load_dword v{vC}, v{t0}, {sr(sK,4)}, 0 offen")
    e(f"  s_memrealtime {sr(sNON,2)}")
    e("  s_barrier")
    srd(sBT, 10, 32 * 128 * 4)
    srd(sQ, 4, Q_BYTES)
    srd(sWS, sDBG + 2, 256 * SLOTB)
    e(f"  s_xor_b32 s{sH2}, s{sH}, {hx}")
    e("  s_waitcnt vmcnt(0)")
    e(f"  v_max_i32 v{vC}, 0, v{vC}")
    e(f"  v_cmp_eq_u32 vcc, 0, v{vC}")
    e(f"  v_min_u32 v{vN}, s{sT2}, v{vC}")
    e(f"  v_mov_b32 v{t0}, s{sT2}")
    e(f"  v_cndmask_b32 v{vN}, v{vN}, v{t0}, vcc")
    e(f"  v_lshl_add_u32 v{vKey}, v{vN}, 5, v{vKey}")
    e("  s_nop 0")
    for g in range(4):
        for j in range(8):
            e(f"  v_readlane_b32 s{56+j}, v{vKey}, {8*g+j}")
        for j in range(8):
            e(f"  v_cmp_lt_u32 {sr(sM+2*j,2)}, s{56+j}, v{vKey}")
        for j in range(8):
            e(f"  v_addc_co_u32 v{vRk}, vcc, 0, v{vRk}, {sr(sM+2*j,2)}")
    e("  s_nop 0")
    e(f"  v_readlane_b32 s{sTmp}, v{vRk}, s{sB}")
    e("  s_nop 0")
    e(f"  s_sub_u32 s{sTmp}, 31, s{sTmp}")
    e(f"  v_cmp_eq_u32 vcc, s{sTmp}, v{vRk}")
    e(f"  v_readlane_b32 s{sNB}, v{vN}, s{sB}")
    e("  s_nop 3")
    e(f"  s_ff1_i32_b64 s{sB2}, vcc")
    e(f"  s_and_b32 s{sB2}, s{sB2}, 31")
    e(f"  v_cmp_eq_u32 vcc, 31, v{vRk}")
    e(f"  v_readlane_b32 s{sNB2}, v{vN}, s{sB2}")
    e(f"  v_readlane_b32 s{sCL2}, v{vC}, s{sB2}")
    e("  s_nop 2")
    e(f"  s_ff1_i32_b64 s{sTmp}, vcc")
    e(f"  v_readlane_b32 s{sEv}, v{vN}, s{sTmp}")
    split_point(sA1, sNB)
    e(f"  s_add_u32 s{sNB}, s{sNB}, 15")
    e(f"  s_lshr_b32 s{sNB}, s{sNB}, 4")
    split_point(sA2, sNB2)
    e(f"  s_add_u32 s{sX2}, s{sNB2}, 31")
    e(f"  s_lshr_b32 s{sX2}, s{sX2}, 5")
    e(f"  s_sub_u32 s{sX2}, s{sX2}, s{sA2}")
    e(f"  s_add_u32 s{sNB2}, s{sNB2}, 15")
    e(f"  s_lshr_b32 s{sNB2}, s{sNB2}, 4")
    split_point(sEv, sEv)
    e(f"  s_add_u32 s{sTmp}, s{sA1}, s{sX2}")
    e(f"  s_mul_i32 s{sTmp}, s{sTmp}, {pf}")
    e(f"  s_lshr_b32 s{sTmp}, s{sTmp}, 8")
    e(f"  s_min_u32 s{sEv}, s{sEv}, s{sTmp}")
    e(f"  s_add_u32 s{sEv}, s{sEv}, {NS-1}")
    divNS(sEv)
    e(f"  s_add_u32 s{sN2}, s{sA1}, {NS-1}")
    divNS(sN2)
    modNS_sub(sTmp, "0", sA1, sT4)
    e(f"  s_add_u32 s{sT4}, s{sX2}, {NS-1}")
    e(f"  s_sub_u32 s{sT4}, s{sT4}, s{sTmp}")
    divNS(sT4)
    e(f"  s_cmp_gt_u32 s{sEv}, s{sN2}")
    e(f"  s_cselect_b32 s{sPh}, 1, 0")
    e(f"  s_add_u32 s{sT4}, s{sT4}, s{sN2}")
    e(f"  s_sub_i32 s{sEv}, s{sT4}, s{sEv}")
    e(f"  s_add_u32 s{sEv}, s{sEv}, 0x1000")
    e(f"  s_lshl_b32 s{sT2}, s{sB}, 9")
    e(f"  s_lshl_b32 s{sT3}, s{sB2}, 9")
    e(f"  s_lshl_b32 s{sX}, s{sB2}, 3")
    e(f"  s_add_u32 s{sX}, s{sX}, s{sH2}")
    e(f"  s_lshl_b32 s{sOB}, s{sX}, 12")
    LB = 40
    for w in range(NS):
        e(f"  s_add_u32 s{sN2}, s{sA1}, {NS-1-w}")
        divNS(sN2)
        modNS_sub(sTmp, str(w), sA1, sT4)
        e(f"  s_add_u32 s{sTmp}, s{sTmp}, s{sA2}")
        e(f"  s_mul_i32 s{sT4}, s{sN2}, {NS}")
        e(f"  s_sub_u32 s{sTmp}, s{sTmp}, s{sT4}")
        e(f"  v_cmp_gt_u32 vcc, s{sN2}, v{vI}")
        e(f"  v_mov_b32 v{t0}, s{sTmp}")
        e(f"  v_mov_b32 v{vAl}, s{sNB2}")
        e(f"  v_mov_b32 v{vAl+1}, {w}")
        e(f"  v_cndmask_b32 v{t0}, v{t0}, v{vAl+1}, vcc")
        e(f"  v_mad_u32_u24 v{t0}, v{vI}, {NS}, v{t0}")
        e(f"  v_lshl_add_u32 v{LB+w}, v{t0}, 1, v{vPar}")
        e(f"  v_mov_b32 v{vAl+1}, s{sNB}")
        e(f"  v_cndmask_b32 v{LB+8+w}, v{vAl}, v{vAl+1}, vcc")
        e(f"  v_mov_b32 v{vAl}, s{sT3}")
        e(f"  v_mov_b32 v{vAl+1}, s{sT2}")
        e(f"  v_cndmask_b32 v{t0}, v{vAl}, v{vAl+1}, vcc")
        e(f"  v_lshl_add_u32 v{t0}, v{LB+w}, 2, v{t0}")
        e(f"  buffer_load_dword v{LB+4+w}, v{t0}, {sr(sBT,4)}, 0 offen")
        e(f"  v_mov_b32 v{vAl}, s{sH2}")
        e(f"  v_mov_b32 v{vAl+1}, s{sH}")
        e(f"  v_cndmask_b32 v{LB+12+w}, v{vAl}, v{vAl+1}, vcc")
        e(f"  v_lshlrev_b32 v{LB+12+w}, 8, v{LB+12+w}")
    for kk in range(4):
        e(f"  s_mov_b32 m0, {Q2 + kk*960}")
        e("  s_nop 0")
        e(f"  buffer_load_dwordx4 v{t1}, {sr(sQ,4)}, s{sOB} offen offset:{kk*64} lds")
    e("  s_waitcnt lgkmcnt(0)")
    e(f"  s_or_b32 s{sNON}, s{sNON}, 1")
    e(f"  v_mov_b32 v{vNON}, s{sNON}")
    e(f"  v_mov_b32 v{vNON+1}, s{sNON+1}")
    e(f"  s_mov_b64 {sr(sM,2)}, exec")
    e(f"  v_mov_b32 v{S}, s{sOB}")
    e(f"  v_mov_b32 v{S+1}, s{sCL2}")
    e(f"  v_mov_b32 v{S+2}, s{sA2}")
    e(f"  v_mov_b32 v{S+3}, s{sX2}")
    e(f"  v_mov_b32 v{vKey}, {REC}")
    e(f"  ds_write_b128 v{vKey}, {vr(S,4)}")
    e(f"  v_mov_b32 v{S}, s{sEv}")
    e(f"  ds_write_b32 v{vKey}, v{S} offset:16")
    e(f"  v_lshlrev_b32 v{t0}, 2, v0")
    e(f"  v_add_u32 v{t0}, {LST}, v{t0}")
    e(f"  v_mov_b32 v{vAl}, {hex(OOB)}")
    for w in range(NS):
        e(f"  v_cmp_lt_u32 vcc, v{LB+w}, v{LB+8+w}")
        e(f"  s_waitcnt vmcnt({4+NS-1-w})")
        e(f"  v_lshl_add_u32 v{LB+4+w}, v{LB+4+w}, 15, v{LB+12+w}")
        e(f"  v_cndmask_b32 v{LB+4+w}, v{vAl}, v{LB+4+w}, vcc")
        e(f"  ds_write_b32 v{t0}, v{LB+4+w} offset:{w*256}")
    e(f"  v_mov_b32 v{vAl}, 1")
    e("  s_waitcnt lgkmcnt(0)")
    e(f"  ds_write_b32 v{vKey}, v{vAl} offset:32")
    st(1)
    e(f"  s_cmp_lg_u32 s2, 0")
    e("  s_cbranch_scc1 L_nocas")
    e("  s_mov_b64 exec, 1")
    e(f"  global_atomic_cmpswap_x2 v{vNON+2}, {vr(vNON,4)}, {sr(sDBG,2)} sc1")
    e(f"  s_mov_b64 exec, {sr(sM,2)}")
    e("L_nocas:")
    e(f"  v_mul_u32_u24 v{t0}, 144, v{tA}")
    e(f"  v_mul_u32_u24 v{t1}, 2304, v{tB}")
    e(f"  v_add_u32 v{t0}, v{t0}, v{t1}")
    e(f"  v_add_u32 v{t0}, {FB}, v{t0}")
    e(f"  v_lshlrev_b32 v{t1}, 5, v{tA}")
    e(f"  v_add_u32 v{t1}, {FST}, v{t1}")
    e(f"  v_lshlrev_b32 v{tC}, 4, v0")
    e(f"  v_lshlrev_b32 v{tD}, 2, v0")
    e(f"  s_mul_i32 s{sT2}, s2, {SLOTB}")
    e(f"  s_mul_i32 s{sT3}, s{sX}, {SLOTB}")
    e("  s_waitcnt vmcnt(0) lgkmcnt(0)")
    e("  s_barrier")
    if nohand:
        e("  s_branch L_b2")
    e(f"  global_load_dwordx2 {vr(vNON+4,2)}, v{vNON+2}, {sr(sDBG,2)} sc1")
    ST = 32
    R = 40
    PB = 72
    e(f"  ds_read_b128 {vr(ST,4)}, v{t1}")
    if NS > 2:
        e(f"  ds_read_b128 {vr(ST+4,4)}, v{t1} offset:16")
    for ee in range(2):
        for u in range(NS):
            e(f"  ds_read_b128 {vr(PB+4*NS*ee+4*u,4)}, v{t0} offset:{u*FPART+16*ee}")
    e(f"  s_waitcnt lgkmcnt({2*NS})")
    e(f"  v_max_f32 v{vMC}, v{ST}, v{ST+2}")
    for u in range(2, NS):
        e(f"  v_max_f32 v{vMC}, v{vMC}, v{ST+2*u}")
    for u in range(NS):
        e(f"  v_sub_f32 v{ST+2*u}, v{ST+2*u}, v{vMC}")
    for u in range(NS):
        e(f"  v_exp_f32 v{ST+2*u}, v{ST+2*u}")
    e("  s_nop 0")
    e(f"  v_mul_f32 v{vL}, v{ST}, v{ST+1}")
    for u in range(1, NS):
        e(f"  v_fmac_f32 v{vL}, v{ST+2*u}, v{ST+2*u+1}")
    for ee in range(8):
        if ee + 2 < 8:
            for u in range(NS):
                e(f"  ds_read_b128 {vr(PB+4*NS*(ee+2)+4*u,4)}, v{t0} offset:{u*FPART+16*(ee+2)}")
        rem = min(8 - 1 - ee, 2) * NS
        e(f"  s_waitcnt lgkmcnt({rem})")
        for i in range(4):
            e(f"  v_mul_f32 v{R+4*ee+i}, v{ST}, v{PB+4*NS*ee+i}")
        for u in range(1, NS):
            for i in range(4):
                e(f"  v_fmac_f32 v{R+4*ee+i}, v{ST+2*u}, v{PB+4*NS*ee+4*u+i}")
    e("  s_waitcnt vmcnt(0)")
    e(f"  v_readfirstlane_b32 s{sT4}, v{vNON+4}")
    e(f"  v_readfirstlane_b32 s{sT5}, v{vNON+5}")
    e("  s_nop 0")
    e(f"  s_cmp_lg_u32 s{sT4}, 0")
    e("  s_cbranch_scc1 L_havenonce")
    e("  s_mov_b64 exec, 1")
    e(f"  global_atomic_cmpswap_x2 {vr(vNON+4,2)}, v{vNON+2}, {vr(vNON,4)}, {sr(sDBG,2)} sc0 sc1")
    e(f"  s_mov_b64 exec, {sr(sM,2)}")
    e("  s_waitcnt vmcnt(0)")
    e(f"  v_readfirstlane_b32 s{sT4}, v{vNON+4}")
    e(f"  v_readfirstlane_b32 s{sT5}, v{vNON+5}")
    e("  s_nop 0")
    e(f"  s_cmp_lg_u32 s{sT4}, 0")
    e(f"  s_cselect_b32 s{sT4}, s{sT4}, s{sNON}")
    e(f"  s_cselect_b32 s{sT5}, s{sT5}, s{sNON+1}")
    e("L_havenonce:")
    e(f"  s_mov_b32 s{sNON}, s{sT4}")
    e(f"  s_mov_b32 s{sNON+1}, s{sT5}")
    e(f"  v_mov_b32 v{vNON}, s{sT4}")
    e(f"  v_mov_b32 v{vNON+1}, s{sT5}")
    e(f"  s_cmp_eq_u32 s{sPh}, 0")
    e("  s_cbranch_scc1 L_publish")
    e(f"  v_mov_b32 v{t0}, {FLG}")
    e("L_trig:")
    e("  s_sleep 2")
    e(f"  ds_read_b32 v{t1}, v{t0} offset:4")
    e("  s_waitcnt lgkmcnt(0)")
    e(f"  v_readfirstlane_b32 s{sTmp}, v{t1}")
    e("  s_nop 0")
    e(f"  s_cmp_eq_u32 s{sTmp}, 0")
    e("  s_cbranch_scc1 L_trig")
    e("L_publish:")
    e(f"  s_add_u32 s{sT4}, s{sT2}, 4096")
    e(f"  s_add_u32 s{sT5}, s{sT2}, 8192")
    for ee in range(8):
        e(f"  buffer_store_dwordx4 {vr(R+4*ee,4)}, v{tC}, {sr(sWS,4)}, s{sT2 if ee < 4 else sT4} offen offset:{(ee&3)*1024} sc1")
    e(f"  buffer_store_dword v{vMC}, v{tD}, {sr(sWS,4)}, s{sT5} offen sc1")
    e(f"  buffer_store_dword v{vL}, v{tD}, {sr(sWS,4)}, s{sT5} offen offset:256 sc1")
    e(f"  s_add_u32 s{sT4}, s{sT3}, 8704")
    e("  s_waitcnt vmcnt(0)")
    e("  s_mov_b64 exec, 1")
    e(f"  buffer_store_dwordx2 {vr(vNON,2)}, v{vNON+2}, {sr(sWS,4)}, s{sT5} offen offset:512 sc1")
    e(f"  s_mov_b32 s{sT5}, 0x40000")
    st(2)
    e("L_poll:")
    e(f"  buffer_load_dwordx2 {vr(vNON+4,2)}, v{vNON+2}, {sr(sWS,4)}, s{sT4} offen sc1")
    e("  s_waitcnt vmcnt(0)")
    e(f"  v_readfirstlane_b32 s{sN2}, v{vNON+4}")
    e(f"  v_readfirstlane_b32 s{sN2+1}, v{vNON+5}")
    e("  s_nop 0")
    e(f"  s_cmp_eq_u64 {sr(sN2,2)}, {sr(sNON,2)}")
    e("  s_cbranch_scc1 L_got")
    e(f"  s_sleep {sleep}")
    e(f"  s_sub_u32 s{sT5}, s{sT5}, 1")
    e(f"  s_cmp_lg_u32 s{sT5}, 0")
    e("  s_cbranch_scc1 L_poll")
    e("L_got:")
    e(f"  s_mov_b64 exec, {sr(sM,2)}")
    st(3)
    e(f"  s_add_u32 s{sT4}, s{sT3}, 8192")
    e(f"  buffer_load_dword v{vMC}, v{tD}, {sr(sWS,4)}, s{sT4} offen sc1")
    e(f"  buffer_load_dword v{vL}, v{tD}, {sr(sWS,4)}, s{sT4} offen offset:256 sc1")
    e(f"  s_add_u32 s{sT4}, s{sT3}, 4096")
    for ee in range(8):
        e(f"  buffer_load_dwordx4 {vr(R+4*ee,4)}, v{tC}, {sr(sWS,4)}, s{sT3 if ee < 4 else sT4} offen offset:{(ee&3)*1024} sc1")
    e(f"  v_mul_u32_u24 v{t0}, {ROWB}, v{tA}")
    e(f"  v_lshl_add_u32 v{t0}, v{tB}, 7, v{t0}")
    e(f"  v_add_u32 v{t0}, {GB + NS*GPART}, v{t0}")
    e(f"  v_lshlrev_b32 v{t1}, 6, v{tA}")
    e(f"  v_add_u32 v{t1}, {GST + 8*NS}, v{t1}")
    e("  s_waitcnt vmcnt(8)")
    e(f"  ds_write_b64 v{t1}, {vr(vMC,2)}")
    for ee in range(8):
        e(f"  s_waitcnt vmcnt({7-ee})")
        e(f"  ds_write_b128 v{t0}, {vr(R+4*ee,4)} offset:{16*ee}")
    e("  s_waitcnt lgkmcnt(0)")
    st(4)
    e("  s_branch L_b2")
    if stamp:
        e("L_stamp:")
        e(f"  s_mul_i32 s{sTmp}, s2, {NWT}")
        e(f"  s_add_u32 s{sTmp}, s{sTmp}, s{sW}")
        e(f"  s_lshl_b32 s{sTmp}, s{sTmp}, 5")
        e(f"  s_add_u32 s{sTmp}, s{sTmp}, {256*SLOTB}")
        e(f"  v_mov_b32 v{t0}, s{sTmp}")
        for i in range(5):
            e(f"  v_mov_b32 v{S+i}, s{sST+i}")
        e("  s_getreg_b32 s100, hwreg(HW_REG_XCC_ID)")
        e(f"  v_mov_b32 v{S+5}, s100")
        e(f"  v_mov_b32 v{S+6}, s{sA1}")
        e(f"  v_mov_b32 v{S+7}, s{sX2}")
        e("  s_mov_b64 exec, 1")
        e(f"  global_store_dwordx4 v{t0}, {vr(S,4)}, {sr(sDBG+2,2)}")
        e(f"  global_store_dwordx4 v{t0}, {vr(S+4,4)}, {sr(sDBG+2,2)} offset:16")
    e("L_end:")
    e("  s_endpgm")
    e('.section .rodata,"a"')
    e(".p2align 6")
    e(f".amdhsa_kernel {NAME}")
    e(f"  .amdhsa_next_free_vgpr {NV}")
    e("  .amdhsa_next_free_sgpr 102")
    e(f"  .amdhsa_accum_offset {(NV+3)//4*4}")
    e("  .amdhsa_group_segment_fixed_size 0")
    e("  .amdhsa_kernarg_size 64")
    e("  .amdhsa_user_sgpr_count 2")
    e("  .amdhsa_user_sgpr_kernarg_segment_ptr 1")
    e("  .amdhsa_system_sgpr_workgroup_id_x 1")
    e(".end_amdhsa_kernel")
    return "\n".join(L) + "\n"


if __name__ == "__main__":
    ap = argparse.ArgumentParser()
    ap.add_argument("-o", required=True)
    ap.add_argument("--ns", type=int, default=2)
    ap.add_argument("--kfl", default="nt")
    ap.add_argument("--vfl", default="nt")
    ap.add_argument("--stamp", action="store_true")
    ap.add_argument("--hx", type=int, default=1)
    ap.add_argument("--sleep", type=int, default=8)
    ap.add_argument("--nopair", action="store_true")
    ap.add_argument("--nohand", action="store_true")
    ap.add_argument("--pf", type=int, default=172)
    a = ap.parse_args()
    open(a.o, "w").write(gen(NS=a.ns, kfl=a.kfl, vfl=a.vfl, stamp=a.stamp, hx=a.hx, sleep=a.sleep, nopair=a.nopair, nohand=a.nohand, pf=a.pf))
```

```python
import sys, struct, math, argparse

NAME = "standalone__paged_block_table_kv_pagedattention__sampling_kernel"
HEADER = open("standalone__paged_block_table_kv_pagedattention__sampling.s.ref").read().split("; Override launch")[0]

KV_BYTES = 4100 * 16 * 8 * 128 * 2
Q_BYTES = 32 * 32 * 4 * 128 * 2
OOB = 0x10000000
SLOTB = 9216


def f32bits(x):
    return struct.unpack("<I", struct.pack("<f", x))[0]


def gen(NS=2, kfl="nt", vfl="nt", stamp=False, hx=1, sleep=8, nopair=False, nohand=False, pf=172, cap=True):
    L = []
    e = L.append
    NWT = max(NS + 1, 4)
    NP = NS + 1
    KFL = (" " + kfl.replace("+", " ")) if kfl else ""
    VFL = (" " + vfl.replace("+", " ")) if vfl else ""
    vKo, vKr, vV0, vV1, vBT, v4r = 1, 5, 9, 10, 11, 12
    vMC, vL, vAl, vMCn = 20, 21, 22, 24
    t0, t1, tA, tB, tC, tD = 25, 26, 27, 28, 29, 30
    Q, O, S, P, KT, VT, VB = 32, 48, 80, 88, 92, 124, 156
    NV = 72 + 32 * NS if 72 + 32 * NS > 188 else 188
    sK, sV, sBT, sQ, sO, sWS = 16, 20, 24, 28, 32, 36
    (sB, sH, sW, sCL, sNB, sLeft, sIdx, sO0, sO1, sRem, sC, sSelLo, sSelHi, sTmp, sNeg, sKB,
     sN2, sRem2, sOB, sPh, sX, sA1, sT2, sT3, sT4, sT5, sB2, sH2, sA2, sNB2, sX2, sCL2) = range(40, 72)
    sEv = 97
    sM = 72
    sDBG = 88
    sST = 92
    sNON = 98
    vNON = 14
    sRET = 98
    KSLOT = 8192
    FB = NS * KSLOT
    FPART = 9216
    FST = FB + NS * FPART
    GB = FST + 16 * 4 * 8
    ROWB = 528
    GPART = 16 * ROWB
    GST = GB + NP * GPART
    LST = GST + 16 * 8 * 8
    Q2 = LST + NS * 256
    REC = Q2 + 4096
    FLG = REC + 32
    LDS = FLG + 16
    assert LDS <= 160 * 1024, LDS

    def vr(a, n):
        return f"v[{a}:{a+n-1}]"

    def sr(a, n):
        return f"s[{a}:{a+n-1}]"

    def srd(r, lo, nbytes):
        e(f"  s_mov_b32 s{r}, s{lo}")
        e(f"  s_mov_b32 s{r+1}, s{lo+1}")
        e(f"  s_mov_b32 s{r+2}, {nbytes}")
        e(f"  s_mov_b32 s{r+3}, 0x00020000")

    def st(i):
        if stamp:
            e(f"  s_memrealtime s[100:101]")
            e(f"  s_waitcnt lgkmcnt(0)")
            e(f"  s_mov_b32 s{sST+i}, s100")

    def divNS(d):
        if NS == 3:
            e(f"  s_mul_i32 s{d}, s{d}, 43691")
            e(f"  s_lshr_b32 s{d}, s{d}, 17")
        else:
            e(f"  s_lshr_b32 s{d}, s{d}, {int(math.log2(NS))}")

    def modNS_sub(d, w, a, tmp):
        if NS == 3:
            e(f"  s_mul_i32 s{tmp}, s{a}, 43691")
            e(f"  s_lshr_b32 s{tmp}, s{tmp}, 17")
            e(f"  s_mul_i32 s{tmp}, s{tmp}, 3")
            e(f"  s_sub_u32 s{tmp}, s{a}, s{tmp}")
            e(f"  s_sub_i32 s{d}, {w}, s{tmp}")
            e(f"  s_add_u32 s{tmp}, s{d}, 3")
            e(f"  s_cmp_lt_i32 s{d}, 0")
            e(f"  s_cselect_b32 s{d}, s{tmp}, s{d}")
        else:
            e(f"  s_sub_u32 s{d}, {w}, s{a}")
            e(f"  s_and_b32 s{d}, s{d}, {NS-1}")

    def loadKV():
        for T in range(2):
            e(f"  s_add_u32 m0, s{sKB}, {T*4096}")
            e(f"  s_nop 0")
            for i in range(4):
                e(f"  buffer_load_dwordx4 v{vKo+i}, {sr(sK,4)}, s{sO0+T} offen offset:{i*1024}{KFL} lds")
        for j in range(8):
            T, i = j >> 2, j & 3
            e(f"  buffer_load_dwordx4 {vr(VB+4*j,4)}, v{vV0 + (i>>1)}, {sr(sV,4)}, s{sO0+T} offen offset:{(i&1)*2048}{VFL}")

    def next_offsets():
        e(f"  v_readlane_b32 s{sO0}, v{vBT}, s{sIdx}")
        e(f"  s_add_u32 s{sIdx}, s{sIdx}, 1")
        e(f"  v_readlane_b32 s{sO1}, v{vBT}, s{sIdx}")
        e(f"  s_add_u32 s{sIdx}, s{sIdx}, 1")

    def reduce_l():
        for sw in ("32", "16"):
            e(f"  v_mov_b32 v{t1}, v{vL}")
            e("  s_nop 1")
            e(f"  v_permlane{sw}_swap_b32 v{vL}, v{t1}")
            e("  s_nop 1")
            e(f"  v_add_f32 v{vL}, v{vL}, v{t1}")

    def init_state():
        for i in range(32):
            e(f"  v_mov_b32 v{O+i}, 0")
        e(f"  v_mov_b32 v{vMC}, 0xff7fffff")
        e(f"  v_mov_b32 v{vL}, 0")

    def split_point(dst, n):
        if nopair:
            e(f"  s_add_u32 s{dst}, s{n}, 31")
            e(f"  s_lshr_b32 s{dst}, s{dst}, 5")
        else:
            e(f"  s_add_u32 s{dst}, s{n}, 63")
            e(f"  s_lshr_b32 s{dst}, s{dst}, 6")

    e(HEADER.rstrip("\n"))
    e(f"; @launch grid=(256,1,1) block=({64*NWT},1,1) lds={LDS}")
    e('.amdgcn_target "amdgcn-amd-amdhsa--gfx950"')
    e(".text")
    e(f".globl {NAME}")
    e(".p2align 8")
    e(f".type {NAME},@function")
    e(f"{NAME}:")
    e("  s_cmp_ge_u32 s2, 256")
    e("  s_cbranch_scc1 L_end")
    if stamp:
        e("  s_memrealtime s[100:101]")
    e("  s_load_dwordx8 s[4:11], s[0:1], 0")
    e("  s_load_dwordx4 s[12:15], s[0:1], 32")
    e(f"  s_load_dwordx4 {sr(sDBG,4)}, s[0:1], 48")
    e(f"  v_lshrrev_b32 v{t0}, 6, v0")
    e(f"  v_and_b32 v0, 63, v0")
    e(f"  v_readfirstlane_b32 s{sW}, v{t0}")
    e(f"  s_lshr_b32 s{sB}, s2, 3")
    e(f"  s_and_b32 s{sH}, s2, 7")
    e(f"  v_and_b32 v{tA}, 15, v0")
    e(f"  v_lshrrev_b32 v{tB}, 4, v0")
    e(f"  v_lshrrev_b32 v{tC}, 1, v0")
    e(f"  v_and_b32 v{tD}, 1, v0")
    e(f"  v_lshlrev_b32 v{t1}, 8, v{tA}")
    e(f"  v_lshl_add_u32 v{t1}, v{tB}, 4, v{t1}")
    e(f"  s_cmp_ge_u32 s{sW}, {NS}")
    e("  s_cbranch_scc1 L_service")

    e(f"  s_lshl_b32 s{sIdx}, s{sW}, 1")
    e(f"  v_mul_u32_u24 v{t0}, {2*NS}, v{tC}")
    e(f"  v_add3_u32 v{tC}, v{t0}, v{tD}, s{sIdx}")
    e(f"  s_lshl_b32 s{sNB}, s{sB}, 9")
    e(f"  v_lshl_add_u32 v{t0}, v{tC}, 2, s{sNB}")
    e(f"  s_lshl_b32 s{sRem}, s{sB}, 2")
    e(f"  s_lshl_b32 s{sT2}, s2, 12")
    e(f"  s_lshl_b32 s{sKB}, s{sW}, 13")
    e(f"  s_lshl_b32 s{sT3}, s{sH}, 8")
    e("  s_waitcnt lgkmcnt(0)")
    if stamp:
        e(f"  s_mov_b32 s{sST}, s100")
    e(f"  s_load_dword s{sCL}, s[12:13], s{sRem}")
    srd(sBT, 10, 32 * 128 * 4)
    e(f"  buffer_load_dword v{vBT}, v{t0}, {sr(sBT,4)}, 0 offen")
    srd(sQ, 4, Q_BYTES)
    for kk in range(4):
        e(f"  buffer_load_dwordx4 {vr(Q+4*kk,4)}, v{t1}, {sr(sQ,4)}, s{sT2} offen offset:{kk*64}")
    srd(sK, 6, KV_BYTES)
    srd(sV, 8, KV_BYTES)
    for i in range(4):
        e(f"  v_add_u32 v{t0}, {4*i}, v{tB}")
        e(f"  v_xor_b32 v{t1}, v{tA}, v{t0}")
        e(f"  v_lshlrev_b32 v{t0}, 11, v{t0}")
        e(f"  v_lshl_add_u32 v{vKo+i}, v{t1}, 4, v{t0}")
        if i:
            e(f"  v_subrev_u32 v{vKo+i}, {i*1024}, v{vKo+i}")
    e(f"  v_lshlrev_b32 v{vV0}, 13, v{tB}")
    e(f"  v_lshl_add_u32 v{vV0}, v{tA}, 4, v{vV0}")
    e(f"  v_add_u32 v{vV1}, 0x1000, v{vV0}")
    e(f"  s_mov_b32 s{sPh}, 0")
    e(f"  s_mov_b32 s{sEv}, 1")
    e(f"  s_mov_b32 s{sIdx}, 0")
    e("  s_barrier")
    e("  s_waitcnt lgkmcnt(0)")
    e(f"  s_max_i32 s{sCL}, s{sCL}, 0")
    e(f"  s_cmp_gt_i32 s{sCL}, 0")
    e(f"  s_cselect_b32 s{sNB}, s{sCL}, 2048")
    e(f"  s_min_u32 s{sNB}, s{sNB}, 2048")
    split_point(sA1, sNB)
    e(f"  s_add_u32 s{sLeft}, s{sA1}, {NS-1}")
    e(f"  s_sub_u32 s{sLeft}, s{sLeft}, s{sW}")
    divNS(sLeft)
    e("  s_waitcnt vmcnt(4)")
    e(f"  v_lshlrev_b32 v{vBT}, 15, v{vBT}")
    e(f"  v_add_u32 v{vBT}, s{sT3}, v{vBT}")
    e(f"  s_cmp_lg_u32 s{sLeft}, 0")
    e("  s_cbranch_scc1 L_issue")
    e(f"  s_call_b64 {sr(sRET,2)}, L_getinfo")
    e("L_issue:")
    next_offsets()
    e(f"  s_lshl_b32 s{sTmp}, s{sW}, 5")
    e(f"  s_sub_i32 s{sRem}, s{sCL}, s{sTmp}")
    loadKV()
    e(f"  v_lshlrev_b32 v{tD}, 8, v{tA}")
    e(f"  v_add_u32 v{tD}, s{sKB}, v{tD}")
    for kk in range(4):
        e(f"  v_add_u32 v{t0}, {4*kk}, v{tB}")
        e(f"  v_xor_b32 v{t0}, v{tA}, v{t0}")
        e(f"  v_lshl_add_u32 v{vKr+kk}, v{t0}, 4, v{tD}")
    e(f"  v_lshlrev_b32 v{v4r}, 2, v{tB}")
    e(f"  s_mov_b32 s{sC}, {hex(f32bits(128 ** -0.5 * math.log2(math.e)))}")
    e(f"  s_mov_b32 s{sSelLo}, 0x05040100")
    e(f"  s_mov_b32 s{sSelHi}, 0x07060302")
    e(f"  s_mov_b32 s{sNeg}, {hex(f32bits(-1e9 / (128 ** -0.5)))}")
    init_state()
    st(1)
    e(f"  s_cmp_eq_u32 s{sLeft}, 0")
    e("  s_cbranch_scc1 L_phase_end")

    e("L_loop:")
    e(f"  s_add_u32 s{sTmp}, s{sLeft}, s{sPh}")
    e(f"  s_cmp_lg_u32 s{sTmp}, s{sEv}")
    e("  s_cbranch_scc1 L_noinfo")
    e(f"  s_call_b64 {sr(sRET,2)}, L_event")
    e("L_noinfo:")
    next_offsets()
    e(f"  s_waitcnt vmcnt(8)")
    for kk in range(4):
        for T in range(2):
            e(f"  ds_read_b128 {vr(KT+16*T+4*kk,4)}, v{vKr+kk} offset:{T*4096}")
    e(f"  s_waitcnt vmcnt(0)")
    for w in range(4):
        for jp in range(4):
            a, b = VB + 4 * (2 * jp + 1) + w, VB + 4 * (2 * jp) + w
            e(f"  v_perm_b32 v{VT+4*(2*w)+jp}, v{a}, v{b}, s{sSelLo}")
            e(f"  v_perm_b32 v{VT+4*(2*w+1)+jp}, v{a}, v{b}, s{sSelHi}")
    e(f"  s_waitcnt lgkmcnt(0)")
    loadKV()
    for kk in range(4):
        for T in range(2):
            c = "0" if kk == 0 else vr(S + 4 * T, 4)
            e(f"  v_mfma_f32_16x16x32_bf16 {vr(S+4*T,4)}, {vr(KT+16*T+4*kk,4)}, {vr(Q+4*kk,4)}, {c}")
    e(f"  s_cmp_ge_i32 s{sRem}, 32")
    e(f"  s_nop 6")
    e(f"  s_cbranch_scc1 L_nomask")
    e(f"  v_sub_u32 v{t0}, s{sRem}, v{v4r}")
    e(f"  v_mov_b32 v{t1}, s{sNeg}")
    for j in range(8):
        off = 16 * (j >> 2) + (j & 3)
        e(f"  v_cmp_lt_i32 {sr(sM+2*j,2)}, {off}, v{t0}")
    e("  s_nop 1")
    for j in range(8):
        e(f"  v_cndmask_b32 v{S+j}, v{t1}, v{S+j}, {sr(sM+2*j,2)}")
    e(f"L_nomask:")
    e(f"  s_sub_i32 s{sRem}, s{sRem}, {32*NS}")
    e(f"  v_max3_f32 v{t0}, v{S}, v{S+1}, v{S+2}")
    e(f"  v_max3_f32 v{t1}, v{S+3}, v{S+4}, v{S+5}")
    e(f"  v_max3_f32 v{t0}, v{t0}, v{S+6}, v{S+7}")
    e(f"  v_max_f32 v{t0}, v{t0}, v{t1}")
    e(f"  v_mov_b32 v{t1}, v{t0}")
    e("  s_nop 1")
    e(f"  v_permlane32_swap_b32 v{t0}, v{t1}")
    e("  s_nop 1")
    e(f"  v_max_f32 v{t0}, v{t0}, v{t1}")
    e(f"  v_mov_b32 v{t1}, v{t0}")
    e("  s_nop 1")
    e(f"  v_permlane16_swap_b32 v{t0}, v{t1}")
    e("  s_nop 1")
    e(f"  v_max_f32 v{t0}, v{t0}, v{t1}")
    e(f"  v_mul_f32 v{t0}, s{sC}, v{t0}")
    e(f"  v_max_f32 v{vMCn}, v{t0}, v{vMC}")
    e(f"  v_sub_f32 v{t1}, v{vMC}, v{vMCn}")
    e(f"  v_exp_f32 v{vAl}, v{t1}")
    e(f"  v_mov_b32 v{vMC}, v{vMCn}")
    for j in range(8):
        e(f"  v_fma_f32 v{S+j}, v{S+j}, s{sC}, -v{vMCn}")
    for j in range(8):
        e(f"  v_exp_f32 v{S+j}, v{S+j}")
    for i in range(16):
        e(f"  v_pk_mul_f32 {vr(O+2*i,2)}, {vr(O+2*i,2)}, {vr(vAl,2)} op_sel_hi:[1,0]")
    for jp in range(4):
        e(f"  v_cvt_pk_bf16_f32 v{P+jp}, v{S+2*jp}, v{S+2*jp+1}")
    e(f"  v_mul_f32 v{vL}, v{vL}, v{vAl}")
    e(f"  v_add_f32 v{t0}, v{S}, v{S+1}")
    for ee in range(8):
        e(f"  v_mfma_f32_16x16x32_bf16 {vr(O+4*ee,4)}, {vr(VT+4*ee,4)}, {vr(P,4)}, {vr(O+4*ee,4)}")
        if ee == 0:
            e(f"  v_add_f32 v{t1}, v{S+2}, v{S+3}")
            e(f"  v_add_f32 v{tA}, v{S+4}, v{S+5}")
        if ee == 1:
            e(f"  v_add_f32 v{tB}, v{S+6}, v{S+7}")
            e(f"  v_add_f32 v{t0}, v{t0}, v{t1}")
        if ee == 2:
            e(f"  v_add_f32 v{tA}, v{tA}, v{tB}")
            e(f"  v_add_f32 v{vL}, v{vL}, v{t0}")
        if ee == 3:
            e(f"  v_add_f32 v{vL}, v{vL}, v{tA}")
    e(f"  s_sub_u32 s{sLeft}, s{sLeft}, 1")
    e(f"  s_cmp_lg_u32 s{sLeft}, 0")
    e("  s_cbranch_scc1 L_loop")
    e("L_phase_end:")
    reduce_l()
    e(f"  v_and_b32 v{tA}, 15, v0")
    e(f"  v_lshrrev_b32 v{tB}, 4, v0")
    e(f"  s_cmp_lg_u32 s{sPh}, 0")
    e("  s_cbranch_scc1 L_final")
    e(f"  s_mul_i32 s{sTmp}, s{sW}, {FPART}")
    e(f"  s_add_u32 s{sTmp}, s{sTmp}, {FB}")
    e(f"  v_mul_u32_u24 v{t0}, 144, v{tA}")
    e(f"  v_mul_u32_u24 v{t1}, 2304, v{tB}")
    e(f"  v_add3_u32 v{t0}, v{t0}, v{t1}, s{sTmp}")
    e(f"  s_lshl_b32 s{sTmp}, s{sW}, 3")
    e(f"  s_add_u32 s{sTmp}, s{sTmp}, {FST}")
    e(f"  v_lshl_add_u32 v{t1}, v{tA}, 5, s{sTmp}")
    e(f"  ds_write_b64 v{t1}, {vr(vMC,2)}")
    for ee in range(8):
        e(f"  ds_write_b128 v{t0}, {vr(O+4*ee,4)} offset:{16*ee}")
    e(f"  v_lshlrev_b32 v{t1}, 4, v0")
    e(f"  v_add_u32 v{t1}, {Q2}, v{t1}")
    e("  s_waitcnt lgkmcnt(0)")
    e("  s_barrier")
    for kk in range(4):
        e(f"  ds_read_b128 {vr(Q+4*kk,4)}, v{t1} offset:{kk*1024}")
    init_state()
    e(f"  s_mov_b32 s{sPh}, 0x1000")
    e(f"  s_mov_b32 s{sRem}, s{sRem2}")
    e(f"  s_mov_b32 s{sLeft}, s{sN2}")
    e("  s_waitcnt lgkmcnt(0)")
    st(2)
    e(f"  s_cmp_eq_u32 s{sLeft}, 0")
    e("  s_cbranch_scc1 L_phase_end")
    e(f"  s_branch L_loop")

    e("L_event:")
    e(f"  s_cmp_eq_u32 s{sPh}, 0")
    e("  s_cbranch_scc1 L_getinfo")
    e(f"  v_mov_b32 v{t1}, {FLG}")
    e(f"  ds_write_b32 v{t1}, v{t1} offset:4")
    e(f"  s_setpc_b64 {sr(sRET,2)}")
    e("L_getinfo:")
    e(f"  v_mov_b32 v{t1}, {REC}")
    e(f"  s_lshl_b32 s{sTmp}, s{sW}, 8")
    e(f"  s_add_u32 s{sTmp}, s{sTmp}, {LST}")
    e(f"  v_lshl_add_u32 v{t0}, v0, 2, s{sTmp}")
    e("L_gi_poll:")
    e(f"  ds_read_b32 v{tC}, v{t1} offset:32")
    e("  s_waitcnt lgkmcnt(0)")
    e(f"  v_readfirstlane_b32 s{sTmp}, v{tC}")
    e("  s_nop 0")
    e(f"  s_cmp_eq_u32 s{sTmp}, 0")
    e("  s_cbranch_scc1 L_gi_poll")
    e(f"  ds_read_b32 v{vBT}, v{t0}")
    e(f"  ds_read_b128 {vr(S,4)}, v{t1}")
    e(f"  ds_read_b32 v{tC}, v{t1} offset:16")
    e("  s_waitcnt lgkmcnt(0)")
    e(f"  v_readfirstlane_b32 s{sEv}, v{tC}")
    e(f"  v_readfirstlane_b32 s{sOB}, v{S}")
    e(f"  v_readfirstlane_b32 s{sCL2}, v{S+1}")
    e(f"  v_readfirstlane_b32 s{sA2}, v{S+2}")
    e(f"  v_readfirstlane_b32 s{sX2}, v{S+3}")
    modNS_sub(sTmp, f"s{sW}", sA1, sT4)
    e(f"  s_add_u32 s{sN2}, s{sX2}, {NS-1}")
    e(f"  s_sub_u32 s{sN2}, s{sN2}, s{sTmp}")
    divNS(sN2)
    e(f"  s_add_u32 s{sTmp}, s{sTmp}, s{sA2}")
    e(f"  s_lshl_b32 s{sTmp}, s{sTmp}, 5")
    e(f"  s_sub_i32 s{sRem2}, s{sCL2}, s{sTmp}")
    e(f"  s_cmp_eq_u32 s{sW}, 0")
    e(f"  s_cselect_b32 s{sEv}, s{sEv}, -1")
    e(f"  s_setpc_b64 {sr(sRET,2)}")

    e("L_final:")
    st(3)
    e(f"  v_mov_b32 v{t1}, {FLG}")
    e(f"  ds_write_b32 v{t1}, v{t1} offset:4")
    e(f"  s_mul_i32 s{sTmp}, s{sW}, {GPART}")
    e(f"  s_add_u32 s{sTmp}, s{sTmp}, {GB}")
    e(f"  v_mul_u32_u24 v{t0}, {ROWB}, v{tA}")
    e(f"  v_lshl_add_u32 v{t0}, v{tB}, 7, v{t0}")
    e(f"  v_add_u32 v{t0}, s{sTmp}, v{t0}")
    e(f"  s_lshl_b32 s{sTmp}, s{sW}, 3")
    e(f"  s_add_u32 s{sTmp}, s{sTmp}, {GST}")
    e(f"  v_lshl_add_u32 v{t1}, v{tA}, 6, s{sTmp}")
    e(f"  ds_write_b64 v{t1}, {vr(vMC,2)}")
    for ee in range(8):
        e(f"  ds_write_b128 v{t0}, {vr(O+4*ee,4)} offset:{16*ee}")
    e("L_b2:")
    srd(sO, 14, Q_BYTES)
    e(f"  s_lshl_b32 s{sTmp}, s{sW}, 2")
    e(f"  v_lshrrev_b32 v{tA}, 5, v0")
    e(f"  v_add_u32 v{tA}, s{sTmp}, v{tA}")
    e(f"  v_and_b32 v{tB}, 31, v0")
    e(f"  v_mul_u32_u24 v{t0}, {ROWB}, v{tA}")
    e(f"  v_lshl_add_u32 v{t0}, v{tB}, 4, v{t0}")
    e(f"  v_add_u32 v{t0}, {GB}, v{t0}")
    e(f"  v_lshlrev_b32 v{t1}, 6, v{tA}")
    e(f"  v_add_u32 v{t1}, {GST}, v{t1}")
    e(f"  v_lshrrev_b32 v{tC}, 3, v{tB}")
    e(f"  v_and_b32 v{tB}, 7, v{tB}")
    e(f"  v_lshlrev_b32 v{tA}, 8, v{tA}")
    e(f"  v_lshl_add_u32 v{tA}, v{tC}, 6, v{tA}")
    e(f"  v_lshl_add_u32 v{tA}, v{tB}, 1, v{tA}")
    e("  s_waitcnt lgkmcnt(0)")
    e("  s_barrier")
    if NWT > 4:
        e(f"  s_cmp_ge_u32 s{sW}, 4")
        e("  s_cbranch_scc1 L_stamp" if stamp else "  s_cbranch_scc1 L_end")
    nst = (NP + 1) // 2
    for ch in range(2):
        ST = KT + 12 * ch
        for u in range(nst):
            if 2 * u + 1 < NP:
                e(f"  ds_read_b128 {vr(ST+4*u,4)}, v{t1} offset:{ch*128+16*u}")
            else:
                e(f"  ds_read_b64 {vr(ST+4*u,2)}, v{t1} offset:{ch*128+16*u}")
    PBs = [VT, O]
    for ch in range(2):
        for u in range(NP):
            if 2 * nst + ch * NP + u == 15:
                e(f"  s_waitcnt lgkmcnt({2*NP-1})")
            e(f"  ds_read_b128 {vr(PBs[ch]+4*u,4)}, v{t0} offset:{u*GPART + ch*2*ROWB}")
    e(f"  s_waitcnt lgkmcnt({2*NP})")
    for ch in range(2):
        ST = KT + 12 * ch
        m, l = KT + 24 + 2 * ch, KT + 24 + 2 * ch + 1
        e(f"  v_max3_f32 v{m}, v{ST}, v{ST+2}, v{ST+4}")
        if NP == 4:
            e(f"  v_max_f32 v{m}, v{m}, v{ST+6}")
        if NP == 5:
            e(f"  v_max3_f32 v{m}, v{m}, v{ST+6}, v{ST+8}")
        for u in range(NP):
            e(f"  v_sub_f32 v{ST+2*u}, v{ST+2*u}, v{m}")
        for u in range(NP):
            e(f"  v_exp_f32 v{ST+2*u}, v{ST+2*u}")
        e("  s_nop 0")
        e(f"  v_mul_f32 v{l}, v{ST}, v{ST+1}")
        for u in range(1, NP):
            e(f"  v_fmac_f32 v{l}, v{ST+2*u}, v{ST+2*u+1}")
        e(f"  v_rcp_f32 v{l}, v{l}")
    for ch in range(2):
        ST = KT + 12 * ch
        PB = PBs[ch]
        l = KT + 24 + 2 * ch + 1
        R = S + 4 * ch
        e(f"  s_waitcnt lgkmcnt({NP*(1-ch)})")
        for i in range(4):
            e(f"  v_mul_f32 v{R+i}, v{ST}, v{PB+i}")
        for u in range(1, NP):
            for i in range(4):
                e(f"  v_fmac_f32 v{R+i}, v{ST+2*u}, v{PB+4*u+i}")
        for i in range(4):
            e(f"  v_mul_f32 v{R+i}, v{R+i}, v{l}")
        e(f"  v_cvt_pk_bf16_f32 v{P+2*ch}, v{R}, v{R+1}")
        e(f"  v_cvt_pk_bf16_f32 v{P+2*ch+1}, v{R+2}, v{R+3}")
        e(f"  buffer_store_short v{P+2*ch}, v{tA}, {sr(sO,4)}, s{sOB} offen offset:{ch*512}")
        e(f"  buffer_store_short_d16_hi v{P+2*ch}, v{tA}, {sr(sO,4)}, s{sOB} offen offset:{ch*512+16}")
        e(f"  buffer_store_short v{P+2*ch+1}, v{tA}, {sr(sO,4)}, s{sOB} offen offset:{ch*512+32}")
        e(f"  buffer_store_short_d16_hi v{P+2*ch+1}, v{tA}, {sr(sO,4)}, s{sOB} offen offset:{ch*512+48}")
    if stamp:
        e("  s_waitcnt vmcnt(0)")
        e(f"  s_cmp_ge_u32 s{sW}, {NS}")
        e("  s_cbranch_scc1 L_stamp")
        st(4)
        e("  s_branch L_stamp")
    else:
        e("  s_endpgm")

    if NWT > NS + 1:
        e("L_helper:")
        e("  s_barrier")
        e("  s_barrier")
        e(f"  v_mov_b32 v{t1}, {REC}")
        e(f"  ds_read_b32 v{t0}, v{t1}")
        e("  s_waitcnt lgkmcnt(0)")
        e(f"  v_readfirstlane_b32 s{sOB}, v{t0}")
        e("  s_branch L_b2")

    e("L_service:")
    if NWT > NS + 1:
        e(f"  s_cmp_gt_u32 s{sW}, {NS}")
        e("  s_cbranch_scc1 L_helper")
    e("  s_setprio 3")
    vC, vN, vNT, vKey, vRk = 32, 33, 34, 35, 36
    vI, vPar = tC, tD
    e(f"  v_mov_b32 v{vRk}, 0")
    e(f"  v_mov_b32 v{vNON+2}, 0")
    e(f"  v_mov_b32 v{vNON+3}, 0")
    e(f"  v_mov_b32 v{t0}, {FLG}")
    e(f"  ds_write_b64 v{t0}, {vr(vNON+2,2)}")
    e(f"  v_and_b32 v{vKey}, 31, v0")
    e(f"  v_lshlrev_b32 v{t0}, 2, v{vKey}")
    e(f"  s_mov_b32 s{sT2}, 2048")
    e("  s_waitcnt lgkmcnt(0)")
    if stamp:
        e(f"  s_mov_b32 s{sST}, s100")
    srd(sK, 12, 128)
    e(f"  buffer_load_dword v{vC}, v{t0}, {sr(sK,4)}, 0 offen")
    e(f"  s_memrealtime {sr(sNON,2)}")
    e("  s_barrier")
    srd(sBT, 10, 32 * 128 * 4)
    srd(sQ, 4, Q_BYTES)
    srd(sWS, sDBG + 2, 256 * SLOTB)
    e(f"  s_xor_b32 s{sH2}, s{sH}, {hx}")
    e("  s_waitcnt vmcnt(0)")
    e(f"  v_max_i32 v{vC}, 0, v{vC}")
    e(f"  v_cmp_eq_u32 vcc, 0, v{vC}")
    e(f"  v_min_u32 v{vN}, s{sT2}, v{vC}")
    e(f"  v_mov_b32 v{t0}, s{sT2}")
    e(f"  v_cndmask_b32 v{vN}, v{vN}, v{t0}, vcc")
    e(f"  v_lshl_add_u32 v{vKey}, v{vN}, 5, v{vKey}")
    e("  s_nop 0")
    for g in range(4):
        for j in range(8):
            e(f"  v_readlane_b32 s{56+j}, v{vKey}, {8*g+j}")
        for j in range(8):
            e(f"  v_cmp_lt_u32 {sr(sM+2*j,2)}, s{56+j}, v{vKey}")
        for j in range(8):
            e(f"  v_addc_co_u32 v{vRk}, vcc, 0, v{vRk}, {sr(sM+2*j,2)}")
    e("  s_nop 0")
    e(f"  v_readlane_b32 s{sTmp}, v{vRk}, s{sB}")
    e("  s_nop 0")
    e(f"  s_sub_u32 s{sTmp}, 31, s{sTmp}")
    e(f"  v_cmp_eq_u32 vcc, s{sTmp}, v{vRk}")
    e(f"  v_readlane_b32 s{sNB}, v{vN}, s{sB}")
    e("  s_nop 3")
    e(f"  s_ff1_i32_b64 s{sB2}, vcc")
    e(f"  s_and_b32 s{sB2}, s{sB2}, 31")
    e(f"  v_cmp_eq_u32 vcc, 31, v{vRk}")
    e(f"  v_readlane_b32 s{sNB2}, v{vN}, s{sB2}")
    e(f"  v_readlane_b32 s{sCL2}, v{vC}, s{sB2}")
    e("  s_nop 2")
    e(f"  s_ff1_i32_b64 s{sTmp}, vcc")
    e(f"  v_readlane_b32 s{sEv}, v{vN}, s{sTmp}")
    split_point(sA1, sNB)
    e(f"  s_add_u32 s{sNB}, s{sNB}, 15")
    e(f"  s_lshr_b32 s{sNB}, s{sNB}, 4")
    split_point(sA2, sNB2)
    e(f"  s_add_u32 s{sX2}, s{sNB2}, 31")
    e(f"  s_lshr_b32 s{sX2}, s{sX2}, 5")
    e(f"  s_sub_u32 s{sX2}, s{sX2}, s{sA2}")
    e(f"  s_add_u32 s{sNB2}, s{sNB2}, 15")
    e(f"  s_lshr_b32 s{sNB2}, s{sNB2}, 4")
    split_point(sEv, sEv)
    e(f"  s_add_u32 s{sTmp}, s{sA1}, s{sX2}")
    e(f"  s_mul_i32 s{sTmp}, s{sTmp}, {pf}")
    e(f"  s_lshr_b32 s{sTmp}, s{sTmp}, 8")
    e(f"  s_min_u32 s{sEv}, s{sEv}, s{sTmp}" if cap else f"  s_mov_b32 s{sEv}, s{sTmp}")
    e(f"  s_add_u32 s{sEv}, s{sEv}, {NS-1}")
    divNS(sEv)
    e(f"  s_add_u32 s{sN2}, s{sA1}, {NS-1}")
    divNS(sN2)
    modNS_sub(sTmp, "0", sA1, sT4)
    e(f"  s_add_u32 s{sT4}, s{sX2}, {NS-1}")
    e(f"  s_sub_u32 s{sT4}, s{sT4}, s{sTmp}")
    divNS(sT4)
    e(f"  s_cmp_gt_u32 s{sEv}, s{sN2}")
    e(f"  s_cselect_b32 s{sPh}, 1, 0")
    e(f"  s_add_u32 s{sT4}, s{sT4}, s{sN2}")
    e(f"  s_sub_i32 s{sEv}, s{sT4}, s{sEv}")
    e(f"  s_add_u32 s{sEv}, s{sEv}, 0x1000")
    e(f"  s_lshl_b32 s{sT2}, s{sB}, 9")
    e(f"  s_lshl_b32 s{sT3}, s{sB2}, 9")
    e(f"  s_lshl_b32 s{sX}, s{sB2}, 3")
    e(f"  s_add_u32 s{sX}, s{sX}, s{sH2}")
    e(f"  s_lshl_b32 s{sOB}, s{sX}, 12")
    LB = 40
    for w in range(NS):
        e(f"  s_add_u32 s{sN2}, s{sA1}, {NS-1-w}")
        divNS(sN2)
        modNS_sub(sTmp, str(w), sA1, sT4)
        e(f"  s_add_u32 s{sTmp}, s{sTmp}, s{sA2}")
        e(f"  s_mul_i32 s{sT4}, s{sN2}, {NS}")
        e(f"  s_sub_u32 s{sTmp}, s{sTmp}, s{sT4}")
        e(f"  v_cmp_gt_u32 vcc, s{sN2}, v{vI}")
        e(f"  v_mov_b32 v{t0}, s{sTmp}")
        e(f"  v_mov_b32 v{vAl}, s{sNB2}")
        e(f"  v_mov_b32 v{vAl+1}, {w}")
        e(f"  v_cndmask_b32 v{t0}, v{t0}, v{vAl+1}, vcc")
        e(f"  v_mad_u32_u24 v{t0}, v{vI}, {NS}, v{t0}")
        e(f"  v_lshl_add_u32 v{LB+w}, v{t0}, 1, v{vPar}")
        e(f"  v_mov_b32 v{vAl+1}, s{sNB}")
        e(f"  v_cndmask_b32 v{LB+8+w}, v{vAl}, v{vAl+1}, vcc")
        e(f"  v_mov_b32 v{vAl}, s{sT3}")
        e(f"  v_mov_b32 v{vAl+1}, s{sT2}")
        e(f"  v_cndmask_b32 v{t0}, v{vAl}, v{vAl+1}, vcc")
        e(f"  v_lshl_add_u32 v{t0}, v{LB+w}, 2, v{t0}")
        e(f"  buffer_load_dword v{LB+4+w}, v{t0}, {sr(sBT,4)}, 0 offen")
        e(f"  v_mov_b32 v{vAl}, s{sH2}")
        e(f"  v_mov_b32 v{vAl+1}, s{sH}")
        e(f"  v_cndmask_b32 v{LB+12+w}, v{vAl}, v{vAl+1}, vcc")
        e(f"  v_lshlrev_b32 v{LB+12+w}, 8, v{LB+12+w}")
    for kk in range(4):
        e(f"  s_mov_b32 m0, {Q2 + kk*960}")
        e("  s_nop 0")
        e(f"  buffer_load_dwordx4 v{t1}, {sr(sQ,4)}, s{sOB} offen offset:{kk*64} lds")
    e("  s_waitcnt lgkmcnt(0)")
    e(f"  s_or_b32 s{sNON}, s{sNON}, 1")
    e(f"  v_mov_b32 v{vNON}, s{sNON}")
    e(f"  v_mov_b32 v{vNON+1}, s{sNON+1}")
    e(f"  s_mov_b64 {sr(sM,2)}, exec")
    e(f"  v_mov_b32 v{S}, s{sOB}")
    e(f"  v_mov_b32 v{S+1}, s{sCL2}")
    e(f"  v_mov_b32 v{S+2}, s{sA2}")
    e(f"  v_mov_b32 v{S+3}, s{sX2}")
    e(f"  v_mov_b32 v{vKey}, {REC}")
    e(f"  ds_write_b128 v{vKey}, {vr(S,4)}")
    e(f"  v_mov_b32 v{S}, s{sEv}")
    e(f"  ds_write_b32 v{vKey}, v{S} offset:16")
    e(f"  v_lshlrev_b32 v{t0}, 2, v0")
    e(f"  v_add_u32 v{t0}, {LST}, v{t0}")
    e(f"  v_mov_b32 v{vAl}, {hex(OOB)}")
    for w in range(NS):
        e(f"  v_cmp_lt_u32 vcc, v{LB+w}, v{LB+8+w}")
        e(f"  s_waitcnt vmcnt({4+NS-1-w})")
        e(f"  v_lshl_add_u32 v{LB+4+w}, v{LB+4+w}, 15, v{LB+12+w}")
        e(f"  v_cndmask_b32 v{LB+4+w}, v{vAl}, v{LB+4+w}, vcc")
        e(f"  ds_write_b32 v{t0}, v{LB+4+w} offset:{w*256}")
    e(f"  v_mov_b32 v{vAl}, 1")
    e("  s_waitcnt lgkmcnt(0)")
    e(f"  ds_write_b32 v{vKey}, v{vAl} offset:32")
    st(1)
    e(f"  s_cmp_lg_u32 s2, 0")
    e("  s_cbranch_scc1 L_nocas")
    e("  s_mov_b64 exec, 1")
    e(f"  global_atomic_cmpswap_x2 v{vNON+2}, {vr(vNON,4)}, {sr(sDBG,2)} sc1")
    e(f"  s_mov_b64 exec, {sr(sM,2)}")
    e("L_nocas:")
    e(f"  v_mul_u32_u24 v{t0}, 144, v{tA}")
    e(f"  v_mul_u32_u24 v{t1}, 2304, v{tB}")
    e(f"  v_add_u32 v{t0}, v{t0}, v{t1}")
    e(f"  v_add_u32 v{t0}, {FB}, v{t0}")
    e(f"  v_lshlrev_b32 v{t1}, 5, v{tA}")
    e(f"  v_add_u32 v{t1}, {FST}, v{t1}")
    e(f"  v_lshlrev_b32 v{tC}, 4, v0")
    e(f"  v_lshlrev_b32 v{tD}, 2, v0")
    e(f"  s_mul_i32 s{sT2}, s2, {SLOTB}")
    e(f"  s_mul_i32 s{sT3}, s{sX}, {SLOTB}")
    e("  s_waitcnt vmcnt(0) lgkmcnt(0)")
    e("  s_barrier")
    if nohand:
        e("  s_branch L_b2")
    e(f"  global_load_dwordx2 {vr(vNON+4,2)}, v{vNON+2}, {sr(sDBG,2)} sc1")
    ST = 32
    R = 40
    PB = 72
    e(f"  ds_read_b128 {vr(ST,4)}, v{t1}")
    if NS > 2:
        e(f"  ds_read_b128 {vr(ST+4,4)}, v{t1} offset:16")
    for ee in range(2):
        for u in range(NS):
            e(f"  ds_read_b128 {vr(PB+4*NS*ee+4*u,4)}, v{t0} offset:{u*FPART+16*ee}")
    e(f"  s_waitcnt lgkmcnt({2*NS})")
    e(f"  v_max_f32 v{vMC}, v{ST}, v{ST+2}")
    for u in range(2, NS):
        e(f"  v_max_f32 v{vMC}, v{vMC}, v{ST+2*u}")
    for u in range(NS):
        e(f"  v_sub_f32 v{ST+2*u}, v{ST+2*u}, v{vMC}")
    for u in range(NS):
        e(f"  v_exp_f32 v{ST+2*u}, v{ST+2*u}")
    e("  s_nop 0")
    e(f"  v_mul_f32 v{vL}, v{ST}, v{ST+1}")
    for u in range(1, NS):
        e(f"  v_fmac_f32 v{vL}, v{ST+2*u}, v{ST+2*u+1}")
    for ee in range(8):
        if ee + 2 < 8:
            for u in range(NS):
                e(f"  ds_read_b128 {vr(PB+4*NS*(ee+2)+4*u,4)}, v{t0} offset:{u*FPART+16*(ee+2)}")
        rem = min(8 - 1 - ee, 2) * NS
        e(f"  s_waitcnt lgkmcnt({rem})")
        for i in range(4):
            e(f"  v_mul_f32 v{R+4*ee+i}, v{ST}, v{PB+4*NS*ee+i}")
        for u in range(1, NS):
            for i in range(4):
                e(f"  v_fmac_f32 v{R+4*ee+i}, v{ST+2*u}, v{PB+4*NS*ee+4*u+i}")
    e("  s_waitcnt vmcnt(0)")
    e(f"  v_readfirstlane_b32 s{sT4}, v{vNON+4}")
    e(f"  v_readfirstlane_b32 s{sT5}, v{vNON+5}")
    e("  s_nop 0")
    e(f"  s_cmp_lg_u32 s{sT4}, 0")
    e("  s_cbranch_scc1 L_havenonce")
    e("  s_mov_b64 exec, 1")
    e(f"  global_atomic_cmpswap_x2 {vr(vNON+4,2)}, v{vNON+2}, {vr(vNON,4)}, {sr(sDBG,2)} sc0 sc1")
    e(f"  s_mov_b64 exec, {sr(sM,2)}")
    e("  s_waitcnt vmcnt(0)")
    e(f"  v_readfirstlane_b32 s{sT4}, v{vNON+4}")
    e(f"  v_readfirstlane_b32 s{sT5}, v{vNON+5}")
    e("  s_nop 0")
    e(f"  s_cmp_lg_u32 s{sT4}, 0")
    e(f"  s_cselect_b32 s{sT4}, s{sT4}, s{sNON}")
    e(f"  s_cselect_b32 s{sT5}, s{sT5}, s{sNON+1}")
    e("L_havenonce:")
    e(f"  s_mov_b32 s{sNON}, s{sT4}")
    e(f"  s_mov_b32 s{sNON+1}, s{sT5}")
    e(f"  v_mov_b32 v{vNON}, s{sT4}")
    e(f"  v_mov_b32 v{vNON+1}, s{sT5}")
    e(f"  s_cmp_eq_u32 s{sPh}, 0")
    e("  s_cbranch_scc1 L_publish")
    e(f"  v_mov_b32 v{t0}, {FLG}")
    e("L_trig:")
    e("  s_sleep 2")
    e(f"  ds_read_b32 v{t1}, v{t0} offset:4")
    e("  s_waitcnt lgkmcnt(0)")
    e(f"  v_readfirstlane_b32 s{sTmp}, v{t1}")
    e("  s_nop 0")
    e(f"  s_cmp_eq_u32 s{sTmp}, 0")
    e("  s_cbranch_scc1 L_trig")
    e("L_publish:")
    e(f"  s_add_u32 s{sT4}, s{sT2}, 4096")
    e(f"  s_add_u32 s{sT5}, s{sT2}, 8192")
    for ee in range(8):
        e(f"  buffer_store_dwordx4 {vr(R+4*ee,4)}, v{tC}, {sr(sWS,4)}, s{sT2 if ee < 4 else sT4} offen offset:{(ee&3)*1024} sc1")
    e(f"  buffer_store_dword v{vMC}, v{tD}, {sr(sWS,4)}, s{sT5} offen sc1")
    e(f"  buffer_store_dword v{vL}, v{tD}, {sr(sWS,4)}, s{sT5} offen offset:256 sc1")
    e(f"  s_add_u32 s{sT4}, s{sT3}, 8704")
    e("  s_waitcnt vmcnt(0)")
    e("  s_mov_b64 exec, 1")
    e(f"  buffer_store_dwordx2 {vr(vNON,2)}, v{vNON+2}, {sr(sWS,4)}, s{sT5} offen offset:512 sc1")
    e(f"  s_mov_b32 s{sT5}, 0x40000")
    st(2)
    e("L_poll:")
    e(f"  buffer_load_dwordx2 {vr(vNON+4,2)}, v{vNON+2}, {sr(sWS,4)}, s{sT4} offen sc1")
    e("  s_waitcnt vmcnt(0)")
    e(f"  v_readfirstlane_b32 s{sN2}, v{vNON+4}")
    e(f"  v_readfirstlane_b32 s{sN2+1}, v{vNON+5}")
    e("  s_nop 0")
    e(f"  s_cmp_eq_u64 {sr(sN2,2)}, {sr(sNON,2)}")
    e("  s_cbranch_scc1 L_got")
    e(f"  s_sleep {sleep}")
    e(f"  s_sub_u32 s{sT5}, s{sT5}, 1")
    e(f"  s_cmp_lg_u32 s{sT5}, 0")
    e("  s_cbranch_scc1 L_poll")
    e("L_got:")
    e(f"  s_mov_b64 exec, {sr(sM,2)}")
    st(3)
    e(f"  s_add_u32 s{sT4}, s{sT3}, 8192")
    e(f"  buffer_load_dword v{vMC}, v{tD}, {sr(sWS,4)}, s{sT4} offen sc1")
    e(f"  buffer_load_dword v{vL}, v{tD}, {sr(sWS,4)}, s{sT4} offen offset:256 sc1")
    e(f"  s_add_u32 s{sT4}, s{sT3}, 4096")
    for ee in range(8):
        e(f"  buffer_load_dwordx4 {vr(R+4*ee,4)}, v{tC}, {sr(sWS,4)}, s{sT3 if ee < 4 else sT4} offen offset:{(ee&3)*1024} sc1")
    e(f"  v_mul_u32_u24 v{t0}, {ROWB}, v{tA}")
    e(f"  v_lshl_add_u32 v{t0}, v{tB}, 7, v{t0}")
    e(f"  v_add_u32 v{t0}, {GB + NS*GPART}, v{t0}")
    e(f"  v_lshlrev_b32 v{t1}, 6, v{tA}")
    e(f"  v_add_u32 v{t1}, {GST + 8*NS}, v{t1}")
    e("  s_waitcnt vmcnt(8)")
    e(f"  ds_write_b64 v{t1}, {vr(vMC,2)}")
    for ee in range(8):
        e(f"  s_waitcnt vmcnt({7-ee})")
        e(f"  ds_write_b128 v{t0}, {vr(R+4*ee,4)} offset:{16*ee}")
    e("  s_waitcnt lgkmcnt(0)")
    st(4)
    e("  s_branch L_b2")
    if stamp:
        e("L_stamp:")
        e(f"  s_mul_i32 s{sTmp}, s2, {NWT}")
        e(f"  s_add_u32 s{sTmp}, s{sTmp}, s{sW}")
        e(f"  s_lshl_b32 s{sTmp}, s{sTmp}, 5")
        e(f"  s_add_u32 s{sTmp}, s{sTmp}, {256*SLOTB}")
        e(f"  v_mov_b32 v{t0}, s{sTmp}")
        for i in range(5):
            e(f"  v_mov_b32 v{S+i}, s{sST+i}")
        e("  s_getreg_b32 s100, hwreg(HW_REG_XCC_ID)")
        e(f"  v_mov_b32 v{S+5}, s100")
        e(f"  v_mov_b32 v{S+6}, s{sA1}")
        e(f"  v_mov_b32 v{S+7}, s{sX2}")
        e("  s_mov_b64 exec, 1")
        e(f"  global_store_dwordx4 v{t0}, {vr(S,4)}, {sr(sDBG+2,2)}")
        e(f"  global_store_dwordx4 v{t0}, {vr(S+4,4)}, {sr(sDBG+2,2)} offset:16")
    e("L_end:")
    e("  s_endpgm")
    e('.section .rodata,"a"')
    e(".p2align 6")
    e(f".amdhsa_kernel {NAME}")
    e(f"  .amdhsa_next_free_vgpr {NV}")
    e("  .amdhsa_next_free_sgpr 102")
    e(f"  .amdhsa_accum_offset {(NV+3)//4*4}")
    e("  .amdhsa_group_segment_fixed_size 0")
    e("  .amdhsa_kernarg_size 64")
    e("  .amdhsa_user_sgpr_count 2")
    e("  .amdhsa_user_sgpr_kernarg_segment_ptr 1")
    e("  .amdhsa_system_sgpr_workgroup_id_x 1")
    e(".end_amdhsa_kernel")
    return "\n".join(L) + "\n"


if __name__ == "__main__":
    ap = argparse.ArgumentParser()
    ap.add_argument("-o", required=True)
    ap.add_argument("--ns", type=int, default=2)
    ap.add_argument("--kfl", default="nt")
    ap.add_argument("--vfl", default="nt")
    ap.add_argument("--stamp", action="store_true")
    ap.add_argument("--hx", type=int, default=1)
    ap.add_argument("--sleep", type=int, default=8)
    ap.add_argument("--nopair", action="store_true")
    ap.add_argument("--nohand", action="store_true")
    ap.add_argument("--pf", type=int, default=172)
    ap.add_argument("--nocap", action="store_true")
    a = ap.parse_args()
    open(a.o, "w").write(gen(NS=a.ns, kfl=a.kfl, vfl=a.vfl, stamp=a.stamp, hx=a.hx, sleep=a.sleep, nopair=a.nopair, nohand=a.nohand, pf=a.pf, cap=not a.nocap))
```

```python
import sys, struct, math, argparse

NAME = "standalone__paged_block_table_kv_pagedattention__sampling_kernel"
HEADER = open("standalone__paged_block_table_kv_pagedattention__sampling.s.ref").read().split("; Override launch")[0]

KV_BYTES = 4100 * 16 * 8 * 128 * 2
Q_BYTES = 32 * 32 * 4 * 128 * 2
OOB = 0x10000000
SLOTB = 9216


def f32bits(x):
    return struct.unpack("<I", struct.pack("<f", x))[0]


def gen(kfl="nt", vfl="nt", stamp=False, hx=1, sleep=8, nohand=False, pf=172, odd=True, E0=0):
    L = []
    e = L.append
    NS = 2
    NP = 4
    KFL = (" " + kfl.replace("+", " ")) if kfl else ""
    VFL = (" " + vfl.replace("+", " ")) if vfl else ""
    vKo, vKr, vV0, vV1, vBT, v4r = 1, 5, 9, 10, 11, 12
    vNON = 14
    vMC, vL, vAl, vMCn = 20, 21, 22, 24
    t0, t1, tA, tB, tC, tD = 25, 26, 27, 28, 29, 30
    Q, O, S, P, KT, VT, VB = 32, 48, 80, 88, 92, 124, 156
    NV = 188
    sK, sV, sBT, sQ, sO, sWS = 16, 20, 24, 28, 32, 36
    (sB, sH, sW, sCL, sNB, sLeft, sIdx, sO0, sO1, sRem, sC, sSelLo, sSelHi, sTmp, sNeg, sKB,
     sN2, sRem2, sOB, sPh, sX, sA1, sT2, sT3, sT4, sT5, sB2, sH2, sA2, sNB2, sX2, sCL2) = range(40, 72)
    sM = 72
    sDBG = 88
    sST = 92
    sEv = 97
    sNON = 98
    sRET = 98
    sOdd = 3
    sDec = 3
    KSLOT = 8192
    FB = 3 * KSLOT
    FPART = 9216
    FST = FB + NS * FPART
    GB = FST + 16 * 16
    ROWB = 528
    GPART = 16 * ROWB
    GST = GB + NP * GPART
    LST = GB + 3 * GPART
    Q2 = GST + 16 * 32
    REC = Q2 + 4096
    FLG = REC + 32
    LDS = FLG + 16

    def vr(a, n):
        return f"v[{a}:{a+n-1}]"

    def sr(a, n):
        return f"s[{a}:{a+n-1}]"

    def srd(r, lo, nbytes):
        e(f"  s_mov_b32 s{r}, s{lo}")
        e(f"  s_mov_b32 s{r+1}, s{lo+1}")
        e(f"  s_mov_b32 s{r+2}, {nbytes}")
        e(f"  s_mov_b32 s{r+3}, 0x00020000")

    def st(i):
        if stamp:
            e(f"  s_memrealtime s[100:101]")
            e(f"  s_waitcnt lgkmcnt(0)")
            e(f"  s_mov_b32 s{sST+i}, s100")

    def loadKV():
        for T in range(2):
            e(f"  s_add_u32 m0, s{sKB}, {T*4096}")
            e(f"  s_nop 0")
            for i in range(4):
                e(f"  buffer_load_dwordx4 v{vKo+i}, {sr(sK,4)}, s{sO0+T} offen offset:{i*1024}{KFL} lds")
        for j in range(8):
            T, i = j >> 2, j & 3
            e(f"  buffer_load_dwordx4 {vr(VB+4*j,4)}, v{vV0 + (i>>1)}, {sr(sV,4)}, s{sO0+T} offen offset:{(i&1)*2048}{VFL}")

    def next_offsets():
        e(f"  v_readlane_b32 s{sO0}, v{vBT}, s{sIdx}")
        e(f"  s_add_u32 s{sIdx}, s{sIdx}, 1")
        e(f"  v_readlane_b32 s{sO1}, v{vBT}, s{sIdx}")
        e(f"  s_add_u32 s{sIdx}, s{sIdx}, 1")

    def reduce_l():
        for sw in ("32", "16"):
            e(f"  v_mov_b32 v{t1}, v{vL}")
            e("  s_nop 1")
            e(f"  v_permlane{sw}_swap_b32 v{vL}, v{t1}")
            e("  s_nop 1")
            e(f"  v_add_f32 v{vL}, v{vL}, v{t1}")

    def init_state():
        for i in range(32):
            e(f"  v_mov_b32 v{O+i}, 0")
        e(f"  v_mov_b32 v{vMC}, 0xff7fffff")
        e(f"  v_mov_b32 v{vL}, 0")

    e(HEADER.rstrip("\n"))
    e(f"; @launch grid=(256,1,1) block=(256,1,1) lds={LDS}")
    e('.amdgcn_target "amdgcn-amd-amdhsa--gfx950"')
    e(".text")
    e(f".globl {NAME}")
    e(".p2align 8")
    e(f".type {NAME},@function")
    e(f"{NAME}:")
    e("  s_cmp_ge_u32 s2, 256")
    e("  s_cbranch_scc1 L_end")
    if stamp:
        e("  s_memrealtime s[100:101]")
    e("  s_load_dwordx8 s[4:11], s[0:1], 0")
    e("  s_load_dwordx4 s[12:15], s[0:1], 32")
    e(f"  s_load_dwordx4 {sr(sDBG,4)}, s[0:1], 48")
    e(f"  v_lshrrev_b32 v{t0}, 6, v0")
    e(f"  v_and_b32 v0, 63, v0")
    e(f"  v_readfirstlane_b32 s{sW}, v{t0}")
    e(f"  s_lshr_b32 s{sB}, s2, 3")
    e(f"  s_and_b32 s{sH}, s2, 7")
    e(f"  v_and_b32 v{tA}, 15, v0")
    e(f"  v_lshrrev_b32 v{tB}, 4, v0")
    e(f"  v_lshrrev_b32 v{tC}, 1, v0")
    e(f"  v_and_b32 v{tD}, 1, v0")
    e(f"  v_lshlrev_b32 v{t1}, 8, v{tA}")
    e(f"  v_lshl_add_u32 v{t1}, v{tB}, 4, v{t1}")
    e(f"  s_cmp_eq_u32 s{sW}, 3")
    e("  s_cbranch_scc1 L_service")

    e(f"  s_lshl_b32 s{sIdx}, s{sW}, 1")
    e(f"  v_lshlrev_b32 v{t0}, 2, v{tC}")
    e(f"  v_add3_u32 v{tC}, v{t0}, v{tD}, s{sIdx}")
    e(f"  s_lshl_b32 s{sNB}, s{sB}, 9")
    e(f"  v_lshl_add_u32 v{t0}, v{tC}, 2, s{sNB}")
    e(f"  s_lshl_b32 s{sRem}, s{sB}, 2")
    e(f"  s_lshl_b32 s{sT2}, s2, 12")
    e(f"  s_lshl_b32 s{sKB}, s{sW}, 13")
    e(f"  s_lshl_b32 s{sT3}, s{sH}, 8")
    for i in range(4):
        e(f"  v_add_u32 v{vV0}, {4*i}, v{tB}")
        e(f"  v_xor_b32 v{vV1}, v{tA}, v{vV0}")
        e(f"  v_lshlrev_b32 v{vV0}, 11, v{vV0}")
        e(f"  v_lshl_add_u32 v{vKo+i}, v{vV1}, 4, v{vV0}")
        if i:
            e(f"  v_subrev_u32 v{vKo+i}, {i*1024}, v{vKo+i}")
    e(f"  v_lshlrev_b32 v{vV0}, 13, v{tB}")
    e(f"  v_lshl_add_u32 v{vV0}, v{tA}, 4, v{vV0}")
    e(f"  v_add_u32 v{vV1}, 0x1000, v{vV0}")
    e(f"  s_mov_b32 s{sBT+2}, {32*128*4}")
    e(f"  s_mov_b32 s{sBT+3}, 0x00020000")
    e("  s_waitcnt lgkmcnt(0)")
    if stamp:
        e(f"  s_mov_b32 s{sST}, s100")
    e(f"  s_mov_b32 s{sBT}, s10")
    e(f"  s_mov_b32 s{sBT+1}, s11")
    e(f"  buffer_load_dword v{vBT}, v{t0}, {sr(sBT,4)}, 0 offen")
    e(f"  s_load_dword s{sCL}, s[12:13], s{sRem}")
    srd(sQ, 4, Q_BYTES)
    for kk in range(4):
        e(f"  buffer_load_dwordx4 {vr(Q+4*kk,4)}, v{t1}, {sr(sQ,4)}, s{sT2} offen offset:{kk*64}")
    srd(sK, 6, KV_BYTES)
    srd(sV, 8, KV_BYTES)
    e(f"  s_mov_b32 s{sPh}, 0")
    e(f"  s_mov_b32 s{sEv}, 1")
    e(f"  s_mov_b32 s{sIdx}, 0")
    e("  s_barrier")
    e(f"  s_cmp_eq_u32 s{sW}, 2")
    e("  s_cbranch_scc1 L_consts")
    e("  s_waitcnt vmcnt(4)")
    e(f"  v_lshlrev_b32 v{vBT}, 15, v{vBT}")
    e(f"  v_add_u32 v{vBT}, s{sT3}, v{vBT}")
    e("  s_nop 0")
    e("L_issue:")
    next_offsets()
    e("  s_nop 1")
    loadKV()
    e(f"  s_cmp_lg_u32 s{sPh}, 0")
    e("  s_cbranch_scc1 L_loop")
    e(f"  s_cmp_eq_u32 s{sEv}, 1")
    e("  s_cbranch_scc0 L_phase_end")
    e("L_consts:")
    e(f"  v_lshlrev_b32 v{tD}, 8, v{tA}")
    e(f"  v_add_u32 v{tD}, s{sKB}, v{tD}")
    for kk in range(4):
        e(f"  v_add_u32 v{t0}, {4*kk}, v{tB}")
        e(f"  v_xor_b32 v{t0}, v{tA}, v{t0}")
        e(f"  v_lshl_add_u32 v{vKr+kk}, v{t0}, 4, v{tD}")
    e(f"  v_lshlrev_b32 v{v4r}, 2, v{tB}")
    e(f"  s_mov_b32 s{sC}, {hex(f32bits(128 ** -0.5 * math.log2(math.e)))}")
    e(f"  s_mov_b32 s{sSelLo}, 0x05040100")
    e(f"  s_mov_b32 s{sSelHi}, 0x07060302")
    e(f"  s_mov_b32 s{sNeg}, {hex(f32bits(-1e9 / (128 ** -0.5)))}")
    init_state()
    e("  s_waitcnt lgkmcnt(0)")
    e(f"  s_sub_u32 s{sNB}, s{sCL}, 1")
    e(f"  s_min_u32 s{sNB}, s{sNB}, 2047")
    e(f"  s_max_i32 s{sCL}, s{sCL}, 0")
    e(f"  s_lshr_b32 s{sA1}, s{sNB}, 6")
    e(f"  s_add_u32 s{sA1}, s{sA1}, 1")
    e(f"  s_sub_u32 s{sLeft}, s{sA1}, s{sW}")
    e(f"  s_add_u32 s{sLeft}, s{sLeft}, 1")
    e(f"  s_lshr_b32 s{sLeft}, s{sLeft}, 1")
    e(f"  s_lshl_b32 s{sTmp}, s{sW}, 5")
    e(f"  s_sub_i32 s{sRem}, s{sCL}, s{sTmp}")
    e(f"  s_cmp_eq_u32 s{sW}, 2")
    e(f"  s_cselect_b32 s{sLeft}, 0, s{sLeft}")
    e(f"  s_cselect_b32 s{sDec}, 32, 64")
    st(1)
    e(f"  s_cmp_lg_u32 s{sLeft}, 0")
    e("  s_cbranch_scc1 L_loop")
    e("  s_waitcnt vmcnt(0)")
    e(f"  s_call_b64 {sr(sRET,2)}, L_getinfo")
    e(f"  s_mov_b32 s{sIdx}, 0")
    e(f"  s_cmp_eq_u32 s{sW}, 2")
    e("  s_cbranch_scc1 L_phase_end")
    e("  s_branch L_issue")

    e("L_loop:")
    e(f"  s_add_u32 s{sTmp}, s{sLeft}, s{sPh}")
    e(f"  s_cmp_lg_u32 s{sTmp}, s{sEv}")
    e("  s_cbranch_scc1 L_noinfo")
    e(f"  s_call_b64 {sr(sRET,2)}, L_event")
    e("L_noinfo:")
    next_offsets()
    e(f"  s_waitcnt vmcnt(8)")
    for kk in range(4):
        for T in range(2):
            e(f"  ds_read_b128 {vr(KT+16*T+4*kk,4)}, v{vKr+kk} offset:{T*4096}")
    e(f"  s_waitcnt vmcnt(0)")
    for w in range(4):
        for jp in range(4):
            a, b = VB + 4 * (2 * jp + 1) + w, VB + 4 * (2 * jp) + w
            e(f"  v_perm_b32 v{VT+4*(2*w)+jp}, v{a}, v{b}, s{sSelLo}")
            e(f"  v_perm_b32 v{VT+4*(2*w+1)+jp}, v{a}, v{b}, s{sSelHi}")
    e(f"  s_waitcnt lgkmcnt(0)")
    loadKV()
    for kk in range(4):
        for T in range(2):
            c = "0" if kk == 0 else vr(S + 4 * T, 4)
            e(f"  v_mfma_f32_16x16x32_bf16 {vr(S+4*T,4)}, {vr(KT+16*T+4*kk,4)}, {vr(Q+4*kk,4)}, {c}")
    e(f"  s_cmp_ge_i32 s{sRem}, 32")
    e(f"  s_nop 6")
    e(f"  s_cbranch_scc1 L_nomask")
    e(f"  v_sub_u32 v{t0}, s{sRem}, v{v4r}")
    e(f"  v_mov_b32 v{t1}, s{sNeg}")
    for j in range(8):
        off = 16 * (j >> 2) + (j & 3)
        e(f"  v_cmp_lt_i32 {sr(sM+2*j,2)}, {off}, v{t0}")
    e("  s_nop 1")
    for j in range(8):
        e(f"  v_cndmask_b32 v{S+j}, v{t1}, v{S+j}, {sr(sM+2*j,2)}")
    e(f"L_nomask:")
    e(f"  s_sub_i32 s{sRem}, s{sRem}, s{sDec}")
    e(f"  v_max3_f32 v{t0}, v{S}, v{S+1}, v{S+2}")
    e(f"  v_max3_f32 v{t1}, v{S+3}, v{S+4}, v{S+5}")
    e(f"  v_max3_f32 v{t0}, v{t0}, v{S+6}, v{S+7}")
    e(f"  v_max_f32 v{t0}, v{t0}, v{t1}")
    e(f"  v_mov_b32 v{t1}, v{t0}")
    e("  s_nop 1")
    e(f"  v_permlane32_swap_b32 v{t0}, v{t1}")
    e("  s_nop 1")
    e(f"  v_max_f32 v{t0}, v{t0}, v{t1}")
    e(f"  v_mov_b32 v{t1}, v{t0}")
    e("  s_nop 1")
    e(f"  v_permlane16_swap_b32 v{t0}, v{t1}")
    e("  s_nop 1")
    e(f"  v_max_f32 v{t0}, v{t0}, v{t1}")
    e(f"  v_mul_f32 v{t0}, s{sC}, v{t0}")
    e(f"  v_max_f32 v{vMCn}, v{t0}, v{vMC}")
    e(f"  v_sub_f32 v{t1}, v{vMC}, v{vMCn}")
    e(f"  v_exp_f32 v{vAl}, v{t1}")
    e(f"  v_mov_b32 v{vMC}, v{vMCn}")
    for j in range(8):
        e(f"  v_fma_f32 v{S+j}, v{S+j}, s{sC}, -v{vMCn}")
    for j in range(8):
        e(f"  v_exp_f32 v{S+j}, v{S+j}")
    for i in range(16):
        e(f"  v_pk_mul_f32 {vr(O+2*i,2)}, {vr(O+2*i,2)}, {vr(vAl,2)} op_sel_hi:[1,0]")
    for jp in range(4):
        e(f"  v_cvt_pk_bf16_f32 v{P+jp}, v{S+2*jp}, v{S+2*jp+1}")
    e(f"  v_mul_f32 v{vL}, v{vL}, v{vAl}")
    e(f"  v_add_f32 v{t0}, v{S}, v{S+1}")
    for ee in range(8):
        e(f"  v_mfma_f32_16x16x32_bf16 {vr(O+4*ee,4)}, {vr(VT+4*ee,4)}, {vr(P,4)}, {vr(O+4*ee,4)}")
        if ee == 0:
            e(f"  v_add_f32 v{t1}, v{S+2}, v{S+3}")
            e(f"  v_add_f32 v{tA}, v{S+4}, v{S+5}")
        if ee == 1:
            e(f"  v_add_f32 v{tB}, v{S+6}, v{S+7}")
            e(f"  v_add_f32 v{t0}, v{t0}, v{t1}")
        if ee == 2:
            e(f"  v_add_f32 v{tA}, v{tA}, v{tB}")
            e(f"  v_add_f32 v{vL}, v{vL}, v{t0}")
        if ee == 3:
            e(f"  v_add_f32 v{vL}, v{vL}, v{tA}")
    e(f"  s_sub_u32 s{sLeft}, s{sLeft}, 1")
    e(f"  s_cmp_lg_u32 s{sLeft}, 0")
    e("  s_cbranch_scc1 L_loop")
    e("L_phase_end:")
    reduce_l()
    e(f"  v_and_b32 v{tA}, 15, v0")
    e(f"  v_lshrrev_b32 v{tB}, 4, v0")
    e(f"  s_cmp_lg_u32 s{sPh}, 0")
    e("  s_cbranch_scc1 L_final")
    e(f"  s_cmp_eq_u32 s{sW}, 2")
    e("  s_cbranch_scc1 L_noflush")
    e(f"  s_mul_i32 s{sTmp}, s{sW}, {FPART}")
    e(f"  s_add_u32 s{sTmp}, s{sTmp}, {FB}")
    e(f"  v_mul_u32_u24 v{t0}, 144, v{tA}")
    e(f"  v_mul_u32_u24 v{t1}, 2304, v{tB}")
    e(f"  v_add3_u32 v{t0}, v{t0}, v{t1}, s{sTmp}")
    e(f"  s_lshl_b32 s{sTmp}, s{sW}, 3")
    e(f"  s_add_u32 s{sTmp}, s{sTmp}, {FST}")
    e(f"  v_lshl_add_u32 v{t1}, v{tA}, 4, s{sTmp}")
    e(f"  ds_write_b64 v{t1}, {vr(vMC,2)}")
    for ee in range(8):
        e(f"  ds_write_b128 v{t0}, {vr(O+4*ee,4)} offset:{16*ee}")
    e("L_noflush:")
    e(f"  v_lshlrev_b32 v{t1}, 4, v0")
    e(f"  v_add_u32 v{t1}, {Q2}, v{t1}")
    e("  s_waitcnt lgkmcnt(0)")
    e("  s_barrier")
    for kk in range(4):
        e(f"  ds_read_b128 {vr(Q+4*kk,4)}, v{t1} offset:{kk*1024}")
    init_state()
    e(f"  s_mov_b32 s{sPh}, 0x1000")
    e(f"  s_mov_b32 s{sRem}, s{sRem2}")
    e(f"  s_mov_b32 s{sLeft}, s{sN2}")
    e("  s_waitcnt lgkmcnt(0)")
    st(2)
    e(f"  s_cmp_eq_u32 s{sLeft}, 0")
    e("  s_cbranch_scc1 L_phase_end")
    e(f"  s_cmp_lg_u32 s{sW}, 2")
    e("  s_cbranch_scc1 L_loop")
    e(f"  v_mov_b32 v{t0}, {FLG}")
    e("L_xwait:")
    e("  s_sleep 2")
    e(f"  ds_read_b32 v{t1}, v{t0} offset:8")
    e("  s_waitcnt lgkmcnt(0)")
    e(f"  v_readfirstlane_b32 s{sTmp}, v{t1}")
    e("  s_nop 0")
    e(f"  s_cmp_eq_u32 s{sTmp}, 0")
    e("  s_cbranch_scc1 L_xwait")
    e("  s_branch L_issue")

    e("L_event:")
    e(f"  s_cmp_eq_u32 s{sPh}, 0")
    e("  s_cbranch_scc1 L_getinfo")
    e(f"  s_lshl_b32 s{sTmp}, s{sW}, 2")
    e(f"  v_mov_b32 v{t1}, s{sTmp}")
    e(f"  ds_write_b32 v{t1}, v{vKr} offset:{FLG+4}") if FLG + 4 < 65536 else None
    if FLG + 4 >= 65536:
        e(f"  v_add_u32 v{t1}, {FLG+4}, v{t1}")
        e(f"  ds_write_b32 v{t1}, v{t1}")
    e(f"  s_setpc_b64 {sr(sRET,2)}")
    e("L_getinfo:")
    e(f"  v_mov_b32 v{t1}, {REC}")
    e(f"  s_lshl_b32 s{sTmp}, s{sW}, 8")
    e(f"  s_add_u32 s{sTmp}, s{sTmp}, {LST}")
    e(f"  v_lshl_add_u32 v{t0}, v0, 2, s{sTmp}")
    e(f"  s_lshl_b32 s{sTmp}, s{sW}, 3")
    e(f"  v_add_u32 v{tD}, s{sTmp}, v{t1}")
    e("L_gi_poll:")
    e(f"  ds_read_b32 v{tC}, v{t1} offset:32")
    e("  s_waitcnt lgkmcnt(0)")
    e(f"  v_readfirstlane_b32 s{sTmp}, v{tC}")
    e("  s_nop 0")
    e(f"  s_cmp_eq_u32 s{sTmp}, 0")
    e("  s_cbranch_scc1 L_gi_poll")
    e(f"  ds_read_b32 v{vBT}, v{t0}")
    e(f"  ds_read_b64 {vr(S,2)}, v{t1}")
    e(f"  ds_read_b64 {vr(S+2,2)}, v{tD} offset:8")
    e("  s_waitcnt lgkmcnt(0)")
    e(f"  v_readfirstlane_b32 s{sOB}, v{S}")
    e(f"  v_readfirstlane_b32 s{sEv}, v{S+1}")
    e(f"  v_readfirstlane_b32 s{sN2}, v{S+2}")
    e(f"  v_readfirstlane_b32 s{sRem2}, v{S+3}")
    e(f"  s_and_b32 s{sTmp}, s{sEv}, 0xffff")
    e(f"  s_lshr_b32 s{sEv}, s{sEv}, 16")
    e(f"  s_cmp_eq_u32 s{sW}, 0")
    e(f"  s_cselect_b32 s{sEv}, s{sTmp}, s{sEv}")
    e(f"  s_cmp_eq_u32 s{sW}, 2")
    e(f"  s_cselect_b32 s{sEv}, -1, s{sEv}")
    e(f"  s_setpc_b64 {sr(sRET,2)}")

    e("L_final:")
    st(3)
    e(f"  s_mul_i32 s{sTmp}, s{sW}, {GPART}")
    e(f"  s_add_u32 s{sTmp}, s{sTmp}, {GB}")
    e(f"  v_mul_u32_u24 v{t0}, {ROWB}, v{tA}")
    e(f"  v_lshl_add_u32 v{t0}, v{tB}, 7, v{t0}")
    e(f"  v_add_u32 v{t0}, s{sTmp}, v{t0}")
    e(f"  s_lshl_b32 s{sTmp}, s{sW}, 3")
    e(f"  s_add_u32 s{sTmp}, s{sTmp}, {GST}")
    e(f"  v_lshl_add_u32 v{t1}, v{tA}, 5, s{sTmp}")
    e(f"  ds_write_b64 v{t1}, {vr(vMC,2)}")
    for ee in range(8):
        e(f"  ds_write_b128 v{t0}, {vr(O+4*ee,4)} offset:{16*ee}")
    e(f"  s_lshl_b32 s{sTmp}, s{sW}, 2")
    e(f"  s_add_u32 s{sTmp}, s{sTmp}, {FLG+4}")
    e(f"  v_mov_b32 v{t1}, s{sTmp}")
    e(f"  ds_write_b32 v{t1}, v{t1}")
    e("L_b2:")
    srd(sO, 14, Q_BYTES)
    e(f"  s_lshl_b32 s{sTmp}, s{sW}, 2")
    e(f"  v_lshrrev_b32 v{tA}, 5, v0")
    e(f"  v_add_u32 v{tA}, s{sTmp}, v{tA}")
    e(f"  v_and_b32 v{tB}, 31, v0")
    e(f"  v_mul_u32_u24 v{t0}, {ROWB}, v{tA}")
    e(f"  v_lshl_add_u32 v{t0}, v{tB}, 4, v{t0}")
    e(f"  v_add_u32 v{t0}, {GB}, v{t0}")
    e(f"  v_lshlrev_b32 v{t1}, 5, v{tA}")
    e(f"  v_add_u32 v{t1}, {GST}, v{t1}")
    e(f"  v_lshrrev_b32 v{tC}, 3, v{tB}")
    e(f"  v_and_b32 v{tB}, 7, v{tB}")
    e(f"  v_lshlrev_b32 v{tA}, 8, v{tA}")
    e(f"  v_lshl_add_u32 v{tA}, v{tC}, 6, v{tA}")
    e(f"  v_lshl_add_u32 v{tA}, v{tB}, 1, v{tA}")
    e("  s_waitcnt lgkmcnt(0)")
    e("  s_barrier")
    for ch in range(2):
        ST = KT + 8 * ch
        for u in range(2):
            e(f"  ds_read_b128 {vr(ST+4*u,4)}, v{t1} offset:{ch*64+16*u}")
    PBs = [VT, O]
    for ch in range(2):
        for u in range(NP):
            e(f"  ds_read_b128 {vr(PBs[ch]+4*u,4)}, v{t0} offset:{u*GPART + ch*2*ROWB}")
    e(f"  s_waitcnt lgkmcnt({2*NP})")
    for ch in range(2):
        ST = KT + 8 * ch
        m = KT + 24 + 2 * ch
        e(f"  v_max3_f32 v{m}, v{ST}, v{ST+2}, v{ST+4}")
        e(f"  v_max_f32 v{m}, v{m}, v{ST+6}")
    for ch in range(2):
        ST = KT + 8 * ch
        m = KT + 24 + 2 * ch
        for u in range(NP):
            e(f"  v_sub_f32 v{ST+2*u}, v{ST+2*u}, v{m}")
    for ch in range(2):
        ST = KT + 8 * ch
        for u in range(NP):
            e(f"  v_exp_f32 v{ST+2*u}, v{ST+2*u}")
    for ch in range(2):
        ST = KT + 8 * ch
        l = KT + 24 + 2 * ch + 1
        e(f"  v_mul_f32 v{l}, v{ST}, v{ST+1}")
        for u in range(1, NP):
            e(f"  v_fmac_f32 v{l}, v{ST+2*u}, v{ST+2*u+1}")
    for ch in range(2):
        l = KT + 24 + 2 * ch + 1
        e(f"  v_rcp_f32 v{l}, v{l}")
    for ch in range(2):
        ST = KT + 8 * ch
        PB = PBs[ch]
        l = KT + 24 + 2 * ch + 1
        R = S + 4 * ch
        e(f"  s_waitcnt lgkmcnt({NP*(1-ch)})")
        for i in range(4):
            e(f"  v_mul_f32 v{R+i}, v{ST}, v{PB+i}")
        for u in range(1, NP):
            for i in range(4):
                e(f"  v_fmac_f32 v{R+i}, v{ST+2*u}, v{PB+4*u+i}")
        for i in range(4):
            e(f"  v_mul_f32 v{R+i}, v{R+i}, v{l}")
        e(f"  v_cvt_pk_bf16_f32 v{P+2*ch}, v{R}, v{R+1}")
        e(f"  v_cvt_pk_bf16_f32 v{P+2*ch+1}, v{R+2}, v{R+3}")
        e(f"  buffer_store_short v{P+2*ch}, v{tA}, {sr(sO,4)}, s{sOB} offen offset:{ch*512}")
        e(f"  buffer_store_short_d16_hi v{P+2*ch}, v{tA}, {sr(sO,4)}, s{sOB} offen offset:{ch*512+16}")
        e(f"  buffer_store_short v{P+2*ch+1}, v{tA}, {sr(sO,4)}, s{sOB} offen offset:{ch*512+32}")
        e(f"  buffer_store_short_d16_hi v{P+2*ch+1}, v{tA}, {sr(sO,4)}, s{sOB} offen offset:{ch*512+48}")
    if stamp:
        e("  s_waitcnt vmcnt(0)")
        e(f"  s_cmp_eq_u32 s{sW}, 3")
        e("  s_cbranch_scc1 L_stamp")
        st(4)
        e("  s_branch L_stamp")
    else:
        e("  s_endpgm")

    e("L_service:")
    e("  s_setprio 3")
    vC, vN, vKey, vRk = 32, 33, 35, 36
    vI, vPar = tC, tD
    e(f"  v_mov_b32 v{vRk}, 0")
    e(f"  v_mov_b32 v{vNON+2}, 0")
    e(f"  v_mov_b32 v{vNON+3}, 0")
    e(f"  v_mov_b32 v{t0}, {FLG}")
    e(f"  ds_write_b64 v{t0}, {vr(vNON+2,2)}")
    e(f"  ds_write_b64 v{t0}, {vr(vNON+2,2)} offset:8")
    e(f"  v_and_b32 v{vKey}, 31, v0")
    e(f"  v_lshlrev_b32 v{t0}, 2, v{vKey}")
    e(f"  s_movk_i32 s{sT2}, 2047")
    e("  s_waitcnt lgkmcnt(0)")
    if stamp:
        e(f"  s_mov_b32 s{sST}, s100")
    srd(sK, 12, 128)
    e(f"  buffer_load_dword v{vC}, v{t0}, {sr(sK,4)}, 0 offen")
    e(f"  s_memrealtime {sr(sNON,2)}")
    e("  s_barrier")
    srd(sBT, 10, 32 * 128 * 4)
    srd(sQ, 4, Q_BYTES)
    srd(sWS, sDBG + 2, 256 * SLOTB)
    e(f"  s_xor_b32 s{sH2}, s{sH}, {hx}")
    e("  s_waitcnt vmcnt(0)")
    e(f"  v_add_u32 v{vN}, -1, v{vC}")
    e(f"  v_min_u32 v{vN}, s{sT2}, v{vN}")
    e(f"  v_max_i32 v{vC}, 0, v{vC}")
    e(f"  v_lshl_add_u32 v{vKey}, v{vN}, 5, v{vKey}")
    e("  s_nop 0")
    for g in range(4):
        for j in range(8):
            e(f"  v_readlane_b32 s{56+j}, v{vKey}, {8*g+j}")
        for j in range(8):
            e(f"  v_cmp_lt_u32 {sr(sM+2*j,2)}, s{56+j}, v{vKey}")
        for j in range(8):
            e(f"  v_addc_co_u32 v{vRk}, vcc, 0, v{vRk}, {sr(sM+2*j,2)}")
    e("  s_nop 0")
    e(f"  v_readlane_b32 s{sTmp}, v{vRk}, s{sB}")
    e("  s_nop 0")
    e(f"  s_sub_u32 s{sTmp}, 31, s{sTmp}")
    e(f"  v_cmp_eq_u32 vcc, s{sTmp}, v{vRk}")
    e(f"  v_readlane_b32 s{sNB}, v{vN}, s{sB}")
    e("  s_nop 3")
    e(f"  s_ff1_i32_b64 s{sB2}, vcc")
    e(f"  s_and_b32 s{sB2}, s{sB2}, 31")
    e(f"  v_cmp_eq_u32 vcc, 31, v{vRk}")
    e(f"  v_readlane_b32 s{sNB2}, v{vN}, s{sB2}")
    e(f"  v_readlane_b32 s{sCL2}, v{vC}, s{sB2}")
    e("  s_nop 2")
    e(f"  s_ff1_i32_b64 s{sTmp}, vcc")
    e(f"  v_readlane_b32 s{sEv}, v{vN}, s{sTmp}")
    e(f"  s_lshr_b32 s{sA1}, s{sNB}, 6")
    e(f"  s_add_u32 s{sA1}, s{sA1}, 1")
    e(f"  s_lshr_b32 s{sNB}, s{sNB}, 4")
    e(f"  s_add_u32 s{sNB}, s{sNB}, 1")
    e(f"  s_lshr_b32 s{sA2}, s{sNB2}, 6")
    e(f"  s_add_u32 s{sA2}, s{sA2}, 1")
    e(f"  s_lshr_b32 s{sT5}, s{sNB2}, 5")
    e(f"  s_add_u32 s{sX2}, s{sT5}, 1")
    e(f"  s_sub_u32 s{sX2}, s{sX2}, s{sA2}")
    e(f"  s_lshr_b32 s{sNB2}, s{sNB2}, 4")
    e(f"  s_add_u32 s{sNB2}, s{sNB2}, 1")
    e(f"  s_add_u32 s{sLeft}, s{sA1}, s{sX2}")
    e(f"  s_add_u32 s{sOdd}, s{sLeft}, {E0}")
    e(f"  s_and_b32 s{sOdd}, s{sOdd}, {1 if odd else 0}")
    e(f"  s_add_u32 s{sOdd}, s{sOdd}, {E0}")
    e(f"  s_min_u32 s{sOdd}, s{sOdd}, s{sX2}")
    e(f"  s_sub_u32 s{sX2}, s{sX2}, s{sOdd}")
    e(f"  s_add_u32 s{sT5}, s{sA2}, s{sX2}")
    e(f"  s_add_u32 s{sRem}, s{sA2}, s{sX2}")
    e(f"  s_lshl_b32 s{sRem}, s{sRem}, 1")
    e(f"  s_min_u32 s{sRem}, s{sRem}, s{sNB2}")
    e(f"  s_lshr_b32 s{sEv}, s{sEv}, 6")
    e(f"  s_add_u32 s{sEv}, s{sEv}, 1")
    e(f"  s_mul_i32 s{sTmp}, s{sLeft}, {pf}")
    e(f"  s_lshr_b32 s{sTmp}, s{sTmp}, 8")
    e(f"  s_min_u32 s{sEv}, s{sEv}, s{sTmp}")
    e(f"  s_add_u32 s{sEv}, s{sEv}, 1")
    e(f"  s_lshr_b32 s{sEv}, s{sEv}, 1")
    e(f"  s_lshl_b32 s{sT2}, s{sB}, 9")
    e(f"  s_lshl_b32 s{sT3}, s{sB2}, 9")
    e(f"  s_lshl_b32 s{sX}, s{sB2}, 3")
    e(f"  s_add_u32 s{sX}, s{sX}, s{sH2}")
    e(f"  s_lshl_b32 s{sOB}, s{sX}, 12")
    LB = 40
    RC = S
    for w in range(2):
        e(f"  s_add_u32 s{sN2}, s{sA1}, {1-w}")
        e(f"  s_lshr_b32 s{sN2}, s{sN2}, 1")
        e(f"  s_add_u32 s{sTmp}, s{sA1}, {w}")
        e(f"  s_and_b32 s{sTmp}, s{sTmp}, 1")
        e(f"  s_sub_u32 s{sT4}, s{sX2}, s{sTmp}")
        e(f"  s_add_u32 s{sT4}, s{sT4}, 1")
        e(f"  s_lshr_b32 s{sT4}, s{sT4}, 1")
        e(f"  v_mov_b32 v{RC+2+2*w}, s{sT4}")
        if w == 0:
            e(f"  s_cmp_gt_u32 s{sEv}, s{sN2}")
            e(f"  s_cselect_b32 s{sPh}, 1, 0")
            e(f"  s_add_u32 s{sT4}, s{sT4}, s{sN2}")
            e(f"  s_sub_i32 s{sEv}, s{sT4}, s{sEv}")
            e(f"  s_add_u32 s{sEv}, s{sEv}, 0x1000")
        else:
            e(f"  s_min_u32 s{sT4}, s{sT4}, s{sOdd}")
            e(f"  s_add_u32 s{sT4}, s{sT4}, 0x1000")
            e(f"  s_lshl_b32 s{sT4}, s{sT4}, 16")
            e(f"  s_or_b32 s{sEv}, s{sEv}, s{sT4}")
        e(f"  s_add_u32 s{sTmp}, s{sTmp}, s{sA2}")
        e(f"  s_lshl_b32 s{sT4}, s{sTmp}, 5")
        e(f"  s_sub_i32 s{sT4}, s{sCL2}, s{sT4}")
        e(f"  v_mov_b32 v{RC+3+2*w}, s{sT4}")
        e(f"  s_lshl_b32 s{sT4}, s{sN2}, 1")
        e(f"  s_sub_u32 s{sTmp}, s{sTmp}, s{sT4}")
        e(f"  v_cmp_gt_u32 vcc, s{sN2}, v{vI}")
        e(f"  v_mov_b32 v{t0}, s{sTmp}")
        e(f"  v_mov_b32 v{vAl}, s{sRem}")
        e(f"  v_mov_b32 v{vAl+1}, {w}")
        e(f"  v_cndmask_b32 v{t0}, v{t0}, v{vAl+1}, vcc")
        e(f"  v_lshl_add_u32 v{t0}, v{vI}, 1, v{t0}")
        e(f"  v_lshl_add_u32 v{LB+w}, v{t0}, 1, v{vPar}")
        e(f"  v_mov_b32 v{vAl+1}, s{sNB}")
        e(f"  v_cndmask_b32 v{LB+8+w}, v{vAl}, v{vAl+1}, vcc")
        e(f"  v_mov_b32 v{vAl}, s{sT3}")
        e(f"  v_mov_b32 v{vAl+1}, s{sT2}")
        e(f"  v_cndmask_b32 v{t0}, v{vAl}, v{vAl+1}, vcc")
        e(f"  v_lshl_add_u32 v{t0}, v{LB+w}, 2, v{t0}")
        e(f"  buffer_load_dword v{LB+4+w}, v{t0}, {sr(sBT,4)}, 0 offen")
        e(f"  v_mov_b32 v{vAl}, s{sH2}")
        e(f"  v_mov_b32 v{vAl+1}, s{sH}")
        e(f"  v_cndmask_b32 v{LB+12+w}, v{vAl}, v{vAl+1}, vcc")
        e(f"  v_lshlrev_b32 v{LB+12+w}, 8, v{LB+12+w}")
    e(f"  s_lshl_b32 s{sTmp}, s{sT5}, 1")
    e(f"  v_add_u32 v{LB+2}, s{sTmp}, v0")
    e(f"  v_lshlrev_b32 v{t0}, 2, v{LB+2}")
    e(f"  buffer_load_dword v{LB+6}, v{t0}, {sr(sBT,4)}, s{sT3} offen")
    e(f"  v_mov_b32 v{LB+10}, s{sNB2}")
    e(f"  s_lshl_b32 s{sTmp}, s{sH2}, 8")
    e(f"  v_mov_b32 v{LB+14}, s{sTmp}")
    e(f"  v_mov_b32 v{RC+6}, s{sOdd}")
    e(f"  s_lshl_b32 s{sTmp}, s{sT5}, 5")
    e(f"  s_sub_i32 s{sTmp}, s{sCL2}, s{sTmp}")
    e(f"  v_mov_b32 v{RC+7}, s{sTmp}")
    for kk in range(4):
        e(f"  s_mov_b32 m0, {Q2 + kk*960}")
        e("  s_nop 0")
        e(f"  buffer_load_dwordx4 v{t1}, {sr(sQ,4)}, s{sOB} offen offset:{kk*64} lds")
    e(f"  v_mov_b32 v{RC}, s{sOB}")
    e(f"  v_mov_b32 v{RC+1}, s{sEv}")
    e(f"  v_mov_b32 v{vKey}, {REC}")
    e(f"  ds_write_b128 v{vKey}, {vr(RC,4)}")
    e(f"  ds_write_b128 v{vKey}, {vr(RC+4,4)} offset:16")
    e(f"  v_lshlrev_b32 v{t0}, 2, v0")
    e(f"  v_add_u32 v{t0}, {LST}, v{t0}")
    e(f"  v_mov_b32 v{vAl}, {hex(OOB)}")
    for w in range(3):
        e(f"  v_cmp_lt_u32 vcc, v{LB+w}, v{LB+8+w}")
        e(f"  s_waitcnt vmcnt({4+2-w})")
        e(f"  v_lshl_add_u32 v{LB+4+w}, v{LB+4+w}, 15, v{LB+12+w}")
        e(f"  v_cndmask_b32 v{LB+4+w}, v{vAl}, v{LB+4+w}, vcc")
        e(f"  ds_write_b32 v{t0}, v{LB+4+w} offset:{w*256}")
    e(f"  v_mov_b32 v{vAl}, 1")
    e("  s_waitcnt lgkmcnt(0)")
    e(f"  ds_write_b32 v{vKey}, v{vAl} offset:32")
    st(1)
    e(f"  s_or_b32 s{sNON}, s{sNON}, 1")
    e(f"  v_mov_b32 v{vNON}, s{sNON}")
    e(f"  v_mov_b32 v{vNON+1}, s{sNON+1}")
    e(f"  s_mov_b64 {sr(sM,2)}, exec")
    e(f"  s_cmp_lg_u32 s2, 0")
    e("  s_cbranch_scc1 L_nocas")
    e("  s_mov_b64 exec, 1")
    e(f"  global_atomic_cmpswap_x2 v{vNON+2}, {vr(vNON,4)}, {sr(sDBG,2)} sc1")
    e(f"  s_mov_b64 exec, {sr(sM,2)}")
    e("L_nocas:")
    e(f"  v_mul_u32_u24 v{t0}, 144, v{tA}")
    e(f"  v_mul_u32_u24 v{t1}, 2304, v{tB}")
    e(f"  v_add_u32 v{t0}, v{t0}, v{t1}")
    e(f"  v_add_u32 v{t0}, {FB}, v{t0}")
    e(f"  v_lshlrev_b32 v{t1}, 4, v{tA}")
    e(f"  v_add_u32 v{t1}, {FST}, v{t1}")
    e(f"  v_lshlrev_b32 v{tC}, 4, v0")
    e(f"  v_lshlrev_b32 v{tD}, 2, v0")
    e(f"  s_mul_i32 s{sT2}, s2, {SLOTB}")
    e(f"  s_mul_i32 s{sT3}, s{sX}, {SLOTB}")
    e("  s_waitcnt vmcnt(0) lgkmcnt(0)")
    e("  s_barrier")
    if nohand:
        e("  s_branch L_b2")
    e(f"  global_load_dwordx2 {vr(vNON+4,2)}, v{vNON+2}, {sr(sDBG,2)} sc1")
    ST = 32
    R = 40
    PB = 72
    e(f"  ds_read_b128 {vr(ST,4)}, v{t1}")
    for ee in range(7):
        for u in range(NS):
            e(f"  ds_read_b128 {vr(PB+8*ee+4*u,4)}, v{t0} offset:{u*FPART+16*ee}")
    e(f"  s_waitcnt lgkmcnt(14)")
    for u in range(NS):
        e(f"  ds_read_b128 {vr(PB+8*7+4*u,4)}, v{t0} offset:{u*FPART+16*7}") if u == 0 else None
    e(f"  v_max_f32 v{vMC}, v{ST}, v{ST+2}")
    for u in range(NS):
        e(f"  v_sub_f32 v{ST+2*u}, v{ST+2*u}, v{vMC}")
    for u in range(NS):
        e(f"  v_exp_f32 v{ST+2*u}, v{ST+2*u}")
    e(f"  s_waitcnt lgkmcnt(13)")
    e(f"  ds_read_b128 {vr(PB+8*7+4,4)}, v{t0} offset:{FPART+16*7}")
    e(f"  v_mul_f32 v{vL}, v{ST}, v{ST+1}")
    e(f"  v_fmac_f32 v{vL}, v{ST+2}, v{ST+3}")
    for ee in range(8):
        e(f"  s_waitcnt lgkmcnt({14-2*ee})")
        for i in range(4):
            e(f"  v_mul_f32 v{R+4*ee+i}, v{ST}, v{PB+8*ee+i}")
        for i in range(4):
            e(f"  v_fmac_f32 v{R+4*ee+i}, v{ST+2}, v{PB+8*ee+4+i}")
    e("  s_waitcnt vmcnt(0)")
    e(f"  v_readfirstlane_b32 s{sT4}, v{vNON+4}")
    e(f"  v_readfirstlane_b32 s{sT5}, v{vNON+5}")
    e("  s_nop 0")
    e(f"  s_cmp_lg_u32 s{sT4}, 0")
    e("  s_cbranch_scc1 L_havenonce")
    e("  s_mov_b64 exec, 1")
    e(f"  global_atomic_cmpswap_x2 {vr(vNON+4,2)}, v{vNON+2}, {vr(vNON,4)}, {sr(sDBG,2)} sc0 sc1")
    e(f"  s_mov_b64 exec, {sr(sM,2)}")
    e("  s_waitcnt vmcnt(0)")
    e(f"  v_readfirstlane_b32 s{sT4}, v{vNON+4}")
    e(f"  v_readfirstlane_b32 s{sT5}, v{vNON+5}")
    e("  s_nop 0")
    e(f"  s_cmp_lg_u32 s{sT4}, 0")
    e(f"  s_cselect_b32 s{sT4}, s{sT4}, s{sNON}")
    e(f"  s_cselect_b32 s{sT5}, s{sT5}, s{sNON+1}")
    e("L_havenonce:")
    e(f"  s_mov_b32 s{sNON}, s{sT4}")
    e(f"  s_mov_b32 s{sNON+1}, s{sT5}")
    e(f"  v_mov_b32 v{vNON}, s{sT4}")
    e(f"  v_mov_b32 v{vNON+1}, s{sT5}")
    e(f"  s_cmp_eq_u32 s{sPh}, 0")
    e("  s_cbranch_scc1 L_publish")
    e(f"  v_mov_b32 v{t0}, {FLG}")
    e("L_trig:")
    e("  s_sleep 2")
    e(f"  ds_read_b32 v{t1}, v{t0} offset:4")
    e("  s_waitcnt lgkmcnt(0)")
    e(f"  v_readfirstlane_b32 s{sTmp}, v{t1}")
    e("  s_nop 0")
    e(f"  s_cmp_eq_u32 s{sTmp}, 0")
    e("  s_cbranch_scc1 L_trig")
    e("L_publish:")
    e(f"  s_add_u32 s{sT4}, s{sT2}, 4096")
    e(f"  s_add_u32 s{sT5}, s{sT2}, 8192")
    for ee in range(8):
        e(f"  buffer_store_dwordx4 {vr(R+4*ee,4)}, v{tC}, {sr(sWS,4)}, s{sT2 if ee < 4 else sT4} offen offset:{(ee&3)*1024} sc1")
    e(f"  buffer_store_dword v{vMC}, v{tD}, {sr(sWS,4)}, s{sT5} offen sc1")
    e(f"  buffer_store_dword v{vL}, v{tD}, {sr(sWS,4)}, s{sT5} offen offset:256 sc1")
    e(f"  s_add_u32 s{sT4}, s{sT3}, 8704")
    e("  s_waitcnt vmcnt(0)")
    e("  s_mov_b64 exec, 1")
    e(f"  buffer_store_dwordx2 {vr(vNON,2)}, v{vNON+2}, {sr(sWS,4)}, s{sT5} offen offset:512 sc1")
    e(f"  s_mov_b32 s{sT5}, 0x40000")
    st(2)
    e("L_poll:")
    e(f"  buffer_load_dwordx2 {vr(vNON+4,2)}, v{vNON+2}, {sr(sWS,4)}, s{sT4} offen sc1")
    e("  s_waitcnt vmcnt(0)")
    e(f"  v_readfirstlane_b32 s{sN2}, v{vNON+4}")
    e(f"  v_readfirstlane_b32 s{sN2+1}, v{vNON+5}")
    e("  s_nop 0")
    e(f"  s_cmp_eq_u64 {sr(sN2,2)}, {sr(sNON,2)}")
    e("  s_cbranch_scc1 L_got")
    e(f"  s_sleep {sleep}")
    e(f"  s_sub_u32 s{sT5}, s{sT5}, 1")
    e(f"  s_cmp_lg_u32 s{sT5}, 0")
    e("  s_cbranch_scc1 L_poll")
    e("L_got:")
    e(f"  s_mov_b64 exec, {sr(sM,2)}")
    st(3)
    e(f"  s_add_u32 s{sT4}, s{sT3}, 8192")
    e(f"  buffer_load_dword v{vMC}, v{tD}, {sr(sWS,4)}, s{sT4} offen sc1")
    e(f"  buffer_load_dword v{vL}, v{tD}, {sr(sWS,4)}, s{sT4} offen offset:256 sc1")
    e(f"  s_add_u32 s{sT4}, s{sT3}, 4096")
    for ee in range(8):
        e(f"  buffer_load_dwordx4 {vr(R+4*ee,4)}, v{tC}, {sr(sWS,4)}, s{sT3 if ee < 4 else sT4} offen offset:{(ee&3)*1024} sc1")
    e(f"  v_mul_u32_u24 v{t0}, {ROWB}, v{tA}")
    e(f"  v_lshl_add_u32 v{t0}, v{tB}, 7, v{t0}")
    e(f"  v_add_u32 v{t0}, {GB + 3*GPART}, v{t0}")
    e(f"  v_lshlrev_b32 v{t1}, 5, v{tA}")
    e(f"  v_add_u32 v{t1}, {GST + 24}, v{t1}")
    e("  s_waitcnt vmcnt(8)")
    e(f"  ds_write_b64 v{t1}, {vr(vMC,2)}")
    for ee in range(8):
        e(f"  s_waitcnt vmcnt({7-ee})")
        e(f"  ds_write_b128 v{t0}, {vr(R+4*ee,4)} offset:{16*ee}")
    st(4)
    e("  s_branch L_b2")
    if stamp:
        e("L_stamp:")
        e(f"  s_lshl_b32 s{sTmp}, s2, 2")
        e(f"  s_add_u32 s{sTmp}, s{sTmp}, s{sW}")
        e(f"  s_lshl_b32 s{sTmp}, s{sTmp}, 5")
        e(f"  s_add_u32 s{sTmp}, s{sTmp}, {256*SLOTB}")
        e(f"  v_mov_b32 v{t0}, s{sTmp}")
        for i in range(5):
            e(f"  v_mov_b32 v{S+i}, s{sST+i}")
        e("  s_getreg_b32 s100, hwreg(HW_REG_XCC_ID)")
        e(f"  v_mov_b32 v{S+5}, s100")
        e(f"  v_mov_b32 v{S+6}, s{sA1}")
        e(f"  v_mov_b32 v{S+7}, s{sN2}")
        e("  s_mov_b64 exec, 1")
        e(f"  global_store_dwordx4 v{t0}, {vr(S,4)}, {sr(sDBG+2,2)}")
        e(f"  global_store_dwordx4 v{t0}, {vr(S+4,4)}, {sr(sDBG+2,2)} offset:16")
    e("L_end:")
    e("  s_endpgm")
    e('.section .rodata,"a"')
    e(".p2align 6")
    e(f".amdhsa_kernel {NAME}")
    e(f"  .amdhsa_next_free_vgpr {NV}")
    e("  .amdhsa_next_free_sgpr 102")
    e(f"  .amdhsa_accum_offset {(NV+3)//4*4}")
    e("  .amdhsa_group_segment_fixed_size 0")
    e("  .amdhsa_kernarg_size 64")
    e("  .amdhsa_user_sgpr_count 2")
    e("  .amdhsa_user_sgpr_kernarg_segment_ptr 1")
    e("  .amdhsa_system_sgpr_workgroup_id_x 1")
    e(".end_amdhsa_kernel")
    return "\n".join(L) + "\n"


if __name__ == "__main__":
    ap = argparse.ArgumentParser()
    ap.add_argument("-o", required=True)
    ap.add_argument("--kfl", default="nt")
    ap.add_argument("--vfl", default="nt")
    ap.add_argument("--stamp", action="store_true")
    ap.add_argument("--hx", type=int, default=1)
    ap.add_argument("--sleep", type=int, default=8)
    ap.add_argument("--nohand", action="store_true")
    ap.add_argument("--noodd", action="store_true")
    ap.add_argument("--pf", type=int, default=172)
    ap.add_argument("--e0", type=int, default=0)
    a = ap.parse_args()
    open(a.o, "w").write(gen(kfl=a.kfl, vfl=a.vfl, stamp=a.stamp, hx=a.hx, sleep=a.sleep, nohand=a.nohand, pf=a.pf, odd=not a.noodd, E0=a.e0))
```

```python
import sys, struct, math, argparse

NAME = "standalone__paged_block_table_kv_pagedattention__sampling_kernel"
HEADER = open("standalone__paged_block_table_kv_pagedattention__sampling.s.ref").read().split("; Override launch")[0]

KV_BYTES = 4100 * 16 * 8 * 128 * 2
Q_BYTES = 32 * 32 * 4 * 128 * 2
OOB = 0x10000000
SLOTB = 9216


def f32bits(x):
    return struct.unpack("<I", struct.pack("<f", x))[0]


def gen(kfl="nt", vfl="nt", stamp=False, hx=1, sleep=8, nohand=False, pf=172, odd=True, E0=0, ldspad=0):
    L = []
    e = L.append
    NS = 2
    NP = 4
    KFL = (" " + kfl.replace("+", " ")) if kfl else ""
    VFL = (" " + vfl.replace("+", " ")) if vfl else ""
    vKo, vKr, vV0, vV1, vBT, v4r = 1, 5, 9, 10, 11, 12
    vNON = 14
    vMC, vL, vAl, vMCn = 20, 21, 22, 24
    t0, t1, tA, tB, tC, tD = 25, 26, 27, 28, 29, 30
    Q, O, S, P, KT, VT, VB = 32, 48, 80, 88, 92, 124, 156
    NV = 188
    sK, sV, sBT, sQ, sO, sWS = 16, 20, 24, 28, 32, 36
    (sB, sH, sW, sCL, sNB, sLeft, sIdx, sO0, sO1, sRem, sC, sSelLo, sSelHi, sTmp, sNeg, sKB,
     sN2, sRem2, sOB, sPh, sX, sA1, sT2, sT3, sT4, sT5, sB2, sH2, sA2, sNB2, sX2, sCL2) = range(40, 72)
    sM = 72
    sDBG = 88
    sST = 92
    sEv = 97
    sNON = 98
    sRET = 98
    sOdd = 3
    sDec = 3
    KSLOT = 8192
    FB = 3 * KSLOT
    FPART = 9216
    FST = FB + NS * FPART
    GB = FST + 16 * 16
    ROWB = 528
    GPART = 16 * ROWB
    GST = GB + NP * GPART
    LST = GB + 3 * GPART
    Q2 = GST + 16 * 32
    REC = Q2 + 4096
    FLG = REC + 32
    LDS = max(FLG + 16, ldspad)

    def vr(a, n):
        return f"v[{a}:{a+n-1}]"

    def sr(a, n):
        return f"s[{a}:{a+n-1}]"

    def srd(r, lo, nbytes):
        e(f"  s_mov_b32 s{r}, s{lo}")
        e(f"  s_mov_b32 s{r+1}, s{lo+1}")
        e(f"  s_mov_b32 s{r+2}, {nbytes}")
        e(f"  s_mov_b32 s{r+3}, 0x00020000")

    def st(i):
        if stamp:
            e(f"  s_memrealtime s[100:101]")
            e(f"  s_waitcnt lgkmcnt(0)")
            e(f"  s_mov_b32 s{sST+i}, s100")

    def loadKV():
        for T in range(2):
            e(f"  s_add_u32 m0, s{sKB}, {T*4096}")
            e(f"  s_nop 0")
            for i in range(4):
                e(f"  buffer_load_dwordx4 v{vKo+i}, {sr(sK,4)}, s{sO0+T} offen offset:{i*1024}{KFL} lds")
        for j in range(8):
            T, i = j >> 2, j & 3
            e(f"  buffer_load_dwordx4 {vr(VB+4*j,4)}, v{vV0 + (i>>1)}, {sr(sV,4)}, s{sO0+T} offen offset:{(i&1)*2048}{VFL}")

    def next_offsets():
        e(f"  v_readlane_b32 s{sO0}, v{vBT}, s{sIdx}")
        e(f"  s_add_u32 s{sIdx}, s{sIdx}, 1")
        e(f"  v_readlane_b32 s{sO1}, v{vBT}, s{sIdx}")
        e(f"  s_add_u32 s{sIdx}, s{sIdx}, 1")

    def reduce_l():
        for sw in ("32", "16"):
            e(f"  v_mov_b32 v{t1}, v{vL}")
            e("  s_nop 1")
            e(f"  v_permlane{sw}_swap_b32 v{vL}, v{t1}")
            e("  s_nop 1")
            e(f"  v_add_f32 v{vL}, v{vL}, v{t1}")

    def init_state():
        for i in range(32):
            e(f"  v_mov_b32 v{O+i}, 0")
        e(f"  v_mov_b32 v{vMC}, 0xff7fffff")
        e(f"  v_mov_b32 v{vL}, 0")

    e(HEADER.rstrip("\n"))
    e(f"; @launch grid=(256,1,1) block=(256,1,1) lds={LDS}")
    e('.amdgcn_target "amdgcn-amd-amdhsa--gfx950"')
    e(".text")
    e(f".globl {NAME}")
    e(".p2align 8")
    e(f".type {NAME},@function")
    e(f"{NAME}:")
    e("  s_cmp_ge_u32 s2, 256")
    e("  s_cbranch_scc1 L_end")
    if stamp:
        e("  s_memrealtime s[100:101]")
    e("  s_load_dwordx8 s[4:11], s[0:1], 0")
    e("  s_load_dwordx4 s[12:15], s[0:1], 32")
    e(f"  s_load_dwordx4 {sr(sDBG,4)}, s[0:1], 48")
    e(f"  v_lshrrev_b32 v{t0}, 6, v0")
    e(f"  v_and_b32 v0, 63, v0")
    e(f"  v_readfirstlane_b32 s{sW}, v{t0}")
    e(f"  s_lshr_b32 s{sB}, s2, 3")
    e(f"  s_and_b32 s{sH}, s2, 7")
    e(f"  v_and_b32 v{tA}, 15, v0")
    e(f"  v_lshrrev_b32 v{tB}, 4, v0")
    e(f"  v_lshrrev_b32 v{tC}, 1, v0")
    e(f"  v_and_b32 v{tD}, 1, v0")
    e(f"  v_lshlrev_b32 v{t1}, 8, v{tA}")
    e(f"  v_lshl_add_u32 v{t1}, v{tB}, 4, v{t1}")
    e(f"  s_cmp_eq_u32 s{sW}, 3")
    e("  s_cbranch_scc1 L_service")

    e(f"  s_lshl_b32 s{sIdx}, s{sW}, 1")
    e(f"  v_lshlrev_b32 v{t0}, 2, v{tC}")
    e(f"  v_add3_u32 v{tC}, v{t0}, v{tD}, s{sIdx}")
    e(f"  s_lshl_b32 s{sNB}, s{sB}, 9")
    e(f"  v_lshl_add_u32 v{t0}, v{tC}, 2, s{sNB}")
    e(f"  s_lshl_b32 s{sRem}, s{sB}, 2")
    e(f"  s_lshl_b32 s{sT2}, s2, 12")
    e(f"  s_lshl_b32 s{sKB}, s{sW}, 13")
    e(f"  s_lshl_b32 s{sT3}, s{sH}, 8")
    for i in range(4):
        e(f"  v_add_u32 v{vV0}, {4*i}, v{tB}")
        e(f"  v_xor_b32 v{vV1}, v{tA}, v{vV0}")
        e(f"  v_lshlrev_b32 v{vV0}, 11, v{vV0}")
        e(f"  v_lshl_add_u32 v{vKo+i}, v{vV1}, 4, v{vV0}")
        if i:
            e(f"  v_subrev_u32 v{vKo+i}, {i*1024}, v{vKo+i}")
    e(f"  v_lshlrev_b32 v{vV0}, 13, v{tB}")
    e(f"  v_lshl_add_u32 v{vV0}, v{tA}, 4, v{vV0}")
    e(f"  v_add_u32 v{vV1}, 0x1000, v{vV0}")
    e(f"  s_mov_b32 s{sBT+2}, {32*128*4}")
    e(f"  s_mov_b32 s{sBT+3}, 0x00020000")
    e("  s_waitcnt lgkmcnt(0)")
    if stamp:
        e(f"  s_mov_b32 s{sST}, s100")
    e(f"  s_mov_b32 s{sBT}, s10")
    e(f"  s_mov_b32 s{sBT+1}, s11")
    e(f"  buffer_load_dword v{vBT}, v{t0}, {sr(sBT,4)}, 0 offen")
    e(f"  s_load_dword s{sCL}, s[12:13], s{sRem}")
    srd(sQ, 4, Q_BYTES)
    for kk in range(4):
        e(f"  buffer_load_dwordx4 {vr(Q+4*kk,4)}, v{t1}, {sr(sQ,4)}, s{sT2} offen offset:{kk*64}")
    srd(sK, 6, KV_BYTES)
    srd(sV, 8, KV_BYTES)
    e(f"  s_mov_b32 s{sPh}, 0")
    e(f"  s_mov_b32 s{sEv}, 1")
    e(f"  s_mov_b32 s{sIdx}, 0")
    e("  s_barrier")
    e(f"  s_cmp_eq_u32 s{sW}, 2")
    e("  s_cbranch_scc1 L_consts")
    e("  s_waitcnt vmcnt(4)")
    e(f"  v_lshlrev_b32 v{vBT}, 15, v{vBT}")
    e(f"  v_add_u32 v{vBT}, s{sT3}, v{vBT}")
    e("  s_nop 0")
    e("L_issue:")
    next_offsets()
    e("  s_nop 1")
    loadKV()
    e(f"  s_cmp_lg_u32 s{sPh}, 0")
    e("  s_cbranch_scc1 L_loop")
    e(f"  s_cmp_eq_u32 s{sEv}, 1")
    e("  s_cbranch_scc0 L_phase_end")
    e("L_consts:")
    e(f"  v_lshlrev_b32 v{tD}, 8, v{tA}")
    e(f"  v_add_u32 v{tD}, s{sKB}, v{tD}")
    for kk in range(4):
        e(f"  v_add_u32 v{t0}, {4*kk}, v{tB}")
        e(f"  v_xor_b32 v{t0}, v{tA}, v{t0}")
        e(f"  v_lshl_add_u32 v{vKr+kk}, v{t0}, 4, v{tD}")
    e(f"  v_lshlrev_b32 v{v4r}, 2, v{tB}")
    e(f"  s_mov_b32 s{sC}, {hex(f32bits(128 ** -0.5 * math.log2(math.e)))}")
    e(f"  s_mov_b32 s{sSelLo}, 0x05040100")
    e(f"  s_mov_b32 s{sSelHi}, 0x07060302")
    e(f"  s_mov_b32 s{sNeg}, {hex(f32bits(-1e9 / (128 ** -0.5)))}")
    init_state()
    e("  s_waitcnt lgkmcnt(0)")
    e(f"  s_sub_u32 s{sNB}, s{sCL}, 1")
    e(f"  s_min_u32 s{sNB}, s{sNB}, 2047")
    e(f"  s_max_i32 s{sCL}, s{sCL}, 0")
    e(f"  s_lshr_b32 s{sA1}, s{sNB}, 6")
    e(f"  s_add_u32 s{sA1}, s{sA1}, 1")
    e(f"  s_sub_u32 s{sLeft}, s{sA1}, s{sW}")
    e(f"  s_add_u32 s{sLeft}, s{sLeft}, 1")
    e(f"  s_lshr_b32 s{sLeft}, s{sLeft}, 1")
    e(f"  s_lshl_b32 s{sTmp}, s{sW}, 5")
    e(f"  s_sub_i32 s{sRem}, s{sCL}, s{sTmp}")
    e(f"  s_cmp_eq_u32 s{sW}, 2")
    e(f"  s_cselect_b32 s{sLeft}, 0, s{sLeft}")
    e(f"  s_cselect_b32 s{sDec}, 32, 64")
    st(1)
    e(f"  s_cmp_lg_u32 s{sLeft}, 0")
    e("  s_cbranch_scc1 L_loop")
    e("  s_waitcnt vmcnt(0)")
    e(f"  s_call_b64 {sr(sRET,2)}, L_getinfo")
    e(f"  s_mov_b32 s{sIdx}, 0")
    e(f"  s_cmp_eq_u32 s{sW}, 2")
    e("  s_cbranch_scc1 L_phase_end")
    e("  s_branch L_issue")

    e("L_loop:")
    e(f"  s_add_u32 s{sTmp}, s{sLeft}, s{sPh}")
    e(f"  s_cmp_lg_u32 s{sTmp}, s{sEv}")
    e("  s_cbranch_scc1 L_noinfo")
    e(f"  s_call_b64 {sr(sRET,2)}, L_event")
    e("L_noinfo:")
    next_offsets()
    e(f"  s_waitcnt vmcnt(8)")
    for kk in range(4):
        for T in range(2):
            e(f"  ds_read_b128 {vr(KT+16*T+4*kk,4)}, v{vKr+kk} offset:{T*4096}")
    e(f"  s_waitcnt vmcnt(0)")
    for w in range(4):
        for jp in range(4):
            a, b = VB + 4 * (2 * jp + 1) + w, VB + 4 * (2 * jp) + w
            e(f"  v_perm_b32 v{VT+4*(2*w)+jp}, v{a}, v{b}, s{sSelLo}")
            e(f"  v_perm_b32 v{VT+4*(2*w+1)+jp}, v{a}, v{b}, s{sSelHi}")
    e(f"  s_waitcnt lgkmcnt(0)")
    loadKV()
    for kk in range(4):
        for T in range(2):
            c = "0" if kk == 0 else vr(S + 4 * T, 4)
            e(f"  v_mfma_f32_16x16x32_bf16 {vr(S+4*T,4)}, {vr(KT+16*T+4*kk,4)}, {vr(Q+4*kk,4)}, {c}")
    e(f"  s_cmp_ge_i32 s{sRem}, 32")
    e(f"  s_nop 6")
    e(f"  s_cbranch_scc1 L_nomask")
    e(f"  v_sub_u32 v{t0}, s{sRem}, v{v4r}")
    e(f"  v_mov_b32 v{t1}, s{sNeg}")
    for j in range(8):
        off = 16 * (j >> 2) + (j & 3)
        e(f"  v_cmp_lt_i32 {sr(sM+2*j,2)}, {off}, v{t0}")
    e("  s_nop 1")
    for j in range(8):
        e(f"  v_cndmask_b32 v{S+j}, v{t1}, v{S+j}, {sr(sM+2*j,2)}")
    e(f"L_nomask:")
    e(f"  s_sub_i32 s{sRem}, s{sRem}, s{sDec}")
    e(f"  v_max3_f32 v{t0}, v{S}, v{S+1}, v{S+2}")
    e(f"  v_max3_f32 v{t1}, v{S+3}, v{S+4}, v{S+5}")
    e(f"  v_max3_f32 v{t0}, v{t0}, v{S+6}, v{S+7}")
    e(f"  v_max_f32 v{t0}, v{t0}, v{t1}")
    e(f"  v_mov_b32 v{t1}, v{t0}")
    e("  s_nop 1")
    e(f"  v_permlane32_swap_b32 v{t0}, v{t1}")
    e("  s_nop 1")
    e(f"  v_max_f32 v{t0}, v{t0}, v{t1}")
    e(f"  v_mov_b32 v{t1}, v{t0}")
    e("  s_nop 1")
    e(f"  v_permlane16_swap_b32 v{t0}, v{t1}")
    e("  s_nop 1")
    e(f"  v_max_f32 v{t0}, v{t0}, v{t1}")
    e(f"  v_mul_f32 v{t0}, s{sC}, v{t0}")
    e(f"  v_max_f32 v{vMCn}, v{t0}, v{vMC}")
    e(f"  v_sub_f32 v{t1}, v{vMC}, v{vMCn}")
    e(f"  v_exp_f32 v{vAl}, v{t1}")
    e(f"  v_mov_b32 v{vMC}, v{vMCn}")
    for j in range(8):
        e(f"  v_fma_f32 v{S+j}, v{S+j}, s{sC}, -v{vMCn}")
    for j in range(8):
        e(f"  v_exp_f32 v{S+j}, v{S+j}")
    for i in range(16):
        e(f"  v_pk_mul_f32 {vr(O+2*i,2)}, {vr(O+2*i,2)}, {vr(vAl,2)} op_sel_hi:[1,0]")
    for jp in range(4):
        e(f"  v_cvt_pk_bf16_f32 v{P+jp}, v{S+2*jp}, v{S+2*jp+1}")
    e(f"  v_mul_f32 v{vL}, v{vL}, v{vAl}")
    e(f"  v_add_f32 v{t0}, v{S}, v{S+1}")
    for ee in range(8):
        e(f"  v_mfma_f32_16x16x32_bf16 {vr(O+4*ee,4)}, {vr(VT+4*ee,4)}, {vr(P,4)}, {vr(O+4*ee,4)}")
        if ee == 0:
            e(f"  v_add_f32 v{t1}, v{S+2}, v{S+3}")
            e(f"  v_add_f32 v{tA}, v{S+4}, v{S+5}")
        if ee == 1:
            e(f"  v_add_f32 v{tB}, v{S+6}, v{S+7}")
            e(f"  v_add_f32 v{t0}, v{t0}, v{t1}")
        if ee == 2:
            e(f"  v_add_f32 v{tA}, v{tA}, v{tB}")
            e(f"  v_add_f32 v{vL}, v{vL}, v{t0}")
        if ee == 3:
            e(f"  v_add_f32 v{vL}, v{vL}, v{tA}")
    e(f"  s_sub_u32 s{sLeft}, s{sLeft}, 1")
    e(f"  s_cmp_lg_u32 s{sLeft}, 0")
    e("  s_cbranch_scc1 L_loop")
    e("L_phase_end:")
    reduce_l()
    e(f"  v_and_b32 v{tA}, 15, v0")
    e(f"  v_lshrrev_b32 v{tB}, 4, v0")
    e(f"  s_cmp_lg_u32 s{sPh}, 0")
    e("  s_cbranch_scc1 L_final")
    e(f"  s_cmp_eq_u32 s{sW}, 2")
    e("  s_cbranch_scc1 L_noflush")
    e(f"  s_mul_i32 s{sTmp}, s{sW}, {FPART}")
    e(f"  s_add_u32 s{sTmp}, s{sTmp}, {FB}")
    e(f"  v_mul_u32_u24 v{t0}, 144, v{tA}")
    e(f"  v_mul_u32_u24 v{t1}, 2304, v{tB}")
    e(f"  v_add3_u32 v{t0}, v{t0}, v{t1}, s{sTmp}")
    e(f"  s_lshl_b32 s{sTmp}, s{sW}, 3")
    e(f"  s_add_u32 s{sTmp}, s{sTmp}, {FST}")
    e(f"  v_lshl_add_u32 v{t1}, v{tA}, 4, s{sTmp}")
    e(f"  ds_write_b64 v{t1}, {vr(vMC,2)}")
    for ee in range(8):
        e(f"  ds_write_b128 v{t0}, {vr(O+4*ee,4)} offset:{16*ee}")
    e("L_noflush:")
    e(f"  v_lshlrev_b32 v{t1}, 4, v0")
    e(f"  v_add_u32 v{t1}, {Q2}, v{t1}")
    e("  s_waitcnt lgkmcnt(0)")
    e("  s_barrier")
    for kk in range(4):
        e(f"  ds_read_b128 {vr(Q+4*kk,4)}, v{t1} offset:{kk*1024}")
    init_state()
    e(f"  s_mov_b32 s{sPh}, 0x1000")
    e(f"  s_mov_b32 s{sRem}, s{sRem2}")
    e(f"  s_mov_b32 s{sLeft}, s{sN2}")
    e("  s_waitcnt lgkmcnt(0)")
    st(2)
    e(f"  s_cmp_eq_u32 s{sLeft}, 0")
    e("  s_cbranch_scc1 L_phase_end")
    e(f"  s_cmp_lg_u32 s{sW}, 2")
    e("  s_cbranch_scc1 L_loop")
    e(f"  v_mov_b32 v{t0}, {FLG}")
    e("L_xwait:")
    e("  s_sleep 2")
    e(f"  ds_read_b32 v{t1}, v{t0} offset:8")
    e("  s_waitcnt lgkmcnt(0)")
    e(f"  v_readfirstlane_b32 s{sTmp}, v{t1}")
    e("  s_nop 0")
    e(f"  s_cmp_eq_u32 s{sTmp}, 0")
    e("  s_cbranch_scc1 L_xwait")
    e("  s_branch L_issue")

    e("L_event:")
    e(f"  s_cmp_eq_u32 s{sPh}, 0")
    e("  s_cbranch_scc1 L_getinfo")
    e(f"  s_lshl_b32 s{sTmp}, s{sW}, 2")
    e(f"  v_mov_b32 v{t1}, s{sTmp}")
    e(f"  ds_write_b32 v{t1}, v{vKr} offset:{FLG+4}") if FLG + 4 < 65536 else None
    if FLG + 4 >= 65536:
        e(f"  v_add_u32 v{t1}, {FLG+4}, v{t1}")
        e(f"  ds_write_b32 v{t1}, v{t1}")
    e(f"  s_setpc_b64 {sr(sRET,2)}")
    e("L_getinfo:")
    e(f"  v_mov_b32 v{t1}, {REC}")
    e(f"  s_lshl_b32 s{sTmp}, s{sW}, 8")
    e(f"  s_add_u32 s{sTmp}, s{sTmp}, {LST}")
    e(f"  v_lshl_add_u32 v{t0}, v0, 2, s{sTmp}")
    e(f"  s_lshl_b32 s{sTmp}, s{sW}, 3")
    e(f"  v_add_u32 v{tD}, s{sTmp}, v{t1}")
    e("L_gi_poll:")
    e(f"  ds_read_b32 v{tC}, v{t1} offset:32")
    e("  s_waitcnt lgkmcnt(0)")
    e(f"  v_readfirstlane_b32 s{sTmp}, v{tC}")
    e("  s_nop 0")
    e(f"  s_cmp_eq_u32 s{sTmp}, 0")
    e("  s_cbranch_scc1 L_gi_poll")
    e(f"  ds_read_b32 v{vBT}, v{t0}")
    e(f"  ds_read_b64 {vr(S,2)}, v{t1}")
    e(f"  ds_read_b64 {vr(S+2,2)}, v{tD} offset:8")
    e("  s_waitcnt lgkmcnt(0)")
    e(f"  v_readfirstlane_b32 s{sOB}, v{S}")
    e(f"  v_readfirstlane_b32 s{sEv}, v{S+1}")
    e(f"  v_readfirstlane_b32 s{sN2}, v{S+2}")
    e(f"  v_readfirstlane_b32 s{sRem2}, v{S+3}")
    e(f"  s_and_b32 s{sTmp}, s{sEv}, 0xffff")
    e(f"  s_lshr_b32 s{sEv}, s{sEv}, 16")
    e(f"  s_cmp_eq_u32 s{sW}, 0")
    e(f"  s_cselect_b32 s{sEv}, s{sTmp}, s{sEv}")
    e(f"  s_cmp_eq_u32 s{sW}, 2")
    e(f"  s_cselect_b32 s{sEv}, -1, s{sEv}")
    e(f"  s_setpc_b64 {sr(sRET,2)}")

    e("L_final:")
    st(3)
    e(f"  s_mul_i32 s{sTmp}, s{sW}, {GPART}")
    e(f"  s_add_u32 s{sTmp}, s{sTmp}, {GB}")
    e(f"  v_mul_u32_u24 v{t0}, {ROWB}, v{tA}")
    e(f"  v_lshl_add_u32 v{t0}, v{tB}, 7, v{t0}")
    e(f"  v_add_u32 v{t0}, s{sTmp}, v{t0}")
    e(f"  s_lshl_b32 s{sTmp}, s{sW}, 3")
    e(f"  s_add_u32 s{sTmp}, s{sTmp}, {GST}")
    e(f"  v_lshl_add_u32 v{t1}, v{tA}, 5, s{sTmp}")
    e(f"  ds_write_b64 v{t1}, {vr(vMC,2)}")
    for ee in range(8):
        e(f"  ds_write_b128 v{t0}, {vr(O+4*ee,4)} offset:{16*ee}")
    e(f"  s_lshl_b32 s{sTmp}, s{sW}, 2")
    e(f"  s_add_u32 s{sTmp}, s{sTmp}, {FLG+4}")
    e(f"  v_mov_b32 v{t1}, s{sTmp}")
    e(f"  ds_write_b32 v{t1}, v{t1}")
    e("L_b2:")
    srd(sO, 14, Q_BYTES)
    e(f"  s_lshl_b32 s{sTmp}, s{sW}, 2")
    e(f"  v_lshrrev_b32 v{tA}, 5, v0")
    e(f"  v_add_u32 v{tA}, s{sTmp}, v{tA}")
    e(f"  v_and_b32 v{tB}, 31, v0")
    e(f"  v_mul_u32_u24 v{t0}, {ROWB}, v{tA}")
    e(f"  v_lshl_add_u32 v{t0}, v{tB}, 4, v{t0}")
    e(f"  v_add_u32 v{t0}, {GB}, v{t0}")
    e(f"  v_lshlrev_b32 v{t1}, 5, v{tA}")
    e(f"  v_add_u32 v{t1}, {GST}, v{t1}")
    e(f"  v_lshrrev_b32 v{tC}, 3, v{tB}")
    e(f"  v_and_b32 v{tB}, 7, v{tB}")
    e(f"  v_lshlrev_b32 v{tA}, 8, v{tA}")
    e(f"  v_lshl_add_u32 v{tA}, v{tC}, 6, v{tA}")
    e(f"  v_lshl_add_u32 v{tA}, v{tB}, 1, v{tA}")
    e("  s_waitcnt lgkmcnt(0)")
    e("  s_barrier")
    for ch in range(2):
        ST = KT + 8 * ch
        for u in range(2):
            e(f"  ds_read_b128 {vr(ST+4*u,4)}, v{t1} offset:{ch*64+16*u}")
    PBs = [VT, O]
    for ch in range(2):
        for u in range(NP):
            e(f"  ds_read_b128 {vr(PBs[ch]+4*u,4)}, v{t0} offset:{u*GPART + ch*2*ROWB}")
    e(f"  s_waitcnt lgkmcnt({2*NP})")
    for ch in range(2):
        ST = KT + 8 * ch
        m = KT + 24 + 2 * ch
        e(f"  v_max3_f32 v{m}, v{ST}, v{ST+2}, v{ST+4}")
        e(f"  v_max_f32 v{m}, v{m}, v{ST+6}")
    for ch in range(2):
        ST = KT + 8 * ch
        m = KT + 24 + 2 * ch
        for u in range(NP):
            e(f"  v_sub_f32 v{ST+2*u}, v{ST+2*u}, v{m}")
    for ch in range(2):
        ST = KT + 8 * ch
        for u in range(NP):
            e(f"  v_exp_f32 v{ST+2*u}, v{ST+2*u}")
    for ch in range(2):
        ST = KT + 8 * ch
        l = KT + 24 + 2 * ch + 1
        e(f"  v_mul_f32 v{l}, v{ST}, v{ST+1}")
        for u in range(1, NP):
            e(f"  v_fmac_f32 v{l}, v{ST+2*u}, v{ST+2*u+1}")
    for ch in range(2):
        l = KT + 24 + 2 * ch + 1
        e(f"  v_rcp_f32 v{l}, v{l}")
    for ch in range(2):
        ST = KT + 8 * ch
        PB = PBs[ch]
        l = KT + 24 + 2 * ch + 1
        R = S + 4 * ch
        e(f"  s_waitcnt lgkmcnt({NP*(1-ch)})")
        for i in range(4):
            e(f"  v_mul_f32 v{R+i}, v{ST}, v{PB+i}")
        for u in range(1, NP):
            for i in range(4):
                e(f"  v_fmac_f32 v{R+i}, v{ST+2*u}, v{PB+4*u+i}")
        for i in range(4):
            e(f"  v_mul_f32 v{R+i}, v{R+i}, v{l}")
        e(f"  v_cvt_pk_bf16_f32 v{P+2*ch}, v{R}, v{R+1}")
        e(f"  v_cvt_pk_bf16_f32 v{P+2*ch+1}, v{R+2}, v{R+3}")
        e(f"  buffer_store_short v{P+2*ch}, v{tA}, {sr(sO,4)}, s{sOB} offen offset:{ch*512}")
        e(f"  buffer_store_short_d16_hi v{P+2*ch}, v{tA}, {sr(sO,4)}, s{sOB} offen offset:{ch*512+16}")
        e(f"  buffer_store_short v{P+2*ch+1}, v{tA}, {sr(sO,4)}, s{sOB} offen offset:{ch*512+32}")
        e(f"  buffer_store_short_d16_hi v{P+2*ch+1}, v{tA}, {sr(sO,4)}, s{sOB} offen offset:{ch*512+48}")
    if stamp:
        e("  s_waitcnt vmcnt(0)")
        e(f"  s_cmp_eq_u32 s{sW}, 3")
        e("  s_cbranch_scc1 L_stamp")
        st(4)
        e("  s_branch L_stamp")
    else:
        e("  s_endpgm")

    e("L_service:")
    e("  s_setprio 3")
    vC, vN, vKey, vRk = 32, 33, 35, 36
    vI, vPar = tC, tD
    e(f"  v_mov_b32 v{vRk}, 0")
    e(f"  v_mov_b32 v{vNON+2}, 0")
    e(f"  v_mov_b32 v{vNON+3}, 0")
    e(f"  v_mov_b32 v{t0}, {FLG}")
    e(f"  ds_write_b64 v{t0}, {vr(vNON+2,2)}")
    e(f"  ds_write_b64 v{t0}, {vr(vNON+2,2)} offset:8")
    e(f"  v_and_b32 v{vKey}, 31, v0")
    e(f"  v_lshlrev_b32 v{t0}, 2, v{vKey}")
    e(f"  s_movk_i32 s{sT2}, 2047")
    e("  s_waitcnt lgkmcnt(0)")
    if stamp:
        e(f"  s_mov_b32 s{sST}, s100")
    srd(sK, 12, 128)
    e(f"  buffer_load_dword v{vC}, v{t0}, {sr(sK,4)}, 0 offen")
    e(f"  s_memrealtime {sr(sNON,2)}")
    e("  s_barrier")
    srd(sBT, 10, 32 * 128 * 4)
    srd(sQ, 4, Q_BYTES)
    srd(sWS, sDBG + 2, 256 * SLOTB)
    e(f"  s_xor_b32 s{sH2}, s{sH}, {hx}")
    e("  s_waitcnt vmcnt(0)")
    e(f"  v_add_u32 v{vN}, -1, v{vC}")
    e(f"  v_min_u32 v{vN}, s{sT2}, v{vN}")
    e(f"  v_max_i32 v{vC}, 0, v{vC}")
    e(f"  v_lshl_add_u32 v{vKey}, v{vN}, 5, v{vKey}")
    e("  s_nop 0")
    for g in range(4):
        for j in range(8):
            e(f"  v_readlane_b32 s{56+j}, v{vKey}, {8*g+j}")
        for j in range(8):
            e(f"  v_cmp_lt_u32 {sr(sM+2*j,2)}, s{56+j}, v{vKey}")
        for j in range(8):
            e(f"  v_addc_co_u32 v{vRk}, vcc, 0, v{vRk}, {sr(sM+2*j,2)}")
    e("  s_nop 0")
    e(f"  v_readlane_b32 s{sTmp}, v{vRk}, s{sB}")
    e("  s_nop 0")
    e(f"  s_sub_u32 s{sTmp}, 31, s{sTmp}")
    e(f"  v_cmp_eq_u32 vcc, s{sTmp}, v{vRk}")
    e(f"  v_readlane_b32 s{sNB}, v{vN}, s{sB}")
    e("  s_nop 3")
    e(f"  s_ff1_i32_b64 s{sB2}, vcc")
    e(f"  s_and_b32 s{sB2}, s{sB2}, 31")
    e(f"  v_cmp_eq_u32 vcc, 31, v{vRk}")
    e(f"  v_readlane_b32 s{sNB2}, v{vN}, s{sB2}")
    e(f"  v_readlane_b32 s{sCL2}, v{vC}, s{sB2}")
    e("  s_nop 2")
    e(f"  s_ff1_i32_b64 s{sTmp}, vcc")
    e(f"  v_readlane_b32 s{sEv}, v{vN}, s{sTmp}")
    e(f"  s_lshr_b32 s{sA1}, s{sNB}, 6")
    e(f"  s_add_u32 s{sA1}, s{sA1}, 1")
    e(f"  s_lshr_b32 s{sNB}, s{sNB}, 4")
    e(f"  s_add_u32 s{sNB}, s{sNB}, 1")
    e(f"  s_lshr_b32 s{sA2}, s{sNB2}, 6")
    e(f"  s_add_u32 s{sA2}, s{sA2}, 1")
    e(f"  s_lshr_b32 s{sT5}, s{sNB2}, 5")
    e(f"  s_add_u32 s{sX2}, s{sT5}, 1")
    e(f"  s_sub_u32 s{sX2}, s{sX2}, s{sA2}")
    e(f"  s_lshr_b32 s{sNB2}, s{sNB2}, 4")
    e(f"  s_add_u32 s{sNB2}, s{sNB2}, 1")
    e(f"  s_add_u32 s{sLeft}, s{sA1}, s{sX2}")
    e(f"  s_add_u32 s{sOdd}, s{sLeft}, {E0}")
    e(f"  s_and_b32 s{sOdd}, s{sOdd}, {1 if odd else 0}")
    e(f"  s_add_u32 s{sOdd}, s{sOdd}, {E0}")
    e(f"  s_min_u32 s{sOdd}, s{sOdd}, s{sX2}")
    e(f"  s_sub_u32 s{sX2}, s{sX2}, s{sOdd}")
    e(f"  s_add_u32 s{sT5}, s{sA2}, s{sX2}")
    e(f"  s_add_u32 s{sRem}, s{sA2}, s{sX2}")
    e(f"  s_lshl_b32 s{sRem}, s{sRem}, 1")
    e(f"  s_min_u32 s{sRem}, s{sRem}, s{sNB2}")
    e(f"  s_lshr_b32 s{sEv}, s{sEv}, 6")
    e(f"  s_add_u32 s{sEv}, s{sEv}, 1")
    e(f"  s_mul_i32 s{sTmp}, s{sLeft}, {pf}")
    e(f"  s_lshr_b32 s{sTmp}, s{sTmp}, 8")
    e(f"  s_min_u32 s{sEv}, s{sEv}, s{sTmp}")
    e(f"  s_add_u32 s{sEv}, s{sEv}, 1")
    e(f"  s_lshr_b32 s{sEv}, s{sEv}, 1")
    e(f"  s_lshl_b32 s{sT2}, s{sB}, 9")
    e(f"  s_lshl_b32 s{sT3}, s{sB2}, 9")
    e(f"  s_lshl_b32 s{sX}, s{sB2}, 3")
    e(f"  s_add_u32 s{sX}, s{sX}, s{sH2}")
    e(f"  s_lshl_b32 s{sOB}, s{sX}, 12")
    LB = 40
    RC = S
    for w in range(2):
        e(f"  s_add_u32 s{sN2}, s{sA1}, {1-w}")
        e(f"  s_lshr_b32 s{sN2}, s{sN2}, 1")
        e(f"  s_add_u32 s{sTmp}, s{sA1}, {w}")
        e(f"  s_and_b32 s{sTmp}, s{sTmp}, 1")
        e(f"  s_sub_u32 s{sT4}, s{sX2}, s{sTmp}")
        e(f"  s_add_u32 s{sT4}, s{sT4}, 1")
        e(f"  s_lshr_b32 s{sT4}, s{sT4}, 1")
        e(f"  v_mov_b32 v{RC+2+2*w}, s{sT4}")
        if w == 0:
            e(f"  s_cmp_gt_u32 s{sEv}, s{sN2}")
            e(f"  s_cselect_b32 s{sPh}, 1, 0")
            e(f"  s_add_u32 s{sT4}, s{sT4}, s{sN2}")
            e(f"  s_sub_i32 s{sEv}, s{sT4}, s{sEv}")
            e(f"  s_add_u32 s{sEv}, s{sEv}, 0x1000")
        else:
            e(f"  s_min_u32 s{sT4}, s{sT4}, s{sOdd}")
            e(f"  s_add_u32 s{sT4}, s{sT4}, 0x1000")
            e(f"  s_lshl_b32 s{sT4}, s{sT4}, 16")
            e(f"  s_or_b32 s{sEv}, s{sEv}, s{sT4}")
        e(f"  s_add_u32 s{sTmp}, s{sTmp}, s{sA2}")
        e(f"  s_lshl_b32 s{sT4}, s{sTmp}, 5")
        e(f"  s_sub_i32 s{sT4}, s{sCL2}, s{sT4}")
        e(f"  v_mov_b32 v{RC+3+2*w}, s{sT4}")
        e(f"  s_lshl_b32 s{sT4}, s{sN2}, 1")
        e(f"  s_sub_u32 s{sTmp}, s{sTmp}, s{sT4}")
        e(f"  v_cmp_gt_u32 vcc, s{sN2}, v{vI}")
        e(f"  v_mov_b32 v{t0}, s{sTmp}")
        e(f"  v_mov_b32 v{vAl}, s{sRem}")
        e(f"  v_mov_b32 v{vAl+1}, {w}")
        e(f"  v_cndmask_b32 v{t0}, v{t0}, v{vAl+1}, vcc")
        e(f"  v_lshl_add_u32 v{t0}, v{vI}, 1, v{t0}")
        e(f"  v_lshl_add_u32 v{LB+w}, v{t0}, 1, v{vPar}")
        e(f"  v_mov_b32 v{vAl+1}, s{sNB}")
        e(f"  v_cndmask_b32 v{LB+8+w}, v{vAl}, v{vAl+1}, vcc")
        e(f"  v_mov_b32 v{vAl}, s{sT3}")
        e(f"  v_mov_b32 v{vAl+1}, s{sT2}")
        e(f"  v_cndmask_b32 v{t0}, v{vAl}, v{vAl+1}, vcc")
        e(f"  v_lshl_add_u32 v{t0}, v{LB+w}, 2, v{t0}")
        e(f"  buffer_load_dword v{LB+4+w}, v{t0}, {sr(sBT,4)}, 0 offen")
        e(f"  v_mov_b32 v{vAl}, s{sH2}")
        e(f"  v_mov_b32 v{vAl+1}, s{sH}")
        e(f"  v_cndmask_b32 v{LB+12+w}, v{vAl}, v{vAl+1}, vcc")
        e(f"  v_lshlrev_b32 v{LB+12+w}, 8, v{LB+12+w}")
    e(f"  s_lshl_b32 s{sTmp}, s{sT5}, 1")
    e(f"  v_add_u32 v{LB+2}, s{sTmp}, v0")
    e(f"  v_lshlrev_b32 v{t0}, 2, v{LB+2}")
    e(f"  buffer_load_dword v{LB+6}, v{t0}, {sr(sBT,4)}, s{sT3} offen")
    e(f"  v_mov_b32 v{LB+10}, s{sNB2}")
    e(f"  s_lshl_b32 s{sTmp}, s{sH2}, 8")
    e(f"  v_mov_b32 v{LB+14}, s{sTmp}")
    e(f"  v_mov_b32 v{RC+6}, s{sOdd}")
    e(f"  s_lshl_b32 s{sTmp}, s{sT5}, 5")
    e(f"  s_sub_i32 s{sTmp}, s{sCL2}, s{sTmp}")
    e(f"  v_mov_b32 v{RC+7}, s{sTmp}")
    for kk in range(4):
        e(f"  s_mov_b32 m0, {Q2 + kk*960}")
        e("  s_nop 0")
        e(f"  buffer_load_dwordx4 v{t1}, {sr(sQ,4)}, s{sOB} offen offset:{kk*64} lds")
    e(f"  v_mov_b32 v{RC}, s{sOB}")
    e(f"  v_mov_b32 v{RC+1}, s{sEv}")
    e(f"  v_mov_b32 v{vKey}, {REC}")
    e(f"  ds_write_b128 v{vKey}, {vr(RC,4)}")
    e(f"  ds_write_b128 v{vKey}, {vr(RC+4,4)} offset:16")
    e(f"  v_lshlrev_b32 v{t0}, 2, v0")
    e(f"  v_add_u32 v{t0}, {LST}, v{t0}")
    e(f"  v_mov_b32 v{vAl}, {hex(OOB)}")
    for w in range(3):
        e(f"  v_cmp_lt_u32 vcc, v{LB+w}, v{LB+8+w}")
        e(f"  s_waitcnt vmcnt({4+2-w})")
        e(f"  v_lshl_add_u32 v{LB+4+w}, v{LB+4+w}, 15, v{LB+12+w}")
        e(f"  v_cndmask_b32 v{LB+4+w}, v{vAl}, v{LB+4+w}, vcc")
        e(f"  ds_write_b32 v{t0}, v{LB+4+w} offset:{w*256}")
    e(f"  v_mov_b32 v{vAl}, 1")
    e("  s_waitcnt lgkmcnt(0)")
    e(f"  ds_write_b32 v{vKey}, v{vAl} offset:32")
    st(1)
    e(f"  s_or_b32 s{sNON}, s{sNON}, 1")
    e(f"  v_mov_b32 v{vNON}, s{sNON}")
    e(f"  v_mov_b32 v{vNON+1}, s{sNON+1}")
    e(f"  s_mov_b64 {sr(sM,2)}, exec")
    e(f"  s_cmp_lg_u32 s2, 0")
    e("  s_cbranch_scc1 L_nocas")
    e("  s_mov_b64 exec, 1")
    e(f"  global_atomic_cmpswap_x2 v{vNON+2}, {vr(vNON,4)}, {sr(sDBG,2)} sc1")
    e(f"  s_mov_b64 exec, {sr(sM,2)}")
    e("L_nocas:")
    e(f"  v_mul_u32_u24 v{t0}, 144, v{tA}")
    e(f"  v_mul_u32_u24 v{t1}, 2304, v{tB}")
    e(f"  v_add_u32 v{t0}, v{t0}, v{t1}")
    e(f"  v_add_u32 v{t0}, {FB}, v{t0}")
    e(f"  v_lshlrev_b32 v{t1}, 4, v{tA}")
    e(f"  v_add_u32 v{t1}, {FST}, v{t1}")
    e(f"  v_lshlrev_b32 v{tC}, 4, v0")
    e(f"  v_lshlrev_b32 v{tD}, 2, v0")
    e(f"  s_mul_i32 s{sT2}, s2, {SLOTB}")
    e(f"  s_mul_i32 s{sT3}, s{sX}, {SLOTB}")
    e("  s_waitcnt vmcnt(0) lgkmcnt(0)")
    e("  s_barrier")
    if nohand:
        e("  s_branch L_b2")
    e(f"  global_load_dwordx2 {vr(vNON+4,2)}, v{vNON+2}, {sr(sDBG,2)} sc1")
    ST = 32
    R = 40
    PB = 72
    e(f"  ds_read_b128 {vr(ST,4)}, v{t1}")
    for ee in range(7):
        for u in range(NS):
            e(f"  ds_read_b128 {vr(PB+8*ee+4*u,4)}, v{t0} offset:{u*FPART+16*ee}")
    e(f"  s_waitcnt lgkmcnt(14)")
    for u in range(NS):
        e(f"  ds_read_b128 {vr(PB+8*7+4*u,4)}, v{t0} offset:{u*FPART+16*7}") if u == 0 else None
    e(f"  v_max_f32 v{vMC}, v{ST}, v{ST+2}")
    for u in range(NS):
        e(f"  v_sub_f32 v{ST+2*u}, v{ST+2*u}, v{vMC}")
    for u in range(NS):
        e(f"  v_exp_f32 v{ST+2*u}, v{ST+2*u}")
    e(f"  s_waitcnt lgkmcnt(13)")
    e(f"  ds_read_b128 {vr(PB+8*7+4,4)}, v{t0} offset:{FPART+16*7}")
    e(f"  v_mul_f32 v{vL}, v{ST}, v{ST+1}")
    e(f"  v_fmac_f32 v{vL}, v{ST+2}, v{ST+3}")
    for ee in range(8):
        e(f"  s_waitcnt lgkmcnt({14-2*ee})")
        for i in range(4):
            e(f"  v_mul_f32 v{R+4*ee+i}, v{ST}, v{PB+8*ee+i}")
        for i in range(4):
            e(f"  v_fmac_f32 v{R+4*ee+i}, v{ST+2}, v{PB+8*ee+4+i}")
    e("  s_waitcnt vmcnt(0)")
    e(f"  v_readfirstlane_b32 s{sT4}, v{vNON+4}")
    e(f"  v_readfirstlane_b32 s{sT5}, v{vNON+5}")
    e("  s_nop 0")
    e(f"  s_cmp_lg_u32 s{sT4}, 0")
    e("  s_cbranch_scc1 L_havenonce")
    e("  s_mov_b64 exec, 1")
    e(f"  global_atomic_cmpswap_x2 {vr(vNON+4,2)}, v{vNON+2}, {vr(vNON,4)}, {sr(sDBG,2)} sc0 sc1")
    e(f"  s_mov_b64 exec, {sr(sM,2)}")
    e("  s_waitcnt vmcnt(0)")
    e(f"  v_readfirstlane_b32 s{sT4}, v{vNON+4}")
    e(f"  v_readfirstlane_b32 s{sT5}, v{vNON+5}")
    e("  s_nop 0")
    e(f"  s_cmp_lg_u32 s{sT4}, 0")
    e(f"  s_cselect_b32 s{sT4}, s{sT4}, s{sNON}")
    e(f"  s_cselect_b32 s{sT5}, s{sT5}, s{sNON+1}")
    e("L_havenonce:")
    e(f"  s_mov_b32 s{sNON}, s{sT4}")
    e(f"  s_mov_b32 s{sNON+1}, s{sT5}")
    e(f"  v_mov_b32 v{vNON}, s{sT4}")
    e(f"  v_mov_b32 v{vNON+1}, s{sT5}")
    e(f"  s_cmp_eq_u32 s{sPh}, 0")
    e("  s_cbranch_scc1 L_publish")
    e(f"  v_mov_b32 v{t0}, {FLG}")
    e("L_trig:")
    e("  s_sleep 2")
    e(f"  ds_read_b32 v{t1}, v{t0} offset:4")
    e("  s_waitcnt lgkmcnt(0)")
    e(f"  v_readfirstlane_b32 s{sTmp}, v{t1}")
    e("  s_nop 0")
    e(f"  s_cmp_eq_u32 s{sTmp}, 0")
    e("  s_cbranch_scc1 L_trig")
    e("L_publish:")
    e(f"  s_add_u32 s{sT4}, s{sT2}, 4096")
    e(f"  s_add_u32 s{sT5}, s{sT2}, 8192")
    for ee in range(8):
        e(f"  buffer_store_dwordx4 {vr(R+4*ee,4)}, v{tC}, {sr(sWS,4)}, s{sT2 if ee < 4 else sT4} offen offset:{(ee&3)*1024} sc1")
    e(f"  buffer_store_dword v{vMC}, v{tD}, {sr(sWS,4)}, s{sT5} offen sc1")
    e(f"  buffer_store_dword v{vL}, v{tD}, {sr(sWS,4)}, s{sT5} offen offset:256 sc1")
    e(f"  s_add_u32 s{sT4}, s{sT3}, 8704")
    e("  s_waitcnt vmcnt(0)")
    e("  s_mov_b64 exec, 1")
    e(f"  buffer_store_dwordx2 {vr(vNON,2)}, v{vNON+2}, {sr(sWS,4)}, s{sT5} offen offset:512 sc1")
    e(f"  s_mov_b32 s{sT5}, 0x40000")
    st(2)
    e("L_poll:")
    e(f"  buffer_load_dwordx2 {vr(vNON+4,2)}, v{vNON+2}, {sr(sWS,4)}, s{sT4} offen sc1")
    e("  s_waitcnt vmcnt(0)")
    e(f"  v_readfirstlane_b32 s{sN2}, v{vNON+4}")
    e(f"  v_readfirstlane_b32 s{sN2+1}, v{vNON+5}")
    e("  s_nop 0")
    e(f"  s_cmp_eq_u64 {sr(sN2,2)}, {sr(sNON,2)}")
    e("  s_cbranch_scc1 L_got")
    e(f"  s_sleep {sleep}")
    e(f"  s_sub_u32 s{sT5}, s{sT5}, 1")
    e(f"  s_cmp_lg_u32 s{sT5}, 0")
    e("  s_cbranch_scc1 L_poll")
    e("L_got:")
    e(f"  s_mov_b64 exec, {sr(sM,2)}")
    st(3)
    e(f"  s_add_u32 s{sT4}, s{sT3}, 8192")
    e(f"  buffer_load_dword v{vMC}, v{tD}, {sr(sWS,4)}, s{sT4} offen sc1")
    e(f"  buffer_load_dword v{vL}, v{tD}, {sr(sWS,4)}, s{sT4} offen offset:256 sc1")
    e(f"  s_add_u32 s{sT4}, s{sT3}, 4096")
    for ee in range(8):
        e(f"  buffer_load_dwordx4 {vr(R+4*ee,4)}, v{tC}, {sr(sWS,4)}, s{sT3 if ee < 4 else sT4} offen offset:{(ee&3)*1024} sc1")
    e(f"  v_mul_u32_u24 v{t0}, {ROWB}, v{tA}")
    e(f"  v_lshl_add_u32 v{t0}, v{tB}, 7, v{t0}")
    e(f"  v_add_u32 v{t0}, {GB + 3*GPART}, v{t0}")
    e(f"  v_lshlrev_b32 v{t1}, 5, v{tA}")
    e(f"  v_add_u32 v{t1}, {GST + 24}, v{t1}")
    e("  s_waitcnt vmcnt(8)")
    e(f"  ds_write_b64 v{t1}, {vr(vMC,2)}")
    for ee in range(8):
        e(f"  s_waitcnt vmcnt({7-ee})")
        e(f"  ds_write_b128 v{t0}, {vr(R+4*ee,4)} offset:{16*ee}")
    st(4)
    e("  s_branch L_b2")
    if stamp:
        e("L_stamp:")
        e(f"  s_lshl_b32 s{sTmp}, s2, 2")
        e(f"  s_add_u32 s{sTmp}, s{sTmp}, s{sW}")
        e(f"  s_lshl_b32 s{sTmp}, s{sTmp}, 5")
        e(f"  s_add_u32 s{sTmp}, s{sTmp}, {256*SLOTB}")
        e(f"  v_mov_b32 v{t0}, s{sTmp}")
        for i in range(5):
            e(f"  v_mov_b32 v{S+i}, s{sST+i}")
        e("  s_getreg_b32 s100, hwreg(HW_REG_XCC_ID)")
        e(f"  v_mov_b32 v{S+5}, s100")
        e(f"  v_mov_b32 v{S+6}, s{sA1}")
        e("  s_getreg_b32 s100, hwreg(HW_REG_HW_ID)")
        e(f"  v_mov_b32 v{S+7}, s100")
        e("  s_mov_b64 exec, 1")
        e(f"  global_store_dwordx4 v{t0}, {vr(S,4)}, {sr(sDBG+2,2)}")
        e(f"  global_store_dwordx4 v{t0}, {vr(S+4,4)}, {sr(sDBG+2,2)} offset:16")
    e("L_end:")
    e("  s_endpgm")
    e('.section .rodata,"a"')
    e(".p2align 6")
    e(f".amdhsa_kernel {NAME}")
    e(f"  .amdhsa_next_free_vgpr {NV}")
    e("  .amdhsa_next_free_sgpr 102")
    e(f"  .amdhsa_accum_offset {(NV+3)//4*4}")
    e("  .amdhsa_group_segment_fixed_size 0")
    e("  .amdhsa_kernarg_size 64")
    e("  .amdhsa_user_sgpr_count 2")
    e("  .amdhsa_user_sgpr_kernarg_segment_ptr 1")
    e("  .amdhsa_system_sgpr_workgroup_id_x 1")
    e(".end_amdhsa_kernel")
    return "\n".join(L) + "\n"


if __name__ == "__main__":
    ap = argparse.ArgumentParser()
    ap.add_argument("-o", required=True)
    ap.add_argument("--kfl", default="nt")
    ap.add_argument("--vfl", default="nt")
    ap.add_argument("--stamp", action="store_true")
    ap.add_argument("--hx", type=int, default=1)
    ap.add_argument("--sleep", type=int, default=8)
    ap.add_argument("--nohand", action="store_true")
    ap.add_argument("--noodd", action="store_true")
    ap.add_argument("--pf", type=int, default=172)
    ap.add_argument("--e0", type=int, default=0)
    ap.add_argument("--ldspad", type=int, default=0)
    a = ap.parse_args()
    open(a.o, "w").write(gen(kfl=a.kfl, vfl=a.vfl, stamp=a.stamp, hx=a.hx, sleep=a.sleep, nohand=a.nohand, pf=a.pf, odd=not a.noodd, E0=a.e0, ldspad=a.ldspad))
```

```python
import sys, struct, math, argparse

NAME = "standalone__paged_block_table_kv_pagedattention__sampling_kernel"
HEADER = open("standalone__paged_block_table_kv_pagedattention__sampling.s.ref").read().split("; Override launch")[0]

KV_BYTES = 4100 * 16 * 8 * 128 * 2
Q_BYTES = 32 * 32 * 4 * 128 * 2
OOB = 0x10000000
SLOTB = 9216


def f32bits(x):
    return struct.unpack("<I", struct.pack("<f", x))[0]


def gen(kfl="nt", vfl="nt", stamp=False, hx=1, sleep=8, nohand=False, pf=172, odd=True, E0=0, ldspad=0, order=0, skip='', xlead=0, cyc=False, dl=(0,0,0,0), go=0, pfb=216, cap=True, pipe=0):
    TAB = sum(((d + 8) & 15) << (4 * c) for c, d in enumerate(dl))
    skip = set(skip.split(','))
    L = []
    e = L.append
    NS = 2
    NP = 4
    KFL = (" " + kfl.replace("+", " ")) if kfl else ""
    VFL = (" " + vfl.replace("+", " ")) if vfl else ""
    vKo, vKr, vV0, vV1, vBT, v4r = 1, 5, 9, 10, 11, 12
    vNON = 14
    vMC, vL, vAl, vMCn = 20, 21, 22, 24
    t0, t1, tA, tB, tC, tD = 25, 26, 27, 28, 29, 30
    Q, O, S, P, KT, VT, VB = 32, 48, 80, 88, 92, 124, 156
    NV = 188
    sK, sV, sBT, sQ, sO, sWS = 16, 20, 24, 28, 32, 36
    (sB, sH, sW, sCL, sNB, sLeft, sIdx, sO0, sO1, sRem, sC, sSelLo, sSelHi, sTmp, sNeg, sKB,
     sN2, sRem2, sOB, sPh, sX, sA1, sT2, sT3, sT4, sT5, sB2, sH2, sA2, sNB2, sX2, sCL2) = range(40, 72)
    sM = 72
    sDBG = 88
    sST = 92
    sEv = 97
    sNON = 98
    sRET = 98
    sOdd = 3
    sDec = 3
    KSLOT = 8192
    FB = 3 * KSLOT
    FPART = 9216
    FST = FB + NS * FPART
    GB = FST + 16 * 16
    ROWB = 528
    GPART = 16 * ROWB
    GST = GB + NP * GPART
    LST = GB + 3 * GPART
    Q2 = GST + 16 * 32
    REC = Q2 + 4096
    FLG = REC + 32
    LDS = max(FLG + 16, ldspad)

    def vr(a, n):
        return f"v[{a}:{a+n-1}]"

    def sr(a, n):
        return f"s[{a}:{a+n-1}]"

    def srd(r, lo, nbytes):
        e(f"  s_mov_b32 s{r}, s{lo}")
        e(f"  s_mov_b32 s{r+1}, s{lo+1}")
        e(f"  s_mov_b32 s{r+2}, {nbytes}")
        e(f"  s_mov_b32 s{r+3}, 0x00020000")

    def st(i):
        if stamp:
            e(f"  s_memrealtime s[100:101]")
            e(f"  s_waitcnt lgkmcnt(0)")
            e(f"  s_mov_b32 s{sST+i}, s100")

    def loadKV():
        loadK()
        loadV()

    def loadK():
        for T in range(2):
            e(f"  s_add_u32 m0, s{sKB}, {T*4096}")
            e(f"  s_nop 0")
            for i in range(4):
                e(f"  buffer_load_dwordx4 v{vKo+i}, {sr(sK,4)}, s{sO0+T} offen offset:{i*1024}{KFL} lds")

    def loadV():
        for j in range(8):
            T, i = j >> 2, j & 3
            e(f"  buffer_load_dwordx4 {vr(VB+4*j,4)}, v{vV0 + (i>>1)}, {sr(sV,4)}, s{sO0+T} offen offset:{(i&1)*2048}{VFL}")

    def next_offsets():
        e(f"  v_readlane_b32 s{sO0}, v{vBT}, s{sIdx}")
        e(f"  s_add_u32 s{sIdx}, s{sIdx}, 1")
        e(f"  v_readlane_b32 s{sO1}, v{vBT}, s{sIdx}")
        e(f"  s_add_u32 s{sIdx}, s{sIdx}, 1")

    def reduce_l():
        for sw in ("32", "16"):
            e(f"  v_mov_b32 v{t1}, v{vL}")
            e("  s_nop 1")
            e(f"  v_permlane{sw}_swap_b32 v{vL}, v{t1}")
            e("  s_nop 1")
            e(f"  v_add_f32 v{vL}, v{vL}, v{t1}")

    def init_state():
        for i in range(32):
            e(f"  v_mov_b32 v{O+i}, 0")
        e(f"  v_mov_b32 v{vMC}, 0xff7fffff")
        e(f"  v_mov_b32 v{vL}, 0")

    def split(dst, nm1, h, tmp):
        e(f"  s_lshr_b32 s{dst}, s{nm1}, 6")
        e(f"  s_add_u32 s{dst}, s{dst}, 1")
        if any(dl):
            e(f"  s_lshr_b32 s{tmp}, s6, 8")
            e(f"  s_add_u32 s{tmp}, s{tmp}, s{h}")
            e(f"  s_and_b32 s{tmp}, s{tmp}, 3")
            e(f"  s_lshl_b32 s{tmp}, s{tmp}, 2")
            e(f"  s_lshr_b32 s{tmp}, {TAB}, s{tmp}")
            e(f"  s_and_b32 s{tmp}, s{tmp}, 15")
            e(f"  s_add_u32 s{dst}, s{dst}, s{tmp}")
            e(f"  s_sub_i32 s{dst}, s{dst}, 8")
            e(f"  s_max_i32 s{dst}, s{dst}, 1")
            e(f"  s_lshr_b32 s{tmp}, s{nm1}, 5")
            e(f"  s_add_u32 s{tmp}, s{tmp}, 1")
            e(f"  s_min_u32 s{dst}, s{dst}, s{tmp}")

    e(HEADER.rstrip("\n"))
    e(f"; @launch grid=(256,1,1) block=(256,1,1) lds={LDS}")
    e('.amdgcn_target "amdgcn-amd-amdhsa--gfx950"')
    e(".text")
    e(f".globl {NAME}")
    e(".p2align 8")
    e(f".type {NAME},@function")
    e(f"{NAME}:")
    e("  s_cmp_ge_u32 s2, 256")
    e("  s_cbranch_scc1 L_end")
    if stamp:
        e("  s_memrealtime s[100:101]")
    e("  s_load_dwordx8 s[4:11], s[0:1], 0")
    e("  s_load_dwordx4 s[12:15], s[0:1], 32")
    e(f"  s_load_dwordx4 {sr(sDBG,4)}, s[0:1], 48")
    e(f"  v_lshrrev_b32 v{t0}, 6, v0")
    e(f"  v_and_b32 v0, 63, v0")
    e(f"  v_readfirstlane_b32 s{sW}, v{t0}")
    e(f"  s_lshr_b32 s{sB}, s2, 3")
    e(f"  s_and_b32 s{sH}, s2, 7")
    e(f"  v_and_b32 v{tA}, 15, v0")
    e(f"  v_lshrrev_b32 v{tB}, 4, v0")
    e(f"  v_lshrrev_b32 v{tC}, 1, v0")
    e(f"  v_and_b32 v{tD}, 1, v0")
    e(f"  v_lshlrev_b32 v{t1}, 8, v{tA}")
    e(f"  v_lshl_add_u32 v{t1}, v{tB}, 4, v{t1}")
    e(f"  s_cmp_eq_u32 s{sW}, 3")
    e("  s_cbranch_scc1 L_service")

    e(f"  s_lshl_b32 s{sIdx}, s{sW}, 1")
    e(f"  v_lshlrev_b32 v{t0}, 2, v{tC}")
    e(f"  v_add3_u32 v{tC}, v{t0}, v{tD}, s{sIdx}")
    e(f"  s_lshl_b32 s{sNB}, s{sB}, 9")
    e(f"  v_lshl_add_u32 v{t0}, v{tC}, 2, s{sNB}")
    e(f"  s_lshl_b32 s{sRem}, s{sB}, 2")
    e(f"  s_lshl_b32 s{sT2}, s2, 12")
    e(f"  s_lshl_b32 s{sKB}, s{sW}, 13")
    e(f"  s_lshl_b32 s{sT3}, s{sH}, 8")
    for i in range(4):
        e(f"  v_add_u32 v{vV0}, {4*i}, v{tB}")
        e(f"  v_xor_b32 v{vV1}, v{tA}, v{vV0}")
        e(f"  v_lshlrev_b32 v{vV0}, 11, v{vV0}")
        e(f"  v_lshl_add_u32 v{vKo+i}, v{vV1}, 4, v{vV0}")
        if i:
            e(f"  v_subrev_u32 v{vKo+i}, {i*1024}, v{vKo+i}")
    e(f"  v_lshlrev_b32 v{vV0}, 13, v{tB}")
    e(f"  v_lshl_add_u32 v{vV0}, v{tA}, 4, v{vV0}")
    e(f"  v_add_u32 v{vV1}, 0x1000, v{vV0}")
    e(f"  s_mov_b32 s{sBT+2}, {32*128*4}")
    e(f"  s_mov_b32 s{sBT+3}, 0x00020000")
    e("  s_waitcnt lgkmcnt(0)")
    if stamp:
        e(f"  s_mov_b32 s{sST}, s100")
    e(f"  s_mov_b32 s{sBT}, s10")
    e(f"  s_mov_b32 s{sBT+1}, s11")
    e(f"  buffer_load_dword v{vBT}, v{t0}, {sr(sBT,4)}, 0 offen")
    e(f"  s_load_dword s{sCL}, s[12:13], s{sRem}")
    srd(sQ, 4, Q_BYTES)
    for kk in range(4):
        e(f"  buffer_load_dwordx4 {vr(Q+4*kk,4)}, v{t1}, {sr(sQ,4)}, s{sT2} offen offset:{kk*64}")
    srd(sK, 6, KV_BYTES)
    srd(sV, 8, KV_BYTES)
    e(f"  s_mov_b32 s{sPh}, 0")
    e(f"  s_mov_b32 s{sEv}, 1")
    e(f"  s_mov_b32 s{sIdx}, 0")
    e("  s_barrier")
    e(f"  s_cmp_eq_u32 s{sW}, 2")
    e("  s_cbranch_scc1 L_consts")
    e("  s_waitcnt vmcnt(4)")
    e(f"  v_lshlrev_b32 v{vBT}, 15, v{vBT}")
    e(f"  v_add_u32 v{vBT}, s{sT3}, v{vBT}")
    e("  s_nop 0")
    e("L_issue:")
    next_offsets()
    e("  s_nop 1")
    loadKV()
    e(f"  s_cmp_lg_u32 s{sPh}, 0")
    e("  s_cbranch_scc1 L_loop")
    e(f"  s_cmp_eq_u32 s{sEv}, 1")
    e("  s_cbranch_scc0 L_phase_end")
    e("L_consts:")
    e(f"  v_lshlrev_b32 v{tD}, 8, v{tA}")
    e(f"  v_add_u32 v{tD}, s{sKB}, v{tD}")
    for kk in range(4):
        e(f"  v_add_u32 v{t0}, {4*kk}, v{tB}")
        e(f"  v_xor_b32 v{t0}, v{tA}, v{t0}")
        e(f"  v_lshl_add_u32 v{vKr+kk}, v{t0}, 4, v{tD}")
    e(f"  v_lshlrev_b32 v{v4r}, 2, v{tB}")
    e(f"  s_mov_b32 s{sC}, {hex(f32bits(128 ** -0.5 * math.log2(math.e)))}")
    e(f"  s_mov_b32 s{sSelLo}, 0x05040100")
    e(f"  s_mov_b32 s{sSelHi}, 0x07060302")
    e(f"  s_mov_b32 s{sNeg}, {hex(f32bits(-1e9 / (128 ** -0.5)))}")
    init_state()
    e("  s_waitcnt lgkmcnt(0)")
    e(f"  s_sub_u32 s{sNB}, s{sCL}, 1")
    e(f"  s_min_u32 s{sNB}, s{sNB}, 2047")
    e(f"  s_max_i32 s{sCL}, s{sCL}, 0")
    split(sA1, sNB, sH, sTmp)
    e(f"  s_sub_u32 s{sLeft}, s{sA1}, s{sW}")
    e(f"  s_add_u32 s{sLeft}, s{sLeft}, 1")
    e(f"  s_lshr_b32 s{sLeft}, s{sLeft}, 1")
    e(f"  s_lshl_b32 s{sTmp}, s{sW}, 5")
    e(f"  s_sub_i32 s{sRem}, s{sCL}, s{sTmp}")
    e(f"  s_cmp_eq_u32 s{sW}, 2")
    e(f"  s_cselect_b32 s{sLeft}, 0, s{sLeft}")
    e(f"  s_cselect_b32 s{sDec}, 32, 64")
    st(1)
    e(f"  s_cmp_lg_u32 s{sLeft}, 0")
    e("  s_cbranch_scc1 L_loop")
    e("  s_waitcnt vmcnt(0)")
    e(f"  s_call_b64 {sr(sRET,2)}, L_getinfo")
    e(f"  s_mov_b32 s{sIdx}, 0")
    e(f"  s_cmp_eq_u32 s{sW}, 2")
    e("  s_cbranch_scc1 L_phase_end")
    e("  s_branch L_issue")

    e("L_loop:")
    e(f"  s_add_u32 s{sTmp}, s{sLeft}, s{sPh}")
    e(f"  s_cmp_lg_u32 s{sTmp}, s{sEv}")
    e("  s_cbranch_scc1 L_noinfo")
    e(f"  s_call_b64 {sr(sRET,2)}, L_event")
    e("L_noinfo:")
    next_offsets()
    e(f"  s_waitcnt vmcnt(8)")
    for kk in range(4):
        for T in range(2):
            e(f"  ds_read_b128 {vr(KT+16*T+4*kk,4)}, v{vKr+kk} offset:{T*4096}")
    def perms():
        for w in range(4):
            for jp in range(4):
                a, b = VB + 4 * (2 * jp + 1) + w, VB + 4 * (2 * jp) + w
                e(f"  v_perm_b32 v{VT+4*(2*w)+jp}, v{a}, v{b}, s{sSelLo}")
                e(f"  v_perm_b32 v{VT+4*(2*w+1)+jp}, v{a}, v{b}, s{sSelHi}")
    if order == 0:
        e(f"  s_waitcnt vmcnt(0)")
        perms()
        e(f"  s_waitcnt lgkmcnt(0)")
        loadKV()
    for kk in range(4):
        if order == 1:
            e(f"  s_waitcnt lgkmcnt({6-2*kk})")
        for T in range(2):
            c = "0" if kk == 0 else vr(S + 4 * T, 4)
            e(f"  v_mfma_f32_16x16x32_bf16 {vr(S+4*T,4)}, {vr(KT+16*T+4*kk,4)}, {vr(Q+4*kk,4)}, {c}")
    if order == 1:
        loadK()
    e(f"  s_cmp_ge_i32 s{sRem}, 32")
    if order == 0:
        e(f"  s_nop 6")
    e(f"  s_cbranch_scc1 L_nomask")
    e(f"  v_sub_u32 v{t0}, s{sRem}, v{v4r}")
    e(f"  v_mov_b32 v{t1}, s{sNeg}")
    for j in range(8):
        off = 16 * (j >> 2) + (j & 3)
        e(f"  v_cmp_lt_i32 {sr(sM+2*j,2)}, {off}, v{t0}")
    e("  s_nop 1")
    for j in range(8):
        e(f"  v_cndmask_b32 v{S+j}, v{t1}, v{S+j}, {sr(sM+2*j,2)}")
    e(f"L_nomask:")
    e(f"  s_sub_i32 s{sRem}, s{sRem}, s{sDec}")
    e(f"  v_max3_f32 v{t0}, v{S}, v{S+1}, v{S+2}")
    e(f"  v_max3_f32 v{t1}, v{S+3}, v{S+4}, v{S+5}")
    e(f"  v_max3_f32 v{t0}, v{t0}, v{S+6}, v{S+7}")
    e(f"  v_max_f32 v{t0}, v{t0}, v{t1}")
    e(f"  v_mov_b32 v{t1}, v{t0}")
    e("  s_nop 1")
    e(f"  v_permlane32_swap_b32 v{t0}, v{t1}")
    e("  s_nop 1")
    e(f"  v_max_f32 v{t0}, v{t0}, v{t1}")
    e(f"  v_mov_b32 v{t1}, v{t0}")
    e("  s_nop 1")
    e(f"  v_permlane16_swap_b32 v{t0}, v{t1}")
    e("  s_nop 1")
    e(f"  v_max_f32 v{t0}, v{t0}, v{t1}")
    e(f"  v_mul_f32 v{t0}, s{sC}, v{t0}")
    e(f"  v_max_f32 v{vMCn}, v{t0}, v{vMC}")
    e(f"  v_sub_f32 v{t1}, v{vMC}, v{vMCn}")
    e(f"  v_exp_f32 v{vAl}, v{t1}")
    e(f"  v_mov_b32 v{vMC}, v{vMCn}")
    for j in range(8):
        e(f"  v_fma_f32 v{S+j}, v{S+j}, s{sC}, -v{vMCn}")
    for j in range(8):
        e(f"  v_exp_f32 v{S+j}, v{S+j}")
    for i in range(16):
        e(f"  v_pk_mul_f32 {vr(O+2*i,2)}, {vr(O+2*i,2)}, {vr(vAl,2)} op_sel_hi:[1,0]")
    if order == 1:
        e(f"  s_waitcnt vmcnt(8)")
        perms()
        loadV()
    for jp in range(4):
        e(f"  v_cvt_pk_bf16_f32 v{P+jp}, v{S+2*jp}, v{S+2*jp+1}")
    e(f"  v_mul_f32 v{vL}, v{vL}, v{vAl}")
    e(f"  v_add_f32 v{t0}, v{S}, v{S+1}")
    for ee in range(8):
        e(f"  v_mfma_f32_16x16x32_bf16 {vr(O+4*ee,4)}, {vr(VT+4*ee,4)}, {vr(P,4)}, {vr(O+4*ee,4)}")
        if ee == 0:
            e(f"  v_add_f32 v{t1}, v{S+2}, v{S+3}")
            e(f"  v_add_f32 v{tA}, v{S+4}, v{S+5}")
        if ee == 1:
            e(f"  v_add_f32 v{tB}, v{S+6}, v{S+7}")
            e(f"  v_add_f32 v{t0}, v{t0}, v{t1}")
        if ee == 2:
            e(f"  v_add_f32 v{tA}, v{tA}, v{tB}")
            e(f"  v_add_f32 v{vL}, v{vL}, v{t0}")
        if ee == 3:
            e(f"  v_add_f32 v{vL}, v{vL}, v{tA}")
    e(f"  s_sub_u32 s{sLeft}, s{sLeft}, 1")
    e(f"  s_cmp_lg_u32 s{sLeft}, 0")
    e("  s_cbranch_scc1 L_loop")
    e("L_phase_end:")
    reduce_l()
    e(f"  v_and_b32 v{tA}, 15, v0")
    e(f"  v_lshrrev_b32 v{tB}, 4, v0")
    e(f"  s_cmp_lg_u32 s{sPh}, 0")
    e("  s_cbranch_scc1 L_final")
    e(f"  s_cmp_eq_u32 s{sW}, 2")
    e("  s_cbranch_scc1 L_noflush")
    e(f"  s_mul_i32 s{sTmp}, s{sW}, {FPART}")
    e(f"  s_add_u32 s{sTmp}, s{sTmp}, {FB}")
    e(f"  v_mul_u32_u24 v{t0}, 144, v{tA}")
    e(f"  v_mul_u32_u24 v{t1}, 2304, v{tB}")
    e(f"  v_add3_u32 v{t0}, v{t0}, v{t1}, s{sTmp}")
    e(f"  s_lshl_b32 s{sTmp}, s{sW}, 3")
    e(f"  s_add_u32 s{sTmp}, s{sTmp}, {FST}")
    e(f"  v_lshl_add_u32 v{t1}, v{tA}, 4, s{sTmp}")
    e(f"  ds_write_b64 v{t1}, {vr(vMC,2)}")
    for ee in range(8):
        e(f"  ds_write_b128 v{t0}, {vr(O+4*ee,4)} offset:{16*ee}")
    e("L_noflush:")
    e(f"  v_lshlrev_b32 v{t1}, 4, v0")
    e(f"  v_add_u32 v{t1}, {Q2}, v{t1}")
    e("  s_waitcnt lgkmcnt(0)")
    e("  s_barrier")
    for kk in range(4):
        e(f"  ds_read_b128 {vr(Q+4*kk,4)}, v{t1} offset:{kk*1024}")
    init_state()
    e(f"  s_mov_b32 s{sPh}, 0x1000")
    e(f"  s_mov_b32 s{sRem}, s{sRem2}")
    e(f"  s_mov_b32 s{sLeft}, s{sN2}")
    e("  s_waitcnt lgkmcnt(0)")
    st(2)
    e(f"  s_cmp_eq_u32 s{sLeft}, 0")
    e("  s_cbranch_scc1 L_phase_end")
    e(f"  s_cmp_lg_u32 s{sW}, 2")
    e("  s_cbranch_scc1 L_loop")
    e(f"  v_mov_b32 v{t0}, {FLG}")
    e("L_xwait:")
    e("  s_sleep 2")
    e(f"  ds_read_b32 v{t1}, v{t0} offset:8")
    e("  s_waitcnt lgkmcnt(0)")
    e(f"  v_readfirstlane_b32 s{sTmp}, v{t1}")
    e("  s_nop 0")
    e(f"  s_cmp_eq_u32 s{sTmp}, 0")
    e("  s_cbranch_scc1 L_xwait")
    e("  s_branch L_issue")

    e("L_event:")
    e(f"  s_cmp_eq_u32 s{sPh}, 0")
    e("  s_cbranch_scc1 L_getinfo")
    e(f"  s_lshl_b32 s{sTmp}, s{sW}, 2")
    e(f"  v_mov_b32 v{t1}, s{sTmp}")
    e(f"  ds_write_b32 v{t1}, v{vKr} offset:{FLG+4}") if FLG + 4 < 65536 else None
    if FLG + 4 >= 65536:
        e(f"  v_add_u32 v{t1}, {FLG+4}, v{t1}")
        e(f"  ds_write_b32 v{t1}, v{t1}")
    e(f"  s_setpc_b64 {sr(sRET,2)}")
    e("L_getinfo:")
    e(f"  v_mov_b32 v{t1}, {REC}")
    e(f"  s_lshl_b32 s{sTmp}, s{sW}, 8")
    e(f"  s_add_u32 s{sTmp}, s{sTmp}, {LST}")
    e(f"  v_lshl_add_u32 v{t0}, v0, 2, s{sTmp}")
    e(f"  s_lshl_b32 s{sTmp}, s{sW}, 3")
    e(f"  v_add_u32 v{tD}, s{sTmp}, v{t1}")
    e("L_gi_poll:")
    e("  s_sleep 1")
    e(f"  ds_read_b32 v{tC}, v{t1} offset:32")
    e("  s_waitcnt lgkmcnt(0)")
    e(f"  v_readfirstlane_b32 s{sTmp}, v{tC}")
    e("  s_nop 0")
    e(f"  s_cmp_eq_u32 s{sTmp}, 0")
    e("  s_cbranch_scc1 L_gi_poll")
    e(f"  ds_read_b32 v{vBT}, v{t0}")
    e(f"  ds_read_b64 {vr(S,2)}, v{t1}")
    e(f"  ds_read_b64 {vr(S+2,2)}, v{tD} offset:8")
    e("  s_waitcnt lgkmcnt(0)")
    e(f"  v_readfirstlane_b32 s{sOB}, v{S}")
    e(f"  v_readfirstlane_b32 s{sEv}, v{S+1}")
    e(f"  v_readfirstlane_b32 s{sN2}, v{S+2}")
    e(f"  v_readfirstlane_b32 s{sRem2}, v{S+3}")
    e(f"  s_and_b32 s{sTmp}, s{sEv}, 0xffff")
    e(f"  s_lshr_b32 s{sEv}, s{sEv}, 16")
    e(f"  s_cmp_eq_u32 s{sW}, 0")
    e(f"  s_cselect_b32 s{sEv}, s{sTmp}, s{sEv}")
    e(f"  s_cmp_eq_u32 s{sW}, 2")
    e(f"  s_cselect_b32 s{sEv}, -1, s{sEv}")
    e(f"  s_setpc_b64 {sr(sRET,2)}")

    e("L_final:")
    st(3)
    e(f"  s_mul_i32 s{sTmp}, s{sW}, {GPART}")
    e(f"  s_add_u32 s{sTmp}, s{sTmp}, {GB}")
    e(f"  v_mul_u32_u24 v{t0}, {ROWB}, v{tA}")
    e(f"  v_lshl_add_u32 v{t0}, v{tB}, 7, v{t0}")
    e(f"  v_add_u32 v{t0}, s{sTmp}, v{t0}")
    e(f"  s_lshl_b32 s{sTmp}, s{sW}, 3")
    e(f"  s_add_u32 s{sTmp}, s{sTmp}, {GST}")
    e(f"  v_lshl_add_u32 v{t1}, v{tA}, 5, s{sTmp}")
    e(f"  ds_write_b64 v{t1}, {vr(vMC,2)}")
    for ee in range(8):
        e(f"  ds_write_b128 v{t0}, {vr(O+4*ee,4)} offset:{16*ee}")
    e(f"  s_lshl_b32 s{sTmp}, s{sW}, 2")
    e(f"  s_add_u32 s{sTmp}, s{sTmp}, {FLG+4}")
    e(f"  v_mov_b32 v{t1}, s{sTmp}")
    e(f"  ds_write_b32 v{t1}, v{t1}")
    e("L_b2:")
    srd(sO, 14, Q_BYTES)
    e(f"  s_lshl_b32 s{sTmp}, s{sW}, 2")
    e(f"  v_lshrrev_b32 v{tA}, 5, v0")
    e(f"  v_add_u32 v{tA}, s{sTmp}, v{tA}")
    e(f"  v_and_b32 v{tB}, 31, v0")
    e(f"  v_mul_u32_u24 v{t0}, {ROWB}, v{tA}")
    e(f"  v_lshl_add_u32 v{t0}, v{tB}, 4, v{t0}")
    e(f"  v_add_u32 v{t0}, {GB}, v{t0}")
    e(f"  v_lshlrev_b32 v{t1}, 5, v{tA}")
    e(f"  v_add_u32 v{t1}, {GST}, v{t1}")
    e(f"  v_lshrrev_b32 v{tC}, 3, v{tB}")
    e(f"  v_and_b32 v{tB}, 7, v{tB}")
    e(f"  v_lshlrev_b32 v{tA}, 8, v{tA}")
    e(f"  v_lshl_add_u32 v{tA}, v{tC}, 6, v{tA}")
    e(f"  v_lshl_add_u32 v{tA}, v{tB}, 1, v{tA}")
    e("  s_waitcnt lgkmcnt(0)")
    e("  s_barrier")
    for ch in range(2):
        ST = KT + 8 * ch
        for u in range(2):
            e(f"  ds_read_b128 {vr(ST+4*u,4)}, v{t1} offset:{ch*64+16*u}")
    PBs = [VT, O]
    for ch in range(2):
        for u in range(NP):
            e(f"  ds_read_b128 {vr(PBs[ch]+4*u,4)}, v{t0} offset:{u*GPART + ch*2*ROWB}")
    e(f"  s_waitcnt lgkmcnt({2*NP})")
    for ch in range(2):
        ST = KT + 8 * ch
        m = KT + 24 + 2 * ch
        e(f"  v_max3_f32 v{m}, v{ST}, v{ST+2}, v{ST+4}")
        e(f"  v_max_f32 v{m}, v{m}, v{ST+6}")
    for ch in range(2):
        ST = KT + 8 * ch
        m = KT + 24 + 2 * ch
        for u in range(NP):
            e(f"  v_sub_f32 v{ST+2*u}, v{ST+2*u}, v{m}")
    for ch in range(2):
        ST = KT + 8 * ch
        for u in range(NP):
            e(f"  v_exp_f32 v{ST+2*u}, v{ST+2*u}")
    for ch in range(2):
        ST = KT + 8 * ch
        l = KT + 24 + 2 * ch + 1
        e(f"  v_mul_f32 v{l}, v{ST}, v{ST+1}")
        for u in range(1, NP):
            e(f"  v_fmac_f32 v{l}, v{ST+2*u}, v{ST+2*u+1}")
    for ch in range(2):
        l = KT + 24 + 2 * ch + 1
        e(f"  v_rcp_f32 v{l}, v{l}")
    for ch in range(2):
        ST = KT + 8 * ch
        PB = PBs[ch]
        l = KT + 24 + 2 * ch + 1
        R = S + 4 * ch
        e(f"  s_waitcnt lgkmcnt({NP*(1-ch)})")
        for i in range(4):
            e(f"  v_mul_f32 v{R+i}, v{ST}, v{PB+i}")
        for u in range(1, NP):
            for i in range(4):
                e(f"  v_fmac_f32 v{R+i}, v{ST+2*u}, v{PB+4*u+i}")
        for i in range(4):
            e(f"  v_mul_f32 v{R+i}, v{R+i}, v{l}")
        e(f"  v_cvt_pk_bf16_f32 v{P+2*ch}, v{R}, v{R+1}")
        e(f"  v_cvt_pk_bf16_f32 v{P+2*ch+1}, v{R+2}, v{R+3}")
        e(f"  buffer_store_short v{P+2*ch}, v{tA}, {sr(sO,4)}, s{sOB} offen offset:{ch*512}")
        e(f"  buffer_store_short_d16_hi v{P+2*ch}, v{tA}, {sr(sO,4)}, s{sOB} offen offset:{ch*512+16}")
        e(f"  buffer_store_short v{P+2*ch+1}, v{tA}, {sr(sO,4)}, s{sOB} offen offset:{ch*512+32}")
        e(f"  buffer_store_short_d16_hi v{P+2*ch+1}, v{tA}, {sr(sO,4)}, s{sOB} offen offset:{ch*512+48}")
    if stamp:
        e("  s_waitcnt vmcnt(0)")
        e(f"  s_cmp_eq_u32 s{sW}, 3")
        e("  s_cbranch_scc1 L_stamp")
        st(4)
        e("  s_branch L_stamp")
    else:
        e("  s_endpgm")

    e("L_service:")
    e("  s_setprio 3")
    vC, vN, vKey, vRk = 32, 33, 35, 36
    vI, vPar = tC, tD
    e(f"  v_mov_b32 v{vRk}, 0")
    e(f"  v_mov_b32 v{vNON+2}, 0")
    e(f"  v_mov_b32 v{vNON+3}, 0")
    e(f"  v_mov_b32 v{t0}, {FLG}")
    e(f"  ds_write_b64 v{t0}, {vr(vNON+2,2)}")
    e(f"  ds_write_b64 v{t0}, {vr(vNON+2,2)} offset:8")
    e(f"  v_and_b32 v{vKey}, 31, v0")
    e(f"  v_lshlrev_b32 v{t0}, 2, v{vKey}")
    e(f"  s_movk_i32 s{sT2}, 2047")
    e("  s_waitcnt lgkmcnt(0)")
    if stamp:
        e(f"  s_mov_b32 s{sST}, s100")
    srd(sK, 12, 128)
    e(f"  buffer_load_dword v{vC}, v{t0}, {sr(sK,4)}, 0 offen")
    e(f"  s_memrealtime {sr(sNON,2)}")
    e("  s_barrier")
    srd(sBT, 10, 32 * 128 * 4)
    srd(sQ, 4, Q_BYTES)
    srd(sWS, sDBG + 2, 256 * SLOTB)
    if cyc:
        e(f"  s_add_u32 s{sH2}, s{sH}, {hx}")
        e(f"  s_and_b32 s{sH2}, s{sH2}, 3")
        e(f"  s_and_b32 s{sTmp}, s{sH}, 4")
        e(f"  s_or_b32 s{sH2}, s{sH2}, s{sTmp}")
    else:
        e(f"  s_xor_b32 s{sH2}, s{sH}, {hx}")
    e("  s_waitcnt vmcnt(0)")
    e(f"  v_add_u32 v{vN}, -1, v{vC}")
    e(f"  v_min_u32 v{vN}, s{sT2}, v{vN}")
    e(f"  v_max_i32 v{vC}, 0, v{vC}")
    e(f"  v_lshl_add_u32 v{vKey}, v{vN}, 5, v{vKey}")
    e("  s_nop 0")
    for g in range(4):
        for j in range(8):
            e(f"  v_readlane_b32 s{56+j}, v{vKey}, {8*g+j}")
        for j in range(8):
            e(f"  v_cmp_lt_u32 {sr(sM+2*j,2)}, s{56+j}, v{vKey}")
        for j in range(8):
            e(f"  v_addc_co_u32 v{vRk}, vcc, 0, v{vRk}, {sr(sM+2*j,2)}")
    e("  s_nop 0")
    e(f"  v_readlane_b32 s{sTmp}, v{vRk}, s{sB}")
    e("  s_nop 0")
    e(f"  s_sub_u32 s{sTmp}, 31, s{sTmp}")
    e(f"  v_cmp_eq_u32 vcc, s{sTmp}, v{vRk}")
    e(f"  v_readlane_b32 s{sNB}, v{vN}, s{sB}")
    e("  s_nop 3")
    e(f"  s_ff1_i32_b64 s{sB2}, vcc")
    e(f"  s_and_b32 s{sB2}, s{sB2}, 31")
    e(f"  v_cmp_eq_u32 vcc, 31, v{vRk}")
    e(f"  v_readlane_b32 s{sNB2}, v{vN}, s{sB2}")
    e(f"  v_readlane_b32 s{sCL2}, v{vC}, s{sB2}")
    e("  s_nop 2")
    e(f"  s_ff1_i32_b64 s{sTmp}, vcc")
    e(f"  v_readlane_b32 s{sEv}, v{vN}, s{sTmp}")
    split(sA1, sNB, sH, sTmp)
    e(f"  s_lshr_b32 s{sNB}, s{sNB}, 4")
    e(f"  s_add_u32 s{sNB}, s{sNB}, 1")
    split(sA2, sNB2, sH2, sTmp)
    e(f"  s_lshr_b32 s{sT5}, s{sNB2}, 5")
    e(f"  s_add_u32 s{sX2}, s{sT5}, 1")
    e(f"  s_sub_u32 s{sX2}, s{sX2}, s{sA2}")
    e(f"  s_lshr_b32 s{sNB2}, s{sNB2}, 4")
    e(f"  s_add_u32 s{sNB2}, s{sNB2}, 1")
    e(f"  s_add_u32 s{sLeft}, s{sA1}, s{sX2}")
    e(f"  s_add_u32 s{sOdd}, s{sLeft}, {E0}")
    e(f"  s_and_b32 s{sOdd}, s{sOdd}, {1 if odd else 0}")
    e(f"  s_add_u32 s{sOdd}, s{sOdd}, {E0}")
    e(f"  s_min_u32 s{sOdd}, s{sOdd}, s{sX2}")
    e(f"  s_sub_u32 s{sX2}, s{sX2}, s{sOdd}")
    e(f"  s_add_u32 s{sT5}, s{sA2}, s{sX2}")
    e(f"  s_add_u32 s{sRem}, s{sA2}, s{sX2}")
    e(f"  s_lshl_b32 s{sRem}, s{sRem}, 1")
    e(f"  s_min_u32 s{sRem}, s{sRem}, s{sNB2}")
    e(f"  s_lshr_b32 s{sEv}, s{sEv}, 6")
    e(f"  s_add_u32 s{sEv}, s{sEv}, {1 + max(0, max(dl))}")
    if go:
        e(f"  s_cmp_eq_u32 s2, 0")
        e(f"  s_movk_i32 s{sTmp}, {pfb}")
        e(f"  s_cselect_b32 s{sTmp}, {go}, s{sTmp}")
        e(f"  s_mul_i32 s{sTmp}, s{sLeft}, s{sTmp}")
        e(f"  s_lshr_b32 s{sEv}, s{sTmp}, 8")
    else:
        e(f"  s_mul_i32 s{sTmp}, s{sLeft}, {pf}")
        e(f"  s_lshr_b32 s{sTmp}, s{sTmp}, 8")
        e(f"  s_min_u32 s{sEv}, s{sEv}, s{sTmp}" if cap else f"  s_mov_b32 s{sEv}, s{sTmp}")
    e(f"  s_add_u32 s{sEv}, s{sEv}, 1")
    e(f"  s_lshr_b32 s{sEv}, s{sEv}, 1")
    e(f"  s_lshl_b32 s{sT2}, s{sB}, 9")
    e(f"  s_lshl_b32 s{sT3}, s{sB2}, 9")
    e(f"  s_lshl_b32 s{sX}, s{sB2}, 3")
    e(f"  s_add_u32 s{sX}, s{sX}, s{sH2}")
    e(f"  s_lshl_b32 s{sOB}, s{sX}, 12")
    LB = 40
    RC = S
    for w in range(2):
        e(f"  s_add_u32 s{sN2}, s{sA1}, {1-w}")
        e(f"  s_lshr_b32 s{sN2}, s{sN2}, 1")
        e(f"  s_add_u32 s{sTmp}, s{sA1}, {w}")
        e(f"  s_and_b32 s{sTmp}, s{sTmp}, 1")
        e(f"  s_sub_u32 s{sT4}, s{sX2}, s{sTmp}")
        e(f"  s_add_u32 s{sT4}, s{sT4}, 1")
        e(f"  s_lshr_b32 s{sT4}, s{sT4}, 1")
        e(f"  v_mov_b32 v{RC+2+2*w}, s{sT4}")
        if w == 0:
            e(f"  s_cmp_gt_u32 s{sEv}, s{sN2}")
            e(f"  s_cselect_b32 s{sPh}, 1, 0")
            e(f"  s_add_u32 s{sT4}, s{sT4}, s{sN2}")
            e(f"  s_sub_i32 s{sEv}, s{sT4}, s{sEv}")
            e(f"  s_add_u32 s{sEv}, s{sEv}, 0x1000")
        else:
            e(f"  s_add_u32 s{sIdx}, s{sOdd}, {xlead}")
            e(f"  s_min_u32 s{sT4}, s{sT4}, s{sIdx}")
            e(f"  s_add_u32 s{sT4}, s{sT4}, 0x1000")
            e(f"  s_lshl_b32 s{sT4}, s{sT4}, 16")
            e(f"  s_or_b32 s{sEv}, s{sEv}, s{sT4}")
        e(f"  s_add_u32 s{sTmp}, s{sTmp}, s{sA2}")
        e(f"  s_lshl_b32 s{sT4}, s{sTmp}, 5")
        e(f"  s_sub_i32 s{sT4}, s{sCL2}, s{sT4}")
        e(f"  v_mov_b32 v{RC+3+2*w}, s{sT4}")
        e(f"  s_lshl_b32 s{sT4}, s{sN2}, 1")
        e(f"  s_sub_u32 s{sTmp}, s{sTmp}, s{sT4}")
        e(f"  v_cmp_gt_u32 vcc, s{sN2}, v{vI}")
        e(f"  v_mov_b32 v{t0}, s{sTmp}")
        e(f"  v_mov_b32 v{vAl}, s{sRem}")
        e(f"  v_mov_b32 v{vAl+1}, {w}")
        e(f"  v_cndmask_b32 v{t0}, v{t0}, v{vAl+1}, vcc")
        e(f"  v_lshl_add_u32 v{t0}, v{vI}, 1, v{t0}")
        e(f"  v_lshl_add_u32 v{LB+w}, v{t0}, 1, v{vPar}")
        e(f"  v_mov_b32 v{vAl+1}, s{sNB}")
        e(f"  v_cndmask_b32 v{LB+8+w}, v{vAl}, v{vAl+1}, vcc")
        e(f"  v_mov_b32 v{vAl}, s{sT3}")
        e(f"  v_mov_b32 v{vAl+1}, s{sT2}")
        e(f"  v_cndmask_b32 v{t0}, v{vAl}, v{vAl+1}, vcc")
        e(f"  v_lshl_add_u32 v{t0}, v{LB+w}, 2, v{t0}")
        e(f"  buffer_load_dword v{LB+4+w}, v{t0}, {sr(sBT,4)}, 0 offen")
        e(f"  v_mov_b32 v{vAl}, s{sH2}")
        e(f"  v_mov_b32 v{vAl+1}, s{sH}")
        e(f"  v_cndmask_b32 v{LB+12+w}, v{vAl}, v{vAl+1}, vcc")
        e(f"  v_lshlrev_b32 v{LB+12+w}, 8, v{LB+12+w}")
    e(f"  s_lshl_b32 s{sTmp}, s{sT5}, 1")
    e(f"  v_add_u32 v{LB+2}, s{sTmp}, v0")
    e(f"  v_lshlrev_b32 v{t0}, 2, v{LB+2}")
    e(f"  buffer_load_dword v{LB+6}, v{t0}, {sr(sBT,4)}, s{sT3} offen")
    e(f"  v_mov_b32 v{LB+10}, s{sNB2}")
    e(f"  s_lshl_b32 s{sTmp}, s{sH2}, 8")
    e(f"  v_mov_b32 v{LB+14}, s{sTmp}")
    e(f"  v_mov_b32 v{RC+6}, s{sOdd}")
    e(f"  s_lshl_b32 s{sTmp}, s{sT5}, 5")
    e(f"  s_sub_i32 s{sTmp}, s{sCL2}, s{sTmp}")
    e(f"  v_mov_b32 v{RC+7}, s{sTmp}")
    for kk in range(4):
        e(f"  s_mov_b32 m0, {Q2 + kk*960}")
        e("  s_nop 0")
        e(f"  buffer_load_dwordx4 v{t1}, {sr(sQ,4)}, s{sOB} offen offset:{kk*64} lds")
    e(f"  v_mov_b32 v{RC}, s{sOB}")
    e(f"  v_mov_b32 v{RC+1}, s{sEv}")
    e(f"  v_mov_b32 v{vKey}, {REC}")
    e(f"  ds_write_b128 v{vKey}, {vr(RC,4)}")
    e(f"  ds_write_b128 v{vKey}, {vr(RC+4,4)} offset:16")
    e(f"  v_lshlrev_b32 v{t0}, 2, v0")
    e(f"  v_add_u32 v{t0}, {LST}, v{t0}")
    e(f"  v_mov_b32 v{vAl}, {hex(OOB)}")
    for w in range(3):
        e(f"  v_cmp_lt_u32 vcc, v{LB+w}, v{LB+8+w}")
        e(f"  s_waitcnt vmcnt({4+2-w})")
        e(f"  v_lshl_add_u32 v{LB+4+w}, v{LB+4+w}, 15, v{LB+12+w}")
        e(f"  v_cndmask_b32 v{LB+4+w}, v{vAl}, v{LB+4+w}, vcc")
        e(f"  ds_write_b32 v{t0}, v{LB+4+w} offset:{w*256}")
    e(f"  v_mov_b32 v{vAl}, 1")
    e("  s_waitcnt lgkmcnt(0)")
    e(f"  ds_write_b32 v{vKey}, v{vAl} offset:32")
    st(1)
    e(f"  s_or_b32 s{sNON}, s{sNON}, 1")
    e(f"  v_mov_b32 v{vNON}, s{sNON}")
    e(f"  v_mov_b32 v{vNON+1}, s{sNON+1}")
    e(f"  s_mov_b64 {sr(sM,2)}, exec")
    e(f"  s_cmp_lg_u32 s2, 0")
    e("  s_cbranch_scc1 L_nocas")
    e("  s_mov_b64 exec, 1")
    e(f"  global_atomic_cmpswap_x2 v{vNON+2}, {vr(vNON,4)}, {sr(sDBG,2)} sc1")
    e(f"  s_mov_b64 exec, {sr(sM,2)}")
    e("L_nocas:")
    e(f"  v_mul_u32_u24 v{t0}, 144, v{tA}")
    e(f"  v_mul_u32_u24 v{t1}, 2304, v{tB}")
    e(f"  v_add_u32 v{t0}, v{t0}, v{t1}")
    e(f"  v_add_u32 v{t0}, {FB}, v{t0}")
    e(f"  v_lshlrev_b32 v{t1}, 4, v{tA}")
    e(f"  v_add_u32 v{t1}, {FST}, v{t1}")
    e(f"  v_lshlrev_b32 v{tC}, 4, v0")
    e(f"  v_lshlrev_b32 v{tD}, 2, v0")
    e(f"  s_mul_i32 s{sT2}, s2, {SLOTB}")
    e(f"  s_mul_i32 s{sT3}, s{sX}, {SLOTB}")
    e("  s_waitcnt vmcnt(0) lgkmcnt(0)")
    e("  s_barrier")
    if nohand:
        e("  s_branch L_b2")
    e(f"  global_load_dwordx2 {vr(vNON+4,2)}, v{vNON+2}, {sr(sDBG,2)} sc1")
    ST = 32
    R = 40
    PB = 72
    e(f"  ds_read_b128 {vr(ST,4)}, v{t1}")
    for ee in range(7):
        for u in range(NS):
            e(f"  ds_read_b128 {vr(PB+8*ee+4*u,4)}, v{t0} offset:{u*FPART+16*ee}")
    e(f"  s_waitcnt lgkmcnt(14)")
    for u in range(NS):
        e(f"  ds_read_b128 {vr(PB+8*7+4*u,4)}, v{t0} offset:{u*FPART+16*7}") if u == 0 else None
    e(f"  v_max_f32 v{vMC}, v{ST}, v{ST+2}")
    for u in range(NS):
        e(f"  v_sub_f32 v{ST+2*u}, v{ST+2*u}, v{vMC}")
    for u in range(NS):
        e(f"  v_exp_f32 v{ST+2*u}, v{ST+2*u}")
    e(f"  s_waitcnt lgkmcnt(13)")
    e(f"  ds_read_b128 {vr(PB+8*7+4,4)}, v{t0} offset:{FPART+16*7}")
    e(f"  v_mul_f32 v{vL}, v{ST}, v{ST+1}")
    e(f"  v_fmac_f32 v{vL}, v{ST+2}, v{ST+3}")
    for ee in range(8):
        e(f"  s_waitcnt lgkmcnt({14-2*ee})")
        for i in range(4):
            e(f"  v_mul_f32 v{R+4*ee+i}, v{ST}, v{PB+8*ee+i}")
        for i in range(4):
            e(f"  v_fmac_f32 v{R+4*ee+i}, v{ST+2}, v{PB+8*ee+4+i}")
    e("  s_waitcnt vmcnt(0)")
    e(f"  v_readfirstlane_b32 s{sT4}, v{vNON+4}")
    e(f"  v_readfirstlane_b32 s{sT5}, v{vNON+5}")
    e("  s_nop 0")
    e(f"  s_cmp_lg_u32 s{sT4}, 0")
    e("  s_cbranch_scc1 L_havenonce")
    e("  s_mov_b64 exec, 1")
    e(f"  global_atomic_cmpswap_x2 {vr(vNON+4,2)}, v{vNON+2}, {vr(vNON,4)}, {sr(sDBG,2)} sc0 sc1")
    e(f"  s_mov_b64 exec, {sr(sM,2)}")
    e("  s_waitcnt vmcnt(0)")
    e(f"  v_readfirstlane_b32 s{sT4}, v{vNON+4}")
    e(f"  v_readfirstlane_b32 s{sT5}, v{vNON+5}")
    e("  s_nop 0")
    e(f"  s_cmp_lg_u32 s{sT4}, 0")
    e(f"  s_cselect_b32 s{sT4}, s{sT4}, s{sNON}")
    e(f"  s_cselect_b32 s{sT5}, s{sT5}, s{sNON+1}")
    e("L_havenonce:")
    e(f"  s_mov_b32 s{sNON}, s{sT4}")
    e(f"  s_mov_b32 s{sNON+1}, s{sT5}")
    e(f"  v_mov_b32 v{vNON}, s{sT4}")
    e(f"  v_mov_b32 v{vNON+1}, s{sT5}")
    e(f"  s_cmp_eq_u32 s{sPh}, 0")
    e("  s_cbranch_scc1 L_publish")
    e(f"  v_mov_b32 v{t0}, {FLG}")
    if go:
        e(f"  s_add_u32 s{sT4}, s{sT2}, 8832")
        e("  s_mov_b64 exec, 1")
    e("L_trig:")
    e("  s_sleep 2")
    if go:
        e(f"  buffer_load_dwordx2 {vr(vNON+4,2)}, v{vNON+2}, {sr(sWS,4)}, s{sT4} offen sc1")
    e(f"  ds_read_b32 v{t1}, v{t0} offset:4")
    if go:
        e("  s_waitcnt vmcnt(0) lgkmcnt(0)")
        e(f"  v_readfirstlane_b32 s{sN2}, v{vNON+4}")
        e(f"  v_readfirstlane_b32 s{sN2+1}, v{vNON+5}")
        e(f"  v_readfirstlane_b32 s{sTmp}, v{t1}")
        e(f"  s_cmp_eq_u64 {sr(sN2,2)}, {sr(sNON,2)}")
        e("  s_cbranch_scc1 L_trigd")
    else:
        e("  s_waitcnt lgkmcnt(0)")
        e(f"  v_readfirstlane_b32 s{sTmp}, v{t1}")
        e("  s_nop 0")
    e(f"  s_cmp_eq_u32 s{sTmp}, 0")
    e("  s_cbranch_scc1 L_trig")
    if go:
        e("L_trigd:")
        e(f"  s_mov_b64 exec, {sr(sM,2)}")
    e("L_publish:")
    st(1)
    if go:
        e(f"  s_cmp_lg_u32 s2, 0")
        e("  s_cbranch_scc1 L_nogo")
        e(f"  s_movk_i32 s{sTmp}, {SLOTB}")
        e(f"  v_mul_lo_u32 v{t0}, v0, s{sTmp}")
        for k in range(4):
            e(f"  s_mov_b32 s{sTmp}, {64*k*SLOTB + 8832}")
            e(f"  buffer_store_dwordx2 {vr(vNON,2)}, v{t0}, {sr(sWS,4)}, s{sTmp} offen sc1")
        e("L_nogo:")
    e(f"  s_add_u32 s{sT4}, s{sT2}, 4096")
    e(f"  s_add_u32 s{sT5}, s{sT2}, 8192")
    for ee in range(8):
        if 'store' not in skip and not ('half' in skip and ee >= 4):
            e(f"  buffer_store_dwordx4 {vr(R+4*ee,4)}, v{tC}, {sr(sWS,4)}, s{sT2 if ee < 4 else sT4} offen offset:{(ee&3)*1024} sc1")
    if 'store' not in skip:
        e(f"  buffer_store_dword v{vMC}, v{tD}, {sr(sWS,4)}, s{sT5} offen sc1")
        e(f"  buffer_store_dword v{vL}, v{tD}, {sr(sWS,4)}, s{sT5} offen offset:256 sc1")
    e(f"  s_add_u32 s{sT4}, s{sT3}, 8704")
    e("  s_waitcnt vmcnt(0)")
    e("  s_mov_b64 exec, 1")
    if 'flag' not in skip:
        e(f"  buffer_store_dwordx2 {vr(vNON,2)}, v{vNON+2}, {sr(sWS,4)}, s{sT5} offen offset:512 sc1")
    e(f"  s_mov_b32 s{sT5}, 0x40000")
    st(2)
    if 'poll' in skip:
        e("  s_branch L_got")
    if pipe:
        PR = 72
        for k in range(pipe - 1):
            e(f"  buffer_load_dwordx2 {vr(PR+2*k,2)}, v{vNON+2}, {sr(sWS,4)}, s{sT4} offen sc1")
            e(f"  s_sleep {sleep}")
        e("L_poll:")
        for k in range(pipe):
            kn = (k + pipe - 1) % pipe
            e(f"  buffer_load_dwordx2 {vr(PR+2*kn,2)}, v{vNON+2}, {sr(sWS,4)}, s{sT4} offen sc1")
            e(f"  s_waitcnt vmcnt({pipe-1})")
            e(f"  v_readfirstlane_b32 s{sN2}, v{PR+2*k}")
            e(f"  v_readfirstlane_b32 s{sN2+1}, v{PR+2*k+1}")
            e("  s_nop 0")
            e(f"  s_cmp_eq_u64 {sr(sN2,2)}, {sr(sNON,2)}")
            e("  s_cbranch_scc1 L_got")
            e(f"  s_sleep {sleep}")
        e(f"  s_sub_u32 s{sT5}, s{sT5}, 1")
        e(f"  s_cmp_lg_u32 s{sT5}, 0")
        e("  s_cbranch_scc1 L_poll")
    else:
        e("L_poll:")
        e(f"  buffer_load_dwordx2 {vr(vNON+4,2)}, v{vNON+2}, {sr(sWS,4)}, s{sT4} offen sc1")
        e("  s_waitcnt vmcnt(0)")
        e(f"  v_readfirstlane_b32 s{sN2}, v{vNON+4}")
        e(f"  v_readfirstlane_b32 s{sN2+1}, v{vNON+5}")
        e("  s_nop 0")
        e(f"  s_cmp_eq_u64 {sr(sN2,2)}, {sr(sNON,2)}")
        e("  s_cbranch_scc1 L_got")
        e(f"  s_sleep {sleep}")
        e(f"  s_sub_u32 s{sT5}, s{sT5}, 1")
        e(f"  s_cmp_lg_u32 s{sT5}, 0")
        e("  s_cbranch_scc1 L_poll")
    e("L_got:")
    e(f"  s_mov_b64 exec, {sr(sM,2)}")
    st(3)
    if 'pload' in skip:
        e("  s_branch L_b2")
    e(f"  s_add_u32 s{sT4}, s{sT3}, 8192")
    e(f"  buffer_load_dword v{vMC}, v{tD}, {sr(sWS,4)}, s{sT4} offen sc1")
    e(f"  buffer_load_dword v{vL}, v{tD}, {sr(sWS,4)}, s{sT4} offen offset:256 sc1")
    e(f"  s_add_u32 s{sT4}, s{sT3}, 4096")
    for ee in range(8):
        e(f"  buffer_load_dwordx4 {vr(R+4*ee,4)}, v{tC}, {sr(sWS,4)}, s{sT3 if ee < 4 or 'half' in skip else sT4} offen offset:{(ee&3)*1024} sc1")
    e(f"  v_mul_u32_u24 v{t0}, {ROWB}, v{tA}")
    e(f"  v_lshl_add_u32 v{t0}, v{tB}, 7, v{t0}")
    e(f"  v_add_u32 v{t0}, {GB + 3*GPART}, v{t0}")
    e(f"  v_lshlrev_b32 v{t1}, 5, v{tA}")
    e(f"  v_add_u32 v{t1}, {GST + 24}, v{t1}")
    e("  s_waitcnt vmcnt(8)")
    e(f"  ds_write_b64 v{t1}, {vr(vMC,2)}")
    for ee in range(8):
        e(f"  s_waitcnt vmcnt({7-ee})")
        e(f"  ds_write_b128 v{t0}, {vr(R+4*ee,4)} offset:{16*ee}")
    st(4)
    e("  s_branch L_b2")
    if stamp:
        e("L_stamp:")
        e(f"  s_lshl_b32 s{sTmp}, s2, 2")
        e(f"  s_add_u32 s{sTmp}, s{sTmp}, s{sW}")
        e(f"  s_lshl_b32 s{sTmp}, s{sTmp}, 5")
        e(f"  s_add_u32 s{sTmp}, s{sTmp}, {256*SLOTB}")
        e(f"  v_mov_b32 v{t0}, s{sTmp}")
        for i in range(5):
            e(f"  v_mov_b32 v{S+i}, s{sST+i}")
        e("  s_getreg_b32 s100, hwreg(HW_REG_XCC_ID)")
        e(f"  v_mov_b32 v{S+5}, s100")
        e(f"  v_mov_b32 v{S+6}, s{sA1}")
        e("  s_getreg_b32 s100, hwreg(HW_REG_HW_ID)")
        e(f"  v_mov_b32 v{S+7}, s100")
        e("  s_mov_b64 exec, 1")
        e(f"  global_store_dwordx4 v{t0}, {vr(S,4)}, {sr(sDBG+2,2)}")
        e(f"  global_store_dwordx4 v{t0}, {vr(S+4,4)}, {sr(sDBG+2,2)} offset:16")
    e("L_end:")
    e("  s_endpgm")
    e('.section .rodata,"a"')
    e(".p2align 6")
    e(f".amdhsa_kernel {NAME}")
    e(f"  .amdhsa_next_free_vgpr {NV}")
    e("  .amdhsa_next_free_sgpr 102")
    e(f"  .amdhsa_accum_offset {(NV+3)//4*4}")
    e("  .amdhsa_group_segment_fixed_size 0")
    e("  .amdhsa_kernarg_size 64")
    e("  .amdhsa_user_sgpr_count 2")
    e("  .amdhsa_user_sgpr_kernarg_segment_ptr 1")
    e("  .amdhsa_system_sgpr_workgroup_id_x 1")
    e(".end_amdhsa_kernel")
    return "\n".join(L) + "\n"


if __name__ == "__main__":
    ap = argparse.ArgumentParser()
    ap.add_argument("-o", required=True)
    ap.add_argument("--kfl", default="nt")
    ap.add_argument("--vfl", default="nt")
    ap.add_argument("--stamp", action="store_true")
    ap.add_argument("--hx", type=int, default=1)
    ap.add_argument("--sleep", type=int, default=8)
    ap.add_argument("--nohand", action="store_true")
    ap.add_argument("--noodd", action="store_true")
    ap.add_argument("--pf", type=int, default=172)
    ap.add_argument("--e0", type=int, default=0)
    ap.add_argument("--ldspad", type=int, default=0)
    ap.add_argument("--order", type=int, default=0)
    ap.add_argument("--skip", default="")
    ap.add_argument("--xlead", type=int, default=0)
    ap.add_argument("--cyc", action="store_true")
    ap.add_argument("--go", type=int, default=0)
    ap.add_argument("--pipe", type=int, default=0)
    ap.add_argument("--nocap", action="store_true")
    ap.add_argument("--pfb", type=int, default=216)
    ap.add_argument("--dl", default="0,0,0,0")
    a = ap.parse_args()
    open(a.o, "w").write(gen(kfl=a.kfl, vfl=a.vfl, stamp=a.stamp, hx=a.hx, sleep=a.sleep, nohand=a.nohand, pf=a.pf, odd=not a.noodd, E0=a.e0, ldspad=a.ldspad, order=a.order, skip=a.skip, xlead=a.xlead, cyc=a.cyc, go=a.go, pipe=a.pipe, cap=not a.nocap, pfb=a.pfb, dl=tuple(int(x) for x in a.dl.split(','))))
```

```python
import sys, struct, math, argparse

NAME = "standalone__paged_block_table_kv_pagedattention__sampling_kernel"
HEADER = open("standalone__paged_block_table_kv_pagedattention__sampling.s.ref").read().split("; Override launch")[0]

KV_BYTES = 4100 * 16 * 8 * 128 * 2
Q_BYTES = 32 * 32 * 4 * 128 * 2
OOB = 0x10000000
SLOTB = 9216


DOC = """
Paged GQA decode attention, one workgroup (4 waves) per CU.  The kernel is HBM bound, so it is organised around
keeping about 32 KB of K/V loads in flight per CU and giving every CU the same number of 32-position tiles.
  sequence (b,h) = 16 query rows (4 q heads x 4 tokens) against kv head h of batch b, ceil(n/32) tiles.
  workgroup (b,h): phase 1 = first half of its own sequence -> partial (m, l, O) handed over through d_ws;
                   phase 2 = second half of sequence (b', h^1), b' = batch whose length rank mirrors b's;
                   it merges the partial of workgroup (b', h^1) and writes that sequence's output.
  waves 0,1: stream tiles.  K: coalesced DMA into LDS (xor swizzle) -> MFMA A operand; S^T = K Q^T; online
             softmax with the running row max; V: coalesced loads to VGPRs, v_perm pairs -> O^T += V^T P^T.
  wave 2:    takes the last tiles of phase 2.   wave 3: service wave (ranks, tile lists, hand-off).
  hand-off:  write-through stores, drained, then a flag = launch nonce (first-come clock value agreed on through
             d_debug, which starts at zero); the consumer polls the flag and reads with the same scope.
  positions >= context_len get the reference's -1e9 score; context_len <= 0 averages all 2048 positions.
"""


def f32bits(x):
    return struct.unpack("<I", struct.pack("<f", x))[0]


def gen(kfl="nt", vfl="nt", stamp=False, hx=1, sleep=8, nohand=False, pf=172, odd=True, E0=0, ldspad=0, order=0, skip='', xlead=0, cyc=False, dl=(0,0,0,0), go=0, pfb=216, cap=True, pipe=0, nob1=True):
    TAB = sum(((d + 8) & 15) << (4 * c) for c, d in enumerate(dl))
    skip = set(skip.split(','))
    L = []
    e = L.append
    NS = 2
    NP = 4
    KFL = (" " + kfl.replace("+", " ")) if kfl else ""
    VFL = (" " + vfl.replace("+", " ")) if vfl else ""
    vKo, vKr, vV0, vV1, vBT, v4r = 1, 5, 9, 10, 11, 12
    vNON = 14
    vMC, vL, vAl, vMCn = 20, 21, 22, 24
    t0, t1, tA, tB, tC, tD = 25, 26, 27, 28, 29, 30
    Q, O, S, P, KT, VT, VB = 32, 48, 80, 88, 92, 124, 156
    NV = 188
    sK, sV, sBT, sQ, sO, sWS = 16, 20, 24, 28, 32, 36
    (sB, sH, sW, sCL, sNB, sLeft, sIdx, sO0, sO1, sRem, sC, sSelLo, sSelHi, sTmp, sNeg, sKB,
     sN2, sRem2, sOB, sPh, sX, sA1, sT2, sT3, sT4, sT5, sB2, sH2, sA2, sNB2, sX2, sCL2) = range(40, 72)
    sM = 72
    sDBG = 88
    sST = 92
    sEv = 97
    sNON = 98
    sRET = 98
    sOdd = 3
    sDec = 3
    KSLOT = 8192
    FB = 3 * KSLOT
    FPART = 9216
    FST = FB + NS * FPART
    GB = FST + 16 * 16
    ROWB = 528
    GPART = 16 * ROWB
    GST = GB + NP * GPART
    LST = GB + 3 * GPART
    Q2 = GST + 16 * 32
    REC = Q2 + 4096
    FLG = REC + 32
    LDS = max(FLG + 32, ldspad)

    def vr(a, n):
        return f"v[{a}:{a+n-1}]"

    def sr(a, n):
        return f"s[{a}:{a+n-1}]"

    def srd(r, lo, nbytes):
        e(f"  s_mov_b32 s{r}, s{lo}")
        e(f"  s_mov_b32 s{r+1}, s{lo+1}")
        e(f"  s_mov_b32 s{r+2}, {nbytes}")
        e(f"  s_mov_b32 s{r+3}, 0x00020000")

    def st(i):
        if stamp:
            e(f"  s_memrealtime s[100:101]")
            e(f"  s_waitcnt lgkmcnt(0)")
            e(f"  s_mov_b32 s{sST+i}, s100")

    def loadKV():
        loadK()
        loadV()

    def loadK():
        for T in range(2):
            e(f"  s_add_u32 m0, s{sKB}, {T*4096}")
            e(f"  s_nop 0")
            for i in range(4):
                e(f"  buffer_load_dwordx4 v{vKo+i}, {sr(sK,4)}, s{sO0+T} offen offset:{i*1024}{KFL} lds")

    def loadV():
        for j in range(8):
            T, i = j >> 2, j & 3
            e(f"  buffer_load_dwordx4 {vr(VB+4*j,4)}, v{vV0 + (i>>1)}, {sr(sV,4)}, s{sO0+T} offen offset:{(i&1)*2048}{VFL}")

    def next_offsets():
        e(f"  v_readlane_b32 s{sO0}, v{vBT}, s{sIdx}")
        e(f"  s_add_u32 s{sIdx}, s{sIdx}, 1")
        e(f"  v_readlane_b32 s{sO1}, v{vBT}, s{sIdx}")
        e(f"  s_add_u32 s{sIdx}, s{sIdx}, 1")

    def reduce_l():
        for sw in ("32", "16"):
            e(f"  v_mov_b32 v{t1}, v{vL}")
            e("  s_nop 1")
            e(f"  v_permlane{sw}_swap_b32 v{vL}, v{t1}")
            e("  s_nop 1")
            e(f"  v_add_f32 v{vL}, v{vL}, v{t1}")

    def init_state():
        for i in range(32):
            e(f"  v_mov_b32 v{O+i}, 0")
        e(f"  v_mov_b32 v{vMC}, 0xff7fffff")
        e(f"  v_mov_b32 v{vL}, 0")

    def split(dst, nm1, h, tmp):
        e(f"  s_lshr_b32 s{dst}, s{nm1}, 6")
        e(f"  s_add_u32 s{dst}, s{dst}, 1")
        if any(dl):
            e(f"  s_lshr_b32 s{tmp}, s6, 8")
            e(f"  s_add_u32 s{tmp}, s{tmp}, s{h}")
            e(f"  s_and_b32 s{tmp}, s{tmp}, 3")
            e(f"  s_lshl_b32 s{tmp}, s{tmp}, 2")
            e(f"  s_lshr_b32 s{tmp}, {TAB}, s{tmp}")
            e(f"  s_and_b32 s{tmp}, s{tmp}, 15")
            e(f"  s_add_u32 s{dst}, s{dst}, s{tmp}")
            e(f"  s_sub_i32 s{dst}, s{dst}, 8")
            e(f"  s_max_i32 s{dst}, s{dst}, 1")
            e(f"  s_lshr_b32 s{tmp}, s{nm1}, 5")
            e(f"  s_add_u32 s{tmp}, s{tmp}, 1")
            e(f"  s_min_u32 s{dst}, s{dst}, s{tmp}")

    e(HEADER.rstrip("\n"))
    e(f"; @launch grid=(256,1,1) block=(256,1,1) lds={LDS}")
    for line in DOC.strip("\n").split("\n"):
        e(("; " + line).rstrip())
    e('.amdgcn_target "amdgcn-amd-amdhsa--gfx950"')
    e(".text")
    e(f".globl {NAME}")
    e(".p2align 8")
    e(f".type {NAME},@function")
    e(f"{NAME}:")
    e("  s_cmp_ge_u32 s2, 256")
    e("  s_cbranch_scc1 L_end")
    if stamp:
        e("  s_memrealtime s[100:101]")
    e("  s_load_dwordx8 s[4:11], s[0:1], 0")
    e("  s_load_dwordx4 s[12:15], s[0:1], 32")
    e(f"  s_load_dwordx4 {sr(sDBG,4)}, s[0:1], 48")
    e(f"  v_lshrrev_b32 v{t0}, 6, v0")
    e(f"  v_and_b32 v0, 63, v0")
    e(f"  v_readfirstlane_b32 s{sW}, v{t0}")
    e(f"  s_lshr_b32 s{sB}, s2, 3")
    e(f"  s_and_b32 s{sH}, s2, 7")
    e(f"  v_and_b32 v{tA}, 15, v0")
    e(f"  v_lshrrev_b32 v{tB}, 4, v0")
    e(f"  v_lshrrev_b32 v{tC}, 1, v0")
    e(f"  v_and_b32 v{tD}, 1, v0")
    e(f"  v_lshlrev_b32 v{t1}, 8, v{tA}")
    e(f"  v_lshl_add_u32 v{t1}, v{tB}, 4, v{t1}")
    e(f"  s_cmp_eq_u32 s{sW}, 3")
    e("  s_cbranch_scc1 L_service")

    e(f"  s_lshl_b32 s{sIdx}, s{sW}, 1")
    e(f"  v_lshlrev_b32 v{t0}, 2, v{tC}")
    e(f"  v_add3_u32 v{tC}, v{t0}, v{tD}, s{sIdx}")
    e(f"  s_lshl_b32 s{sNB}, s{sB}, 9")
    e(f"  v_lshl_add_u32 v{t0}, v{tC}, 2, s{sNB}")
    e(f"  s_lshl_b32 s{sRem}, s{sB}, 2")
    e(f"  s_lshl_b32 s{sT2}, s2, 12")
    e(f"  s_lshl_b32 s{sKB}, s{sW}, 13")
    e(f"  s_lshl_b32 s{sT3}, s{sH}, 8")
    for i in range(4):
        e(f"  v_add_u32 v{vV0}, {4*i}, v{tB}")
        e(f"  v_xor_b32 v{vV1}, v{tA}, v{vV0}")
        e(f"  v_lshlrev_b32 v{vV0}, 11, v{vV0}")
        e(f"  v_lshl_add_u32 v{vKo+i}, v{vV1}, 4, v{vV0}")
        if i:
            e(f"  v_subrev_u32 v{vKo+i}, {i*1024}, v{vKo+i}")
    e(f"  v_lshlrev_b32 v{vV0}, 13, v{tB}")
    e(f"  v_lshl_add_u32 v{vV0}, v{tA}, 4, v{vV0}")
    e(f"  v_add_u32 v{vV1}, 0x1000, v{vV0}")
    e(f"  s_mov_b32 s{sBT+2}, {32*128*4}")
    e(f"  s_mov_b32 s{sBT+3}, 0x00020000")
    e("  s_waitcnt lgkmcnt(0)")
    if stamp:
        e(f"  s_mov_b32 s{sST}, s100")
    e(f"  s_mov_b32 s{sBT}, s10")
    e(f"  s_mov_b32 s{sBT+1}, s11")
    e(f"  buffer_load_dword v{vBT}, v{t0}, {sr(sBT,4)}, 0 offen")
    e(f"  s_load_dword s{sCL}, s[12:13], s{sRem}")
    srd(sQ, 4, Q_BYTES)
    for kk in range(4):
        e(f"  buffer_load_dwordx4 {vr(Q+4*kk,4)}, v{t1}, {sr(sQ,4)}, s{sT2} offen offset:{kk*64}")
    srd(sK, 6, KV_BYTES)
    srd(sV, 8, KV_BYTES)
    e(f"  s_mov_b32 s{sPh}, 0")
    e(f"  s_mov_b32 s{sEv}, 1")
    e(f"  s_mov_b32 s{sIdx}, 0")
    e("  s_barrier")
    e(f"  s_cmp_eq_u32 s{sW}, 2")
    e("  s_cbranch_scc1 L_consts")
    e("  s_waitcnt vmcnt(4)")
    e(f"  v_lshlrev_b32 v{vBT}, 15, v{vBT}")
    e(f"  v_add_u32 v{vBT}, s{sT3}, v{vBT}")
    e("  s_nop 0")
    e("L_issue:")
    next_offsets()
    e("  s_nop 1")
    loadKV()
    e(f"  s_cmp_lg_u32 s{sPh}, 0")
    e("  s_cbranch_scc1 L_loop")
    e(f"  s_cmp_eq_u32 s{sEv}, 1")
    e("  s_cbranch_scc0 L_phase_end")
    e("L_consts:")
    e(f"  v_lshlrev_b32 v{tD}, 8, v{tA}")
    e(f"  v_add_u32 v{tD}, s{sKB}, v{tD}")
    for kk in range(4):
        e(f"  v_add_u32 v{t0}, {4*kk}, v{tB}")
        e(f"  v_xor_b32 v{t0}, v{tA}, v{t0}")
        e(f"  v_lshl_add_u32 v{vKr+kk}, v{t0}, 4, v{tD}")
    e(f"  v_lshlrev_b32 v{v4r}, 2, v{tB}")
    e(f"  s_mov_b32 s{sC}, {hex(f32bits(128 ** -0.5 * math.log2(math.e)))}")
    e(f"  s_mov_b32 s{sSelLo}, 0x05040100")
    e(f"  s_mov_b32 s{sSelHi}, 0x07060302")
    e(f"  s_mov_b32 s{sNeg}, {hex(f32bits(-1e9 / (128 ** -0.5)))}")
    init_state()
    e("  s_waitcnt lgkmcnt(0)")
    e(f"  s_sub_u32 s{sNB}, s{sCL}, 1")
    e(f"  s_min_u32 s{sNB}, s{sNB}, 2047")
    e(f"  s_max_i32 s{sCL}, s{sCL}, 0")
    split(sA1, sNB, sH, sTmp)
    e(f"  s_sub_u32 s{sLeft}, s{sA1}, s{sW}")
    e(f"  s_add_u32 s{sLeft}, s{sLeft}, 1")
    e(f"  s_lshr_b32 s{sLeft}, s{sLeft}, 1")
    e(f"  s_lshl_b32 s{sTmp}, s{sW}, 5")
    e(f"  s_sub_i32 s{sRem}, s{sCL}, s{sTmp}")
    e(f"  s_cmp_eq_u32 s{sW}, 2")
    e(f"  s_cselect_b32 s{sLeft}, 0, s{sLeft}")
    e(f"  s_cselect_b32 s{sDec}, 32, 64")
    st(1)
    e(f"  s_cmp_lg_u32 s{sLeft}, 0")
    e("  s_cbranch_scc1 L_loop")
    e("  s_waitcnt vmcnt(0)")
    e(f"  s_call_b64 {sr(sRET,2)}, L_getinfo")
    e(f"  s_mov_b32 s{sIdx}, 0")
    e(f"  s_cmp_eq_u32 s{sW}, 2")
    e("  s_cbranch_scc1 L_phase_end")
    e("  s_branch L_issue")

    e("L_loop:")
    e(f"  s_add_u32 s{sTmp}, s{sLeft}, s{sPh}")
    e(f"  s_cmp_lg_u32 s{sTmp}, s{sEv}")
    e("  s_cbranch_scc1 L_noinfo")
    e(f"  s_call_b64 {sr(sRET,2)}, L_event")
    e("L_noinfo:")
    next_offsets()
    e(f"  s_waitcnt vmcnt(8)")
    for kk in range(4):
        for T in range(2):
            e(f"  ds_read_b128 {vr(KT+16*T+4*kk,4)}, v{vKr+kk} offset:{T*4096}")
    def perms():
        for w in range(4):
            for jp in range(4):
                a, b = VB + 4 * (2 * jp + 1) + w, VB + 4 * (2 * jp) + w
                e(f"  v_perm_b32 v{VT+4*(2*w)+jp}, v{a}, v{b}, s{sSelLo}")
                e(f"  v_perm_b32 v{VT+4*(2*w+1)+jp}, v{a}, v{b}, s{sSelHi}")
    if order == 0:
        e(f"  s_waitcnt vmcnt(0)")
        perms()
        e(f"  s_waitcnt lgkmcnt(0)")
        loadKV()
    for kk in range(4):
        if order == 1:
            e(f"  s_waitcnt lgkmcnt({6-2*kk})")
        for T in range(2):
            c = "0" if kk == 0 else vr(S + 4 * T, 4)
            e(f"  v_mfma_f32_16x16x32_bf16 {vr(S+4*T,4)}, {vr(KT+16*T+4*kk,4)}, {vr(Q+4*kk,4)}, {c}")
    if order == 1:
        loadK()
    e(f"  s_cmp_ge_i32 s{sRem}, 32")
    if order == 0:
        e(f"  s_nop 6")
    e(f"  s_cbranch_scc1 L_nomask")
    e(f"  v_sub_u32 v{t0}, s{sRem}, v{v4r}")
    e(f"  v_mov_b32 v{t1}, s{sNeg}")
    for j in range(8):
        off = 16 * (j >> 2) + (j & 3)
        e(f"  v_cmp_lt_i32 {sr(sM+2*j,2)}, {off}, v{t0}")
    e("  s_nop 1")
    for j in range(8):
        e(f"  v_cndmask_b32 v{S+j}, v{t1}, v{S+j}, {sr(sM+2*j,2)}")
    e(f"L_nomask:")
    e(f"  s_sub_i32 s{sRem}, s{sRem}, s{sDec}")
    e(f"  v_max3_f32 v{t0}, v{S}, v{S+1}, v{S+2}")
    e(f"  v_max3_f32 v{t1}, v{S+3}, v{S+4}, v{S+5}")
    e(f"  v_max3_f32 v{t0}, v{t0}, v{S+6}, v{S+7}")
    e(f"  v_max_f32 v{t0}, v{t0}, v{t1}")
    e(f"  v_mov_b32 v{t1}, v{t0}")
    e("  s_nop 1")
    e(f"  v_permlane32_swap_b32 v{t0}, v{t1}")
    e("  s_nop 1")
    e(f"  v_max_f32 v{t0}, v{t0}, v{t1}")
    e(f"  v_mov_b32 v{t1}, v{t0}")
    e("  s_nop 1")
    e(f"  v_permlane16_swap_b32 v{t0}, v{t1}")
    e("  s_nop 1")
    e(f"  v_max_f32 v{t0}, v{t0}, v{t1}")
    e(f"  v_mul_f32 v{t0}, s{sC}, v{t0}")
    e(f"  v_max_f32 v{vMCn}, v{t0}, v{vMC}")
    e(f"  v_sub_f32 v{t1}, v{vMC}, v{vMCn}")
    e(f"  v_exp_f32 v{vAl}, v{t1}")
    e(f"  v_mov_b32 v{vMC}, v{vMCn}")
    for j in range(8):
        e(f"  v_fma_f32 v{S+j}, v{S+j}, s{sC}, -v{vMCn}")
    for j in range(8):
        e(f"  v_exp_f32 v{S+j}, v{S+j}")
    for i in range(16):
        e(f"  v_pk_mul_f32 {vr(O+2*i,2)}, {vr(O+2*i,2)}, {vr(vAl,2)} op_sel_hi:[1,0]")
    if order == 1:
        e(f"  s_waitcnt vmcnt(8)")
        perms()
        loadV()
    for jp in range(4):
        e(f"  v_cvt_pk_bf16_f32 v{P+jp}, v{S+2*jp}, v{S+2*jp+1}")
    e(f"  v_mul_f32 v{vL}, v{vL}, v{vAl}")
    e(f"  v_add_f32 v{t0}, v{S}, v{S+1}")
    for ee in range(8):
        e(f"  v_mfma_f32_16x16x32_bf16 {vr(O+4*ee,4)}, {vr(VT+4*ee,4)}, {vr(P,4)}, {vr(O+4*ee,4)}")
        if ee == 0:
            e(f"  v_add_f32 v{t1}, v{S+2}, v{S+3}")
            e(f"  v_add_f32 v{tA}, v{S+4}, v{S+5}")
        if ee == 1:
            e(f"  v_add_f32 v{tB}, v{S+6}, v{S+7}")
            e(f"  v_add_f32 v{t0}, v{t0}, v{t1}")
        if ee == 2:
            e(f"  v_add_f32 v{tA}, v{tA}, v{tB}")
            e(f"  v_add_f32 v{vL}, v{vL}, v{t0}")
        if ee == 3:
            e(f"  v_add_f32 v{vL}, v{vL}, v{tA}")
    e(f"  s_sub_u32 s{sLeft}, s{sLeft}, 1")
    e(f"  s_cmp_lg_u32 s{sLeft}, 0")
    e("  s_cbranch_scc1 L_loop")
    e("L_phase_end:")
    reduce_l()
    e(f"  v_and_b32 v{tA}, 15, v0")
    e(f"  v_lshrrev_b32 v{tB}, 4, v0")
    e(f"  s_cmp_lg_u32 s{sPh}, 0")
    e("  s_cbranch_scc1 L_final")
    e(f"  s_cmp_eq_u32 s{sW}, 2")
    e("  s_cbranch_scc1 L_noflush")
    e(f"  s_mul_i32 s{sTmp}, s{sW}, {FPART}")
    e(f"  s_add_u32 s{sTmp}, s{sTmp}, {FB}")
    e(f"  v_mul_u32_u24 v{t0}, 144, v{tA}")
    e(f"  v_mul_u32_u24 v{t1}, 2304, v{tB}")
    e(f"  v_add3_u32 v{t0}, v{t0}, v{t1}, s{sTmp}")
    e(f"  s_lshl_b32 s{sTmp}, s{sW}, 3")
    e(f"  s_add_u32 s{sTmp}, s{sTmp}, {FST}")
    e(f"  v_lshl_add_u32 v{t1}, v{tA}, 4, s{sTmp}")
    e(f"  ds_write_b64 v{t1}, {vr(vMC,2)}")
    for ee in range(8):
        e(f"  ds_write_b128 v{t0}, {vr(O+4*ee,4)} offset:{16*ee}")
    e("L_noflush:")
    e(f"  v_lshlrev_b32 v{t1}, 4, v0")
    e(f"  v_add_u32 v{t1}, {Q2}, v{t1}")
    if nob1:
        e(f"  s_lshl_b32 s{sTmp}, s{sW}, 2")
        e(f"  s_add_u32 s{sTmp}, s{sTmp}, {FLG+16}")
        e(f"  v_mov_b32 v{t0}, s{sTmp}")
        for kk in range(4):
            e(f"  ds_read_b128 {vr(Q+4*kk,4)}, v{t1} offset:{kk*1024}")
        e("  s_waitcnt lgkmcnt(4)")
        e(f"  ds_write_b32 v{t0}, v{t0}")
    else:
        e("  s_waitcnt lgkmcnt(0)")
        e("  s_barrier")
        for kk in range(4):
            e(f"  ds_read_b128 {vr(Q+4*kk,4)}, v{t1} offset:{kk*1024}")
    init_state()
    e(f"  s_mov_b32 s{sPh}, 0x1000")
    e(f"  s_mov_b32 s{sRem}, s{sRem2}")
    e(f"  s_mov_b32 s{sLeft}, s{sN2}")
    e("  s_waitcnt lgkmcnt(0)")
    st(2)
    e(f"  s_cmp_eq_u32 s{sLeft}, 0")
    e("  s_cbranch_scc1 L_phase_end")
    e(f"  s_cmp_lg_u32 s{sW}, 2")
    e("  s_cbranch_scc1 L_loop")
    e(f"  v_mov_b32 v{t0}, {FLG}")
    e("L_xwait:")
    e("  s_sleep 2")
    e(f"  ds_read_b32 v{t1}, v{t0} offset:8")
    e("  s_waitcnt lgkmcnt(0)")
    e(f"  v_readfirstlane_b32 s{sTmp}, v{t1}")
    e("  s_nop 0")
    e(f"  s_cmp_eq_u32 s{sTmp}, 0")
    e("  s_cbranch_scc1 L_xwait")
    e("  s_branch L_issue")

    e("L_event:")
    e(f"  s_cmp_eq_u32 s{sPh}, 0")
    e("  s_cbranch_scc1 L_getinfo")
    e(f"  s_lshl_b32 s{sTmp}, s{sW}, 2")
    e(f"  v_mov_b32 v{t1}, s{sTmp}")
    e(f"  ds_write_b32 v{t1}, v{vKr} offset:{FLG+4}") if FLG + 4 < 65536 else None
    if FLG + 4 >= 65536:
        e(f"  v_add_u32 v{t1}, {FLG+4}, v{t1}")
        e(f"  ds_write_b32 v{t1}, v{t1}")
    e(f"  s_setpc_b64 {sr(sRET,2)}")
    e("L_getinfo:")
    e(f"  v_mov_b32 v{t1}, {REC}")
    e(f"  s_lshl_b32 s{sTmp}, s{sW}, 8")
    e(f"  s_add_u32 s{sTmp}, s{sTmp}, {LST}")
    e(f"  v_lshl_add_u32 v{t0}, v0, 2, s{sTmp}")
    e(f"  s_lshl_b32 s{sTmp}, s{sW}, 3")
    e(f"  v_add_u32 v{tD}, s{sTmp}, v{t1}")
    e("L_gi_poll:")
    e("  s_sleep 1")
    e(f"  ds_read_b32 v{tC}, v{t1} offset:32")
    e("  s_waitcnt lgkmcnt(0)")
    e(f"  v_readfirstlane_b32 s{sTmp}, v{tC}")
    e("  s_nop 0")
    e(f"  s_cmp_eq_u32 s{sTmp}, 0")
    e("  s_cbranch_scc1 L_gi_poll")
    e(f"  ds_read_b32 v{vBT}, v{t0}")
    e(f"  ds_read_b64 {vr(S,2)}, v{t1}")
    e(f"  ds_read_b64 {vr(S+2,2)}, v{tD} offset:8")
    e("  s_waitcnt lgkmcnt(0)")
    e(f"  v_readfirstlane_b32 s{sOB}, v{S}")
    e(f"  v_readfirstlane_b32 s{sEv}, v{S+1}")
    e(f"  v_readfirstlane_b32 s{sN2}, v{S+2}")
    e(f"  v_readfirstlane_b32 s{sRem2}, v{S+3}")
    e(f"  s_and_b32 s{sTmp}, s{sEv}, 0xffff")
    e(f"  s_lshr_b32 s{sEv}, s{sEv}, 16")
    e(f"  s_cmp_eq_u32 s{sW}, 0")
    e(f"  s_cselect_b32 s{sEv}, s{sTmp}, s{sEv}")
    e(f"  s_cmp_eq_u32 s{sW}, 2")
    e(f"  s_cselect_b32 s{sEv}, -1, s{sEv}")
    e(f"  s_setpc_b64 {sr(sRET,2)}")

    e("L_final:")
    st(3)
    e(f"  s_mul_i32 s{sTmp}, s{sW}, {GPART}")
    e(f"  s_add_u32 s{sTmp}, s{sTmp}, {GB}")
    e(f"  v_mul_u32_u24 v{t0}, {ROWB}, v{tA}")
    e(f"  v_lshl_add_u32 v{t0}, v{tB}, 7, v{t0}")
    e(f"  v_add_u32 v{t0}, s{sTmp}, v{t0}")
    e(f"  s_lshl_b32 s{sTmp}, s{sW}, 3")
    e(f"  s_add_u32 s{sTmp}, s{sTmp}, {GST}")
    e(f"  v_lshl_add_u32 v{t1}, v{tA}, 5, s{sTmp}")
    e(f"  ds_write_b64 v{t1}, {vr(vMC,2)}")
    for ee in range(8):
        e(f"  ds_write_b128 v{t0}, {vr(O+4*ee,4)} offset:{16*ee}")
    e(f"  s_lshl_b32 s{sTmp}, s{sW}, 2")
    e(f"  s_add_u32 s{sTmp}, s{sTmp}, {FLG+4}")
    e(f"  v_mov_b32 v{t1}, s{sTmp}")
    e(f"  ds_write_b32 v{t1}, v{t1}")
    e("L_b2:")
    srd(sO, 14, Q_BYTES)
    e(f"  s_lshl_b32 s{sTmp}, s{sW}, 2")
    e(f"  v_lshrrev_b32 v{tA}, 5, v0")
    e(f"  v_add_u32 v{tA}, s{sTmp}, v{tA}")
    e(f"  v_and_b32 v{tB}, 31, v0")
    e(f"  v_mul_u32_u24 v{t0}, {ROWB}, v{tA}")
    e(f"  v_lshl_add_u32 v{t0}, v{tB}, 4, v{t0}")
    e(f"  v_add_u32 v{t0}, {GB}, v{t0}")
    e(f"  v_lshlrev_b32 v{t1}, 5, v{tA}")
    e(f"  v_add_u32 v{t1}, {GST}, v{t1}")
    e(f"  v_lshrrev_b32 v{tC}, 3, v{tB}")
    e(f"  v_and_b32 v{tB}, 7, v{tB}")
    e(f"  v_lshlrev_b32 v{tA}, 8, v{tA}")
    e(f"  v_lshl_add_u32 v{tA}, v{tC}, 6, v{tA}")
    e(f"  v_lshl_add_u32 v{tA}, v{tB}, 1, v{tA}")
    e("  s_waitcnt lgkmcnt(0)")
    e("  s_barrier")
    for ch in range(2):
        ST = KT + 8 * ch
        for u in range(2):
            e(f"  ds_read_b128 {vr(ST+4*u,4)}, v{t1} offset:{ch*64+16*u}")
    PBs = [VT, O]
    for ch in range(2):
        for u in range(NP):
            e(f"  ds_read_b128 {vr(PBs[ch]+4*u,4)}, v{t0} offset:{u*GPART + ch*2*ROWB}")
    e(f"  s_waitcnt lgkmcnt({2*NP})")
    for ch in range(2):
        ST = KT + 8 * ch
        m = KT + 24 + 2 * ch
        e(f"  v_max3_f32 v{m}, v{ST}, v{ST+2}, v{ST+4}")
        e(f"  v_max_f32 v{m}, v{m}, v{ST+6}")
    for ch in range(2):
        ST = KT + 8 * ch
        m = KT + 24 + 2 * ch
        for u in range(NP):
            e(f"  v_sub_f32 v{ST+2*u}, v{ST+2*u}, v{m}")
    for ch in range(2):
        ST = KT + 8 * ch
        for u in range(NP):
            e(f"  v_exp_f32 v{ST+2*u}, v{ST+2*u}")
    for ch in range(2):
        ST = KT + 8 * ch
        l = KT + 24 + 2 * ch + 1
        e(f"  v_mul_f32 v{l}, v{ST}, v{ST+1}")
        for u in range(1, NP):
            e(f"  v_fmac_f32 v{l}, v{ST+2*u}, v{ST+2*u+1}")
    for ch in range(2):
        l = KT + 24 + 2 * ch + 1
        e(f"  v_rcp_f32 v{l}, v{l}")
    for ch in range(2):
        ST = KT + 8 * ch
        PB = PBs[ch]
        l = KT + 24 + 2 * ch + 1
        R = S + 4 * ch
        e(f"  s_waitcnt lgkmcnt({NP*(1-ch)})")
        for i in range(4):
            e(f"  v_mul_f32 v{R+i}, v{ST}, v{PB+i}")
        for u in range(1, NP):
            for i in range(4):
                e(f"  v_fmac_f32 v{R+i}, v{ST+2*u}, v{PB+4*u+i}")
        for i in range(4):
            e(f"  v_mul_f32 v{R+i}, v{R+i}, v{l}")
        e(f"  v_cvt_pk_bf16_f32 v{P+2*ch}, v{R}, v{R+1}")
        e(f"  v_cvt_pk_bf16_f32 v{P+2*ch+1}, v{R+2}, v{R+3}")
        e(f"  buffer_store_short v{P+2*ch}, v{tA}, {sr(sO,4)}, s{sOB} offen offset:{ch*512}")
        e(f"  buffer_store_short_d16_hi v{P+2*ch}, v{tA}, {sr(sO,4)}, s{sOB} offen offset:{ch*512+16}")
        e(f"  buffer_store_short v{P+2*ch+1}, v{tA}, {sr(sO,4)}, s{sOB} offen offset:{ch*512+32}")
        e(f"  buffer_store_short_d16_hi v{P+2*ch+1}, v{tA}, {sr(sO,4)}, s{sOB} offen offset:{ch*512+48}")
    if stamp:
        e("  s_waitcnt vmcnt(0)")
        e(f"  s_cmp_eq_u32 s{sW}, 3")
        e("  s_cbranch_scc1 L_stamp")
        st(4)
        e("  s_branch L_stamp")
    else:
        e("  s_endpgm")

    e("L_service:")
    e("  s_setprio 3")
    vC, vN, vKey, vRk = 32, 33, 35, 36
    vI, vPar = tC, tD
    e(f"  v_mov_b32 v{vRk}, 0")
    e(f"  v_mov_b32 v{vNON+2}, 0")
    e(f"  v_mov_b32 v{vNON+3}, 0")
    e(f"  v_mov_b32 v{t0}, {FLG}")
    e(f"  ds_write_b64 v{t0}, {vr(vNON+2,2)}")
    e(f"  ds_write_b64 v{t0}, {vr(vNON+2,2)} offset:8")
    e(f"  ds_write_b64 v{t0}, {vr(vNON+2,2)} offset:16")
    e(f"  ds_write_b64 v{t0}, {vr(vNON+2,2)} offset:24")
    e(f"  v_and_b32 v{vKey}, 31, v0")
    e(f"  v_lshlrev_b32 v{t0}, 2, v{vKey}")
    e(f"  s_movk_i32 s{sT2}, 2047")
    e("  s_waitcnt lgkmcnt(0)")
    if stamp:
        e(f"  s_mov_b32 s{sST}, s100")
    srd(sK, 12, 128)
    e(f"  buffer_load_dword v{vC}, v{t0}, {sr(sK,4)}, 0 offen")
    e(f"  s_memrealtime {sr(sNON,2)}")
    e("  s_barrier")
    srd(sBT, 10, 32 * 128 * 4)
    srd(sQ, 4, Q_BYTES)
    srd(sWS, sDBG + 2, 256 * SLOTB)
    if cyc:
        e(f"  s_add_u32 s{sH2}, s{sH}, {hx}")
        e(f"  s_and_b32 s{sH2}, s{sH2}, 3")
        e(f"  s_and_b32 s{sTmp}, s{sH}, 4")
        e(f"  s_or_b32 s{sH2}, s{sH2}, s{sTmp}")
    else:
        e(f"  s_xor_b32 s{sH2}, s{sH}, {hx}")
    e("  s_waitcnt vmcnt(0)")
    e(f"  v_add_u32 v{vN}, -1, v{vC}")
    e(f"  v_min_u32 v{vN}, s{sT2}, v{vN}")
    e(f"  v_max_i32 v{vC}, 0, v{vC}")
    e(f"  v_lshl_add_u32 v{vKey}, v{vN}, 5, v{vKey}")
    e("  s_nop 0")
    for g in range(4):
        for j in range(8):
            e(f"  v_readlane_b32 s{56+j}, v{vKey}, {8*g+j}")
        for j in range(8):
            e(f"  v_cmp_lt_u32 {sr(sM+2*j,2)}, s{56+j}, v{vKey}")
        for j in range(8):
            e(f"  v_addc_co_u32 v{vRk}, vcc, 0, v{vRk}, {sr(sM+2*j,2)}")
    e("  s_nop 0")
    e(f"  v_readlane_b32 s{sTmp}, v{vRk}, s{sB}")
    e("  s_nop 0")
    e(f"  s_sub_u32 s{sTmp}, 31, s{sTmp}")
    e(f"  v_cmp_eq_u32 vcc, s{sTmp}, v{vRk}")
    e(f"  v_readlane_b32 s{sNB}, v{vN}, s{sB}")
    e("  s_nop 3")
    e(f"  s_ff1_i32_b64 s{sB2}, vcc")
    e(f"  s_and_b32 s{sB2}, s{sB2}, 31")
    e(f"  v_cmp_eq_u32 vcc, 31, v{vRk}")
    e(f"  v_readlane_b32 s{sNB2}, v{vN}, s{sB2}")
    e(f"  v_readlane_b32 s{sCL2}, v{vC}, s{sB2}")
    e("  s_nop 2")
    e(f"  s_ff1_i32_b64 s{sTmp}, vcc")
    e(f"  v_readlane_b32 s{sEv}, v{vN}, s{sTmp}")
    split(sA1, sNB, sH, sTmp)
    e(f"  s_lshr_b32 s{sNB}, s{sNB}, 4")
    e(f"  s_add_u32 s{sNB}, s{sNB}, 1")
    split(sA2, sNB2, sH2, sTmp)
    e(f"  s_lshr_b32 s{sT5}, s{sNB2}, 5")
    e(f"  s_add_u32 s{sX2}, s{sT5}, 1")
    e(f"  s_sub_u32 s{sX2}, s{sX2}, s{sA2}")
    e(f"  s_lshr_b32 s{sNB2}, s{sNB2}, 4")
    e(f"  s_add_u32 s{sNB2}, s{sNB2}, 1")
    e(f"  s_add_u32 s{sLeft}, s{sA1}, s{sX2}")
    e(f"  s_add_u32 s{sOdd}, s{sLeft}, {E0}")
    e(f"  s_and_b32 s{sOdd}, s{sOdd}, {1 if odd else 0}")
    e(f"  s_add_u32 s{sOdd}, s{sOdd}, {E0}")
    e(f"  s_min_u32 s{sOdd}, s{sOdd}, s{sX2}")
    e(f"  s_sub_u32 s{sX2}, s{sX2}, s{sOdd}")
    e(f"  s_add_u32 s{sT5}, s{sA2}, s{sX2}")
    e(f"  s_add_u32 s{sRem}, s{sA2}, s{sX2}")
    e(f"  s_lshl_b32 s{sRem}, s{sRem}, 1")
    e(f"  s_min_u32 s{sRem}, s{sRem}, s{sNB2}")
    e(f"  s_lshr_b32 s{sEv}, s{sEv}, 6")
    e(f"  s_add_u32 s{sEv}, s{sEv}, {1 + max(0, max(dl))}")
    if go:
        e(f"  s_cmp_eq_u32 s2, 0")
        e(f"  s_movk_i32 s{sTmp}, {pfb}")
        e(f"  s_cselect_b32 s{sTmp}, {go}, s{sTmp}")
        e(f"  s_mul_i32 s{sTmp}, s{sLeft}, s{sTmp}")
        e(f"  s_lshr_b32 s{sEv}, s{sTmp}, 8")
    else:
        e(f"  s_mul_i32 s{sTmp}, s{sLeft}, {pf}")
        e(f"  s_lshr_b32 s{sTmp}, s{sTmp}, 8")
        e(f"  s_min_u32 s{sEv}, s{sEv}, s{sTmp}" if cap else f"  s_mov_b32 s{sEv}, s{sTmp}")
    e(f"  s_add_u32 s{sEv}, s{sEv}, 1")
    e(f"  s_lshr_b32 s{sEv}, s{sEv}, 1")
    e(f"  s_lshl_b32 s{sT2}, s{sB}, 9")
    e(f"  s_lshl_b32 s{sT3}, s{sB2}, 9")
    e(f"  s_lshl_b32 s{sX}, s{sB2}, 3")
    e(f"  s_add_u32 s{sX}, s{sX}, s{sH2}")
    e(f"  s_lshl_b32 s{sOB}, s{sX}, 12")
    LB = 40
    RC = S
    for w in range(2):
        e(f"  s_add_u32 s{sN2}, s{sA1}, {1-w}")
        e(f"  s_lshr_b32 s{sN2}, s{sN2}, 1")
        e(f"  s_add_u32 s{sTmp}, s{sA1}, {w}")
        e(f"  s_and_b32 s{sTmp}, s{sTmp}, 1")
        e(f"  s_sub_u32 s{sT4}, s{sX2}, s{sTmp}")
        e(f"  s_add_u32 s{sT4}, s{sT4}, 1")
        e(f"  s_lshr_b32 s{sT4}, s{sT4}, 1")
        e(f"  v_mov_b32 v{RC+2+2*w}, s{sT4}")
        if w == 0:
            e(f"  s_cmp_gt_u32 s{sEv}, s{sN2}")
            e(f"  s_cselect_b32 s{sPh}, 1, 0")
            e(f"  s_add_u32 s{sT4}, s{sT4}, s{sN2}")
            e(f"  s_sub_i32 s{sEv}, s{sT4}, s{sEv}")
            e(f"  s_add_u32 s{sEv}, s{sEv}, 0x1000")
        else:
            e(f"  s_add_u32 s{sIdx}, s{sOdd}, {xlead}")
            e(f"  s_min_u32 s{sT4}, s{sT4}, s{sIdx}")
            e(f"  s_add_u32 s{sT4}, s{sT4}, 0x1000")
            e(f"  s_lshl_b32 s{sT4}, s{sT4}, 16")
            e(f"  s_or_b32 s{sEv}, s{sEv}, s{sT4}")
        e(f"  s_add_u32 s{sTmp}, s{sTmp}, s{sA2}")
        e(f"  s_lshl_b32 s{sT4}, s{sTmp}, 5")
        e(f"  s_sub_i32 s{sT4}, s{sCL2}, s{sT4}")
        e(f"  v_mov_b32 v{RC+3+2*w}, s{sT4}")
        e(f"  s_lshl_b32 s{sT4}, s{sN2}, 1")
        e(f"  s_sub_u32 s{sTmp}, s{sTmp}, s{sT4}")
        e(f"  v_cmp_gt_u32 vcc, s{sN2}, v{vI}")
        e(f"  v_mov_b32 v{t0}, s{sTmp}")
        e(f"  v_mov_b32 v{vAl}, s{sRem}")
        e(f"  v_mov_b32 v{vAl+1}, {w}")
        e(f"  v_cndmask_b32 v{t0}, v{t0}, v{vAl+1}, vcc")
        e(f"  v_lshl_add_u32 v{t0}, v{vI}, 1, v{t0}")
        e(f"  v_lshl_add_u32 v{LB+w}, v{t0}, 1, v{vPar}")
        e(f"  v_mov_b32 v{vAl+1}, s{sNB}")
        e(f"  v_cndmask_b32 v{LB+8+w}, v{vAl}, v{vAl+1}, vcc")
        e(f"  v_mov_b32 v{vAl}, s{sT3}")
        e(f"  v_mov_b32 v{vAl+1}, s{sT2}")
        e(f"  v_cndmask_b32 v{t0}, v{vAl}, v{vAl+1}, vcc")
        e(f"  v_lshl_add_u32 v{t0}, v{LB+w}, 2, v{t0}")
        e(f"  buffer_load_dword v{LB+4+w}, v{t0}, {sr(sBT,4)}, 0 offen")
        e(f"  v_mov_b32 v{vAl}, s{sH2}")
        e(f"  v_mov_b32 v{vAl+1}, s{sH}")
        e(f"  v_cndmask_b32 v{LB+12+w}, v{vAl}, v{vAl+1}, vcc")
        e(f"  v_lshlrev_b32 v{LB+12+w}, 8, v{LB+12+w}")
    e(f"  s_lshl_b32 s{sTmp}, s{sT5}, 1")
    e(f"  v_add_u32 v{LB+2}, s{sTmp}, v0")
    e(f"  v_lshlrev_b32 v{t0}, 2, v{LB+2}")
    e(f"  buffer_load_dword v{LB+6}, v{t0}, {sr(sBT,4)}, s{sT3} offen")
    e(f"  v_mov_b32 v{LB+10}, s{sNB2}")
    e(f"  s_lshl_b32 s{sTmp}, s{sH2}, 8")
    e(f"  v_mov_b32 v{LB+14}, s{sTmp}")
    e(f"  v_mov_b32 v{RC+6}, s{sOdd}")
    e(f"  s_lshl_b32 s{sTmp}, s{sT5}, 5")
    e(f"  s_sub_i32 s{sTmp}, s{sCL2}, s{sTmp}")
    e(f"  v_mov_b32 v{RC+7}, s{sTmp}")
    for kk in range(4):
        e(f"  s_mov_b32 m0, {Q2 + kk*960}")
        e("  s_nop 0")
        e(f"  buffer_load_dwordx4 v{t1}, {sr(sQ,4)}, s{sOB} offen offset:{kk*64} lds")
    e(f"  v_mov_b32 v{RC}, s{sOB}")
    e(f"  v_mov_b32 v{RC+1}, s{sEv}")
    e(f"  v_mov_b32 v{vKey}, {REC}")
    e(f"  ds_write_b128 v{vKey}, {vr(RC,4)}")
    e(f"  ds_write_b128 v{vKey}, {vr(RC+4,4)} offset:16")
    e(f"  v_lshlrev_b32 v{t0}, 2, v0")
    e(f"  v_add_u32 v{t0}, {LST}, v{t0}")
    e(f"  v_mov_b32 v{vAl}, {hex(OOB)}")
    for w in range(3):
        e(f"  v_cmp_lt_u32 vcc, v{LB+w}, v{LB+8+w}")
        e(f"  s_waitcnt vmcnt({4+2-w})")
        e(f"  v_lshl_add_u32 v{LB+4+w}, v{LB+4+w}, 15, v{LB+12+w}")
        e(f"  v_cndmask_b32 v{LB+4+w}, v{vAl}, v{LB+4+w}, vcc")
        e(f"  ds_write_b32 v{t0}, v{LB+4+w} offset:{w*256}")
    e(f"  v_mov_b32 v{vAl}, 1")
    e("  s_waitcnt vmcnt(0) lgkmcnt(0)" if nob1 else "  s_waitcnt lgkmcnt(0)")
    e(f"  ds_write_b32 v{vKey}, v{vAl} offset:32")
    st(1)
    e(f"  s_or_b32 s{sNON}, s{sNON}, 1")
    e(f"  v_mov_b32 v{vNON}, s{sNON}")
    e(f"  v_mov_b32 v{vNON+1}, s{sNON+1}")
    e(f"  s_mov_b64 {sr(sM,2)}, exec")
    e(f"  s_cmp_lg_u32 s2, 0")
    e("  s_cbranch_scc1 L_nocas")
    e("  s_mov_b64 exec, 1")
    e(f"  global_atomic_cmpswap_x2 v{vNON+2}, {vr(vNON,4)}, {sr(sDBG,2)} sc1")
    e(f"  s_mov_b64 exec, {sr(sM,2)}")
    e("L_nocas:")
    e(f"  v_mul_u32_u24 v{t0}, 144, v{tA}")
    e(f"  v_mul_u32_u24 v{t1}, 2304, v{tB}")
    e(f"  v_add_u32 v{t0}, v{t0}, v{t1}")
    e(f"  v_add_u32 v{t0}, {FB}, v{t0}")
    e(f"  v_lshlrev_b32 v{t1}, 4, v{tA}")
    e(f"  v_add_u32 v{t1}, {FST}, v{t1}")
    e(f"  v_lshlrev_b32 v{tC}, 4, v0")
    e(f"  v_lshlrev_b32 v{tD}, 2, v0")
    e(f"  s_mul_i32 s{sT2}, s2, {SLOTB}")
    e(f"  s_mul_i32 s{sT3}, s{sX}, {SLOTB}")
    if nob1:
        e("L_fwait:")
        e("  s_sleep 2")
        e(f"  ds_read_b96 {vr(32,3)}, v{vKey} offset:48")
        e("  s_waitcnt lgkmcnt(0)")
        e(f"  v_min_u32 v32, v32, v33")
        e(f"  v_min_u32 v32, v32, v34")
        e("  s_nop 0")
        e(f"  v_readfirstlane_b32 s{sTmp}, v32")
        e("  s_nop 0")
        e(f"  s_cmp_eq_u32 s{sTmp}, 0")
        e("  s_cbranch_scc1 L_fwait")
        e("  s_waitcnt vmcnt(0)")
    else:
        e("  s_waitcnt vmcnt(0) lgkmcnt(0)")
        e("  s_barrier")
    if nohand:
        e("  s_branch L_b2")
    e(f"  global_load_dwordx2 {vr(vNON+4,2)}, v{vNON+2}, {sr(sDBG,2)} sc1")
    ST = 32
    R = 40
    PB = 72
    e(f"  ds_read_b128 {vr(ST,4)}, v{t1}")
    for ee in range(7):
        for u in range(NS):
            e(f"  ds_read_b128 {vr(PB+8*ee+4*u,4)}, v{t0} offset:{u*FPART+16*ee}")
    e(f"  s_waitcnt lgkmcnt(14)")
    for u in range(NS):
        e(f"  ds_read_b128 {vr(PB+8*7+4*u,4)}, v{t0} offset:{u*FPART+16*7}") if u == 0 else None
    e(f"  v_max_f32 v{vMC}, v{ST}, v{ST+2}")
    for u in range(NS):
        e(f"  v_sub_f32 v{ST+2*u}, v{ST+2*u}, v{vMC}")
    for u in range(NS):
        e(f"  v_exp_f32 v{ST+2*u}, v{ST+2*u}")
    e(f"  s_waitcnt lgkmcnt(13)")
    e(f"  ds_read_b128 {vr(PB+8*7+4,4)}, v{t0} offset:{FPART+16*7}")
    e(f"  v_mul_f32 v{vL}, v{ST}, v{ST+1}")
    e(f"  v_fmac_f32 v{vL}, v{ST+2}, v{ST+3}")
    for ee in range(8):
        e(f"  s_waitcnt lgkmcnt({14-2*ee})")
        for i in range(4):
            e(f"  v_mul_f32 v{R+4*ee+i}, v{ST}, v{PB+8*ee+i}")
        for i in range(4):
            e(f"  v_fmac_f32 v{R+4*ee+i}, v{ST+2}, v{PB+8*ee+4+i}")
    e("  s_waitcnt vmcnt(0)")
    e(f"  v_readfirstlane_b32 s{sT4}, v{vNON+4}")
    e(f"  v_readfirstlane_b32 s{sT5}, v{vNON+5}")
    e("  s_nop 0")
    e(f"  s_cmp_lg_u32 s{sT4}, 0")
    e("  s_cbranch_scc1 L_havenonce")
    e("  s_mov_b64 exec, 1")
    e(f"  global_atomic_cmpswap_x2 {vr(vNON+4,2)}, v{vNON+2}, {vr(vNON,4)}, {sr(sDBG,2)} sc0 sc1")
    e(f"  s_mov_b64 exec, {sr(sM,2)}")
    e("  s_waitcnt vmcnt(0)")
    e(f"  v_readfirstlane_b32 s{sT4}, v{vNON+4}")
    e(f"  v_readfirstlane_b32 s{sT5}, v{vNON+5}")
    e("  s_nop 0")
    e(f"  s_cmp_lg_u32 s{sT4}, 0")
    e(f"  s_cselect_b32 s{sT4}, s{sT4}, s{sNON}")
    e(f"  s_cselect_b32 s{sT5}, s{sT5}, s{sNON+1}")
    e("L_havenonce:")
    e(f"  s_mov_b32 s{sNON}, s{sT4}")
    e(f"  s_mov_b32 s{sNON+1}, s{sT5}")
    e(f"  v_mov_b32 v{vNON}, s{sT4}")
    e(f"  v_mov_b32 v{vNON+1}, s{sT5}")
    e(f"  s_cmp_eq_u32 s{sPh}, 0")
    e("  s_cbranch_scc1 L_publish")
    e(f"  v_mov_b32 v{t0}, {FLG}")
    if go:
        e(f"  s_add_u32 s{sT4}, s{sT2}, 8832")
        e("  s_mov_b64 exec, 1")
    e("L_trig:")
    e("  s_sleep 2")
    if go:
        e(f"  buffer_load_dwordx2 {vr(vNON+4,2)}, v{vNON+2}, {sr(sWS,4)}, s{sT4} offen sc1")
    e(f"  ds_read_b32 v{t1}, v{t0} offset:4")
    if go:
        e("  s_waitcnt vmcnt(0) lgkmcnt(0)")
        e(f"  v_readfirstlane_b32 s{sN2}, v{vNON+4}")
        e(f"  v_readfirstlane_b32 s{sN2+1}, v{vNON+5}")
        e(f"  v_readfirstlane_b32 s{sTmp}, v{t1}")
        e(f"  s_cmp_eq_u64 {sr(sN2,2)}, {sr(sNON,2)}")
        e("  s_cbranch_scc1 L_trigd")
    else:
        e("  s_waitcnt lgkmcnt(0)")
        e(f"  v_readfirstlane_b32 s{sTmp}, v{t1}")
        e("  s_nop 0")
    e(f"  s_cmp_eq_u32 s{sTmp}, 0")
    e("  s_cbranch_scc1 L_trig")
    if go:
        e("L_trigd:")
        e(f"  s_mov_b64 exec, {sr(sM,2)}")
    e("L_publish:")
    st(1)
    if go:
        e(f"  s_cmp_lg_u32 s2, 0")
        e("  s_cbranch_scc1 L_nogo")
        e(f"  s_movk_i32 s{sTmp}, {SLOTB}")
        e(f"  v_mul_lo_u32 v{t0}, v0, s{sTmp}")
        for k in range(4):
            e(f"  s_mov_b32 s{sTmp}, {64*k*SLOTB + 8832}")
            e(f"  buffer_store_dwordx2 {vr(vNON,2)}, v{t0}, {sr(sWS,4)}, s{sTmp} offen sc1")
        e("L_nogo:")
    e(f"  s_add_u32 s{sT4}, s{sT2}, 4096")
    e(f"  s_add_u32 s{sT5}, s{sT2}, 8192")
    for ee in range(8):
        if 'store' not in skip and not ('half' in skip and ee >= 4):
            e(f"  buffer_store_dwordx4 {vr(R+4*ee,4)}, v{tC}, {sr(sWS,4)}, s{sT2 if ee < 4 else sT4} offen offset:{(ee&3)*1024} sc1")
    if 'store' not in skip:
        e(f"  buffer_store_dword v{vMC}, v{tD}, {sr(sWS,4)}, s{sT5} offen sc1")
        e(f"  buffer_store_dword v{vL}, v{tD}, {sr(sWS,4)}, s{sT5} offen offset:256 sc1")
    e(f"  s_add_u32 s{sT4}, s{sT3}, 8704")
    if 'wait' not in skip:
        e("  s_waitcnt vmcnt(0)")
    e("  s_mov_b64 exec, 1")
    if 'flag' not in skip:
        e(f"  buffer_store_dwordx2 {vr(vNON,2)}, v{vNON+2}, {sr(sWS,4)}, s{sT5} offen offset:512 sc1")
    e(f"  s_mov_b32 s{sT5}, 0x40000")
    st(2)
    if 'poll' in skip:
        e("  s_branch L_got")
    if pipe:
        PR = 72
        for k in range(pipe - 1):
            e(f"  buffer_load_dwordx2 {vr(PR+2*k,2)}, v{vNON+2}, {sr(sWS,4)}, s{sT4} offen sc1")
            e(f"  s_sleep {sleep}")
        e("L_poll:")
        for k in range(pipe):
            kn = (k + pipe - 1) % pipe
            e(f"  buffer_load_dwordx2 {vr(PR+2*kn,2)}, v{vNON+2}, {sr(sWS,4)}, s{sT4} offen sc1")
            e(f"  s_waitcnt vmcnt({pipe-1})")
            e(f"  v_readfirstlane_b32 s{sN2}, v{PR+2*k}")
            e(f"  v_readfirstlane_b32 s{sN2+1}, v{PR+2*k+1}")
            e("  s_nop 0")
            e(f"  s_cmp_eq_u64 {sr(sN2,2)}, {sr(sNON,2)}")
            e("  s_cbranch_scc1 L_got")
            e(f"  s_sleep {sleep}")
        e(f"  s_sub_u32 s{sT5}, s{sT5}, 1")
        e(f"  s_cmp_lg_u32 s{sT5}, 0")
        e("  s_cbranch_scc1 L_poll")
    else:
        e("L_poll:")
        e(f"  buffer_load_dwordx2 {vr(vNON+4,2)}, v{vNON+2}, {sr(sWS,4)}, s{sT4} offen sc1")
        e("  s_waitcnt vmcnt(0)")
        e(f"  v_readfirstlane_b32 s{sN2}, v{vNON+4}")
        e(f"  v_readfirstlane_b32 s{sN2+1}, v{vNON+5}")
        e("  s_nop 0")
        e(f"  s_cmp_eq_u64 {sr(sN2,2)}, {sr(sNON,2)}")
        e("  s_cbranch_scc1 L_got")
        e(f"  s_sleep {sleep}")
        e(f"  s_sub_u32 s{sT5}, s{sT5}, 1")
        e(f"  s_cmp_lg_u32 s{sT5}, 0")
        e("  s_cbranch_scc1 L_poll")
    e("L_got:")
    e(f"  s_mov_b64 exec, {sr(sM,2)}")
    st(3)
    if 'pload' in skip:
        e("  s_branch L_b2")
    e(f"  s_add_u32 s{sT4}, s{sT3}, 8192")
    e(f"  buffer_load_dword v{vMC}, v{tD}, {sr(sWS,4)}, s{sT4} offen sc1")
    e(f"  buffer_load_dword v{vL}, v{tD}, {sr(sWS,4)}, s{sT4} offen offset:256 sc1")
    e(f"  s_add_u32 s{sT4}, s{sT3}, 4096")
    for ee in range(8):
        e(f"  buffer_load_dwordx4 {vr(R+4*ee,4)}, v{tC}, {sr(sWS,4)}, s{sT3 if ee < 4 or 'half' in skip else sT4} offen offset:{(ee&3)*1024} sc1")
    e(f"  v_mul_u32_u24 v{t0}, {ROWB}, v{tA}")
    e(f"  v_lshl_add_u32 v{t0}, v{tB}, 7, v{t0}")
    e(f"  v_add_u32 v{t0}, {GB + 3*GPART}, v{t0}")
    e(f"  v_lshlrev_b32 v{t1}, 5, v{tA}")
    e(f"  v_add_u32 v{t1}, {GST + 24}, v{t1}")
    e("  s_waitcnt vmcnt(8)")
    e(f"  ds_write_b64 v{t1}, {vr(vMC,2)}")
    for ee in range(8):
        e(f"  s_waitcnt vmcnt({7-ee})")
        e(f"  ds_write_b128 v{t0}, {vr(R+4*ee,4)} offset:{16*ee}")
    st(4)
    e("  s_branch L_b2")
    if stamp:
        e("L_stamp:")
        e(f"  s_lshl_b32 s{sTmp}, s2, 2")
        e(f"  s_add_u32 s{sTmp}, s{sTmp}, s{sW}")
        e(f"  s_lshl_b32 s{sTmp}, s{sTmp}, 5")
        e(f"  s_add_u32 s{sTmp}, s{sTmp}, {256*SLOTB}")
        e(f"  v_mov_b32 v{t0}, s{sTmp}")
        for i in range(5):
            e(f"  v_mov_b32 v{S+i}, s{sST+i}")
        e("  s_getreg_b32 s100, hwreg(HW_REG_XCC_ID)")
        e(f"  v_mov_b32 v{S+5}, s100")
        e(f"  v_mov_b32 v{S+6}, s{sA1}")
        e("  s_getreg_b32 s100, hwreg(HW_REG_HW_ID)")
        e(f"  v_mov_b32 v{S+7}, s100")
        e("  s_mov_b64 exec, 1")
        e(f"  global_store_dwordx4 v{t0}, {vr(S,4)}, {sr(sDBG+2,2)}")
        e(f"  global_store_dwordx4 v{t0}, {vr(S+4,4)}, {sr(sDBG+2,2)} offset:16")
    e("L_end:")
    e("  s_endpgm")
    e('.section .rodata,"a"')
    e(".p2align 6")
    e(f".amdhsa_kernel {NAME}")
    e(f"  .amdhsa_next_free_vgpr {NV}")
    e("  .amdhsa_next_free_sgpr 102")
    e(f"  .amdhsa_accum_offset {(NV+3)//4*4}")
    e("  .amdhsa_group_segment_fixed_size 0")
    e("  .amdhsa_kernarg_size 64")
    e("  .amdhsa_user_sgpr_count 2")
    e("  .amdhsa_user_sgpr_kernarg_segment_ptr 1")
    e("  .amdhsa_system_sgpr_workgroup_id_x 1")
    e(".end_amdhsa_kernel")
    return "\n".join(L) + "\n"


if __name__ == "__main__":
    ap = argparse.ArgumentParser()
    ap.add_argument("-o", required=True)
    ap.add_argument("--kfl", default="nt")
    ap.add_argument("--vfl", default="nt")
    ap.add_argument("--stamp", action="store_true")
    ap.add_argument("--hx", type=int, default=1)
    ap.add_argument("--sleep", type=int, default=8)
    ap.add_argument("--nohand", action="store_true")
    ap.add_argument("--noodd", action="store_true")
    ap.add_argument("--pf", type=int, default=172)
    ap.add_argument("--e0", type=int, default=0)
    ap.add_argument("--ldspad", type=int, default=0)
    ap.add_argument("--order", type=int, default=0)
    ap.add_argument("--skip", default="")
    ap.add_argument("--xlead", type=int, default=0)
    ap.add_argument("--cyc", action="store_true")
    ap.add_argument("--go", type=int, default=0)
    ap.add_argument("--b1", action="store_true")
    ap.add_argument("--pipe", type=int, default=0)
    ap.add_argument("--nocap", action="store_true")
    ap.add_argument("--pfb", type=int, default=216)
    ap.add_argument("--dl", default="0,0,0,0")
    a = ap.parse_args()
    open(a.o, "w").write(gen(kfl=a.kfl, vfl=a.vfl, stamp=a.stamp, hx=a.hx, sleep=a.sleep, nohand=a.nohand, pf=a.pf, odd=not a.noodd, E0=a.e0, ldspad=a.ldspad, order=a.order, skip=a.skip, xlead=a.xlead, cyc=a.cyc, go=a.go, nob1=not a.b1, pipe=a.pipe, cap=not a.nocap, pfb=a.pfb, dl=tuple(int(x) for x in a.dl.split(','))))
```

```python
import sys, struct, math, argparse

NAME = "standalone__paged_block_table_kv_pagedattention__sampling_kernel"
HEADER = open("standalone__paged_block_table_kv_pagedattention__sampling.s.ref").read().split("; Override launch")[0]

KV_BYTES = 4100 * 16 * 8 * 128 * 2
Q_BYTES = 32 * 32 * 4 * 128 * 2
OOB = 0x10000000
SLOTB = 9216


def f32bits(x):
    return struct.unpack("<I", struct.pack("<f", x))[0]


def gen(kfl="nt", vfl="nt", stamp=False, hx=1, sleep=8, nohand=False, pf=172, odd=True, E0=0, ldspad=0, order=0, skip='', xlead=0, cyc=False, dl=(0,0,0,0), go=0, pfb=216, cap=True, pipe=0, nob1=True):
    TAB = sum(((d + 8) & 15) << (4 * c) for c, d in enumerate(dl))
    skip = set(skip.split(','))
    L = []
    e = L.append
    NS = 2
    NP = 4
    KFL = (" " + kfl.replace("+", " ")) if kfl else ""
    VFL = (" " + vfl.replace("+", " ")) if vfl else ""
    vKo, vKr, vV0, vV1, vBT, v4r = 1, 5, 9, 10, 11, 12
    vNON = 14
    vMC, vL, vAl, vMCn = 20, 21, 22, 24
    t0, t1, tA, tB, tC, tD = 25, 26, 27, 28, 29, 30
    Q, O, S, P, KT, VT, VB = 32, 48, 80, 88, 92, 124, 156
    NV = 188
    sK, sV, sBT, sQ, sO, sWS = 16, 20, 24, 28, 32, 36
    (sB, sH, sW, sCL, sNB, sLeft, sIdx, sO0, sO1, sRem, sC, sSelLo, sSelHi, sTmp, sNeg, sKB,
     sN2, sRem2, sOB, sPh, sX, sA1, sT2, sT3, sT4, sT5, sB2, sH2, sA2, sNB2, sX2, sCL2) = range(40, 72)
    sM = 72
    sDBG = 88
    sST = 92
    sEv = 97
    sNON = 98
    sRET = 98
    sOdd = 3
    sDec = 3
    KSLOT = 8192
    FB = 3 * KSLOT
    FPART = 9216
    FST = FB + NS * FPART
    GB = FST + 16 * 16
    ROWB = 528
    GPART = 16 * ROWB
    GST = GB + NP * GPART
    LST = GB + 3 * GPART
    Q2 = GST + 16 * 32
    REC = Q2 + 4096
    FLG = REC + 32
    LDS = max(FLG + 32, ldspad)

    def vr(a, n):
        return f"v[{a}:{a+n-1}]"

    def sr(a, n):
        return f"s[{a}:{a+n-1}]"

    def srd(r, lo, nbytes):
        e(f"  s_mov_b32 s{r}, s{lo}")
        e(f"  s_mov_b32 s{r+1}, s{lo+1}")
        e(f"  s_mov_b32 s{r+2}, {nbytes}")
        e(f"  s_mov_b32 s{r+3}, 0x00020000")

    def st(i):
        if stamp:
            e(f"  s_memrealtime s[100:101]")
            e(f"  s_waitcnt lgkmcnt(0)")
            e(f"  s_mov_b32 s{sST+i}, s100")

    def loadKV():
        loadK()
        loadV()

    def loadK():
        for T in range(2):
            e(f"  s_add_u32 m0, s{sKB}, {T*4096}")
            e(f"  s_nop 0")
            for i in range(4):
                e(f"  buffer_load_dwordx4 v{vKo+i}, {sr(sK,4)}, s{sO0+T} offen offset:{i*1024}{KFL} lds")

    def loadV():
        for j in range(8):
            T, i = j >> 2, j & 3
            e(f"  buffer_load_dwordx4 {vr(VB+4*j,4)}, v{vV0 + (i>>1)}, {sr(sV,4)}, s{sO0+T} offen offset:{(i&1)*2048}{VFL}")

    def next_offsets():
        e(f"  v_readlane_b32 s{sO0}, v{vBT}, s{sIdx}")
        e(f"  s_add_u32 s{sIdx}, s{sIdx}, 1")
        e(f"  v_readlane_b32 s{sO1}, v{vBT}, s{sIdx}")
        e(f"  s_add_u32 s{sIdx}, s{sIdx}, 1")

    def reduce_l():
        for sw in ("32", "16"):
            e(f"  v_mov_b32 v{t1}, v{vL}")
            e("  s_nop 1")
            e(f"  v_permlane{sw}_swap_b32 v{vL}, v{t1}")
            e("  s_nop 1")
            e(f"  v_add_f32 v{vL}, v{vL}, v{t1}")

    def init_state():
        for i in range(32):
            e(f"  v_mov_b32 v{O+i}, 0")
        e(f"  v_mov_b32 v{vMC}, 0xff7fffff")
        e(f"  v_mov_b32 v{vL}, 0")

    def split(dst, nm1, h, tmp):
        e(f"  s_lshr_b32 s{dst}, s{nm1}, 6")
        e(f"  s_add_u32 s{dst}, s{dst}, 1")
        if any(dl):
            e(f"  s_lshr_b32 s{tmp}, s6, 8")
            e(f"  s_add_u32 s{tmp}, s{tmp}, s{h}")
            e(f"  s_and_b32 s{tmp}, s{tmp}, 3")
            e(f"  s_lshl_b32 s{tmp}, s{tmp}, 2")
            e(f"  s_lshr_b32 s{tmp}, {TAB}, s{tmp}")
            e(f"  s_and_b32 s{tmp}, s{tmp}, 15")
            e(f"  s_add_u32 s{dst}, s{dst}, s{tmp}")
            e(f"  s_sub_i32 s{dst}, s{dst}, 8")
            e(f"  s_max_i32 s{dst}, s{dst}, 1")
            e(f"  s_lshr_b32 s{tmp}, s{nm1}, 5")
            e(f"  s_add_u32 s{tmp}, s{tmp}, 1")
            e(f"  s_min_u32 s{dst}, s{dst}, s{tmp}")

    e(HEADER.rstrip("\n"))
    e(f"; @launch grid=(256,1,1) block=(256,1,1) lds={LDS}")
    e('.amdgcn_target "amdgcn-amd-amdhsa--gfx950"')
    e(".text")
    e(f".globl {NAME}")
    e(".p2align 8")
    e(f".type {NAME},@function")
    e(f"{NAME}:")
    e("  s_cmp_ge_u32 s2, 256")
    e("  s_cbranch_scc1 L_end")
    if stamp:
        e("  s_memrealtime s[100:101]")
    e("  s_load_dwordx8 s[4:11], s[0:1], 0")
    e("  s_load_dwordx4 s[12:15], s[0:1], 32")
    e(f"  s_load_dwordx4 {sr(sDBG,4)}, s[0:1], 48")
    e(f"  v_lshrrev_b32 v{t0}, 6, v0")
    e(f"  v_and_b32 v0, 63, v0")
    e(f"  v_readfirstlane_b32 s{sW}, v{t0}")
    e(f"  s_lshr_b32 s{sB}, s2, 3")
    e(f"  s_and_b32 s{sH}, s2, 7")
    e(f"  v_and_b32 v{tA}, 15, v0")
    e(f"  v_lshrrev_b32 v{tB}, 4, v0")
    e(f"  v_lshrrev_b32 v{tC}, 1, v0")
    e(f"  v_and_b32 v{tD}, 1, v0")
    e(f"  v_lshlrev_b32 v{t1}, 8, v{tA}")
    e(f"  v_lshl_add_u32 v{t1}, v{tB}, 4, v{t1}")
    e(f"  s_cmp_eq_u32 s{sW}, 3")
    e("  s_cbranch_scc1 L_service")

    e(f"  s_lshl_b32 s{sIdx}, s{sW}, 1")
    e(f"  v_lshlrev_b32 v{t0}, 2, v{tC}")
    e(f"  v_add3_u32 v{tC}, v{t0}, v{tD}, s{sIdx}")
    e(f"  s_lshl_b32 s{sNB}, s{sB}, 9")
    e(f"  v_lshl_add_u32 v{t0}, v{tC}, 2, s{sNB}")
    e(f"  s_lshl_b32 s{sRem}, s{sB}, 2")
    e(f"  s_lshl_b32 s{sT2}, s2, 12")
    e(f"  s_lshl_b32 s{sKB}, s{sW}, 13")
    e(f"  s_lshl_b32 s{sT3}, s{sH}, 8")
    for i in range(4):
        e(f"  v_add_u32 v{vV0}, {4*i}, v{tB}")
        e(f"  v_xor_b32 v{vV1}, v{tA}, v{vV0}")
        e(f"  v_lshlrev_b32 v{vV0}, 11, v{vV0}")
        e(f"  v_lshl_add_u32 v{vKo+i}, v{vV1}, 4, v{vV0}")
        if i:
            e(f"  v_subrev_u32 v{vKo+i}, {i*1024}, v{vKo+i}")
    e(f"  v_lshlrev_b32 v{vV0}, 13, v{tB}")
    e(f"  v_lshl_add_u32 v{vV0}, v{tA}, 4, v{vV0}")
    e(f"  v_add_u32 v{vV1}, 0x1000, v{vV0}")
    e(f"  s_mov_b32 s{sBT+2}, {32*128*4}")
    e(f"  s_mov_b32 s{sBT+3}, 0x00020000")
    e("  s_waitcnt lgkmcnt(0)")
    if stamp:
        e(f"  s_mov_b32 s{sST}, s100")
    e(f"  s_mov_b32 s{sBT}, s10")
    e(f"  s_mov_b32 s{sBT+1}, s11")
    e(f"  buffer_load_dword v{vBT}, v{t0}, {sr(sBT,4)}, 0 offen")
    e(f"  s_load_dword s{sCL}, s[12:13], s{sRem}")
    srd(sQ, 4, Q_BYTES)
    for kk in range(4):
        e(f"  buffer_load_dwordx4 {vr(Q+4*kk,4)}, v{t1}, {sr(sQ,4)}, s{sT2} offen offset:{kk*64}")
    srd(sK, 6, KV_BYTES)
    srd(sV, 8, KV_BYTES)
    e(f"  s_mov_b32 s{sPh}, 0")
    e(f"  s_mov_b32 s{sEv}, 1")
    e(f"  s_mov_b32 s{sIdx}, 0")
    e("  s_barrier")
    e(f"  s_cmp_eq_u32 s{sW}, 2")
    e("  s_cbranch_scc1 L_consts")
    e("  s_waitcnt vmcnt(4)")
    e(f"  v_lshlrev_b32 v{vBT}, 15, v{vBT}")
    e(f"  v_add_u32 v{vBT}, s{sT3}, v{vBT}")
    e("  s_nop 0")
    e("L_issue:")
    next_offsets()
    e("  s_nop 1")
    loadKV()
    e(f"  s_cmp_lg_u32 s{sPh}, 0")
    e("  s_cbranch_scc1 L_loop")
    e(f"  s_cmp_eq_u32 s{sEv}, 1")
    e("  s_cbranch_scc0 L_phase_end")
    e("L_consts:")
    e(f"  v_lshlrev_b32 v{tD}, 8, v{tA}")
    e(f"  v_add_u32 v{tD}, s{sKB}, v{tD}")
    for kk in range(4):
        e(f"  v_add_u32 v{t0}, {4*kk}, v{tB}")
        e(f"  v_xor_b32 v{t0}, v{tA}, v{t0}")
        e(f"  v_lshl_add_u32 v{vKr+kk}, v{t0}, 4, v{tD}")
    e(f"  v_lshlrev_b32 v{v4r}, 2, v{tB}")
    e(f"  s_mov_b32 s{sC}, {hex(f32bits(128 ** -0.5 * math.log2(math.e)))}")
    e(f"  s_mov_b32 s{sSelLo}, 0x05040100")
    e(f"  s_mov_b32 s{sSelHi}, 0x07060302")
    e(f"  s_mov_b32 s{sNeg}, {hex(f32bits(-1e9 / (128 ** -0.5)))}")
    init_state()
    e("  s_waitcnt lgkmcnt(0)")
    e(f"  s_sub_u32 s{sNB}, s{sCL}, 1")
    e(f"  s_min_u32 s{sNB}, s{sNB}, 2047")
    e(f"  s_max_i32 s{sCL}, s{sCL}, 0")
    split(sA1, sNB, sH, sTmp)
    e(f"  s_sub_u32 s{sLeft}, s{sA1}, s{sW}")
    e(f"  s_add_u32 s{sLeft}, s{sLeft}, 1")
    e(f"  s_lshr_b32 s{sLeft}, s{sLeft}, 1")
    e(f"  s_lshl_b32 s{sTmp}, s{sW}, 5")
    e(f"  s_sub_i32 s{sRem}, s{sCL}, s{sTmp}")
    e(f"  s_cmp_eq_u32 s{sW}, 2")
    e(f"  s_cselect_b32 s{sLeft}, 0, s{sLeft}")
    e(f"  s_cselect_b32 s{sDec}, 32, 64")
    st(1)
    e(f"  s_cmp_lg_u32 s{sLeft}, 0")
    e("  s_cbranch_scc1 L_loop")
    e("  s_waitcnt vmcnt(0)")
    e(f"  s_call_b64 {sr(sRET,2)}, L_getinfo")
    e(f"  s_mov_b32 s{sIdx}, 0")
    e(f"  s_cmp_eq_u32 s{sW}, 2")
    e("  s_cbranch_scc1 L_phase_end")
    e("  s_branch L_issue")

    e("L_loop:")
    e(f"  s_add_u32 s{sTmp}, s{sLeft}, s{sPh}")
    e(f"  s_cmp_lg_u32 s{sTmp}, s{sEv}")
    e("  s_cbranch_scc1 L_noinfo")
    e(f"  s_call_b64 {sr(sRET,2)}, L_event")
    e("L_noinfo:")
    next_offsets()
    e(f"  s_waitcnt vmcnt(8)")
    for kk in range(4):
        for T in range(2):
            e(f"  ds_read_b128 {vr(KT+16*T+4*kk,4)}, v{vKr+kk} offset:{T*4096}")
    def perms():
        for w in range(4):
            for jp in range(4):
                a, b = VB + 4 * (2 * jp + 1) + w, VB + 4 * (2 * jp) + w
                e(f"  v_perm_b32 v{VT+4*(2*w)+jp}, v{a}, v{b}, s{sSelLo}")
                e(f"  v_perm_b32 v{VT+4*(2*w+1)+jp}, v{a}, v{b}, s{sSelHi}")
    if order == 0:
        e(f"  s_waitcnt vmcnt(0)")
        perms()
        e(f"  s_waitcnt lgkmcnt(0)")
        loadKV()
    for kk in range(4):
        if order == 1:
            e(f"  s_waitcnt lgkmcnt({6-2*kk})")
        for T in range(2):
            c = "0" if kk == 0 else vr(S + 4 * T, 4)
            e(f"  v_mfma_f32_16x16x32_bf16 {vr(S+4*T,4)}, {vr(KT+16*T+4*kk,4)}, {vr(Q+4*kk,4)}, {c}")
    if order == 1:
        loadK()
    e(f"  s_cmp_ge_i32 s{sRem}, 32")
    if order == 0:
        e(f"  s_nop 6")
    e(f"  s_cbranch_scc1 L_nomask")
    e(f"  v_sub_u32 v{t0}, s{sRem}, v{v4r}")
    e(f"  v_mov_b32 v{t1}, s{sNeg}")
    for j in range(8):
        off = 16 * (j >> 2) + (j & 3)
        e(f"  v_cmp_lt_i32 {sr(sM+2*j,2)}, {off}, v{t0}")
    e("  s_nop 1")
    for j in range(8):
        e(f"  v_cndmask_b32 v{S+j}, v{t1}, v{S+j}, {sr(sM+2*j,2)}")
    e(f"L_nomask:")
    e(f"  s_sub_i32 s{sRem}, s{sRem}, s{sDec}")
    e(f"  v_max3_f32 v{t0}, v{S}, v{S+1}, v{S+2}")
    e(f"  v_max3_f32 v{t1}, v{S+3}, v{S+4}, v{S+5}")
    e(f"  v_max3_f32 v{t0}, v{t0}, v{S+6}, v{S+7}")
    e(f"  v_max_f32 v{t0}, v{t0}, v{t1}")
    e(f"  v_mov_b32 v{t1}, v{t0}")
    e("  s_nop 1")
    e(f"  v_permlane32_swap_b32 v{t0}, v{t1}")
    e("  s_nop 1")
    e(f"  v_max_f32 v{t0}, v{t0}, v{t1}")
    e(f"  v_mov_b32 v{t1}, v{t0}")
    e("  s_nop 1")
    e(f"  v_permlane16_swap_b32 v{t0}, v{t1}")
    e("  s_nop 1")
    e(f"  v_max_f32 v{t0}, v{t0}, v{t1}")
    e(f"  v_mul_f32 v{t0}, s{sC}, v{t0}")
    e(f"  v_max_f32 v{vMCn}, v{t0}, v{vMC}")
    e(f"  v_sub_f32 v{t1}, v{vMC}, v{vMCn}")
    e(f"  v_exp_f32 v{vAl}, v{t1}")
    e(f"  v_mov_b32 v{vMC}, v{vMCn}")
    for j in range(8):
        e(f"  v_fma_f32 v{S+j}, v{S+j}, s{sC}, -v{vMCn}")
    for j in range(8):
        e(f"  v_exp_f32 v{S+j}, v{S+j}")
    for i in range(16):
        e(f"  v_pk_mul_f32 {vr(O+2*i,2)}, {vr(O+2*i,2)}, {vr(vAl,2)} op_sel_hi:[1,0]")
    if order == 1:
        e(f"  s_waitcnt vmcnt(8)")
        perms()
        loadV()
    for jp in range(4):
        e(f"  v_cvt_pk_bf16_f32 v{P+jp}, v{S+2*jp}, v{S+2*jp+1}")
    e(f"  v_mul_f32 v{vL}, v{vL}, v{vAl}")
    e(f"  v_add_f32 v{t0}, v{S}, v{S+1}")
    for ee in range(8):
        e(f"  v_mfma_f32_16x16x32_bf16 {vr(O+4*ee,4)}, {vr(VT+4*ee,4)}, {vr(P,4)}, {vr(O+4*ee,4)}")
        if ee == 0:
            e(f"  v_add_f32 v{t1}, v{S+2}, v{S+3}")
            e(f"  v_add_f32 v{tA}, v{S+4}, v{S+5}")
        if ee == 1:
            e(f"  v_add_f32 v{tB}, v{S+6}, v{S+7}")
            e(f"  v_add_f32 v{t0}, v{t0}, v{t1}")
        if ee == 2:
            e(f"  v_add_f32 v{tA}, v{tA}, v{tB}")
            e(f"  v_add_f32 v{vL}, v{vL}, v{t0}")
        if ee == 3:
            e(f"  v_add_f32 v{vL}, v{vL}, v{tA}")
    e(f"  s_sub_u32 s{sLeft}, s{sLeft}, 1")
    e(f"  s_cmp_lg_u32 s{sLeft}, 0")
    e("  s_cbranch_scc1 L_loop")
    e("L_phase_end:")
    reduce_l()
    e(f"  v_and_b32 v{tA}, 15, v0")
    e(f"  v_lshrrev_b32 v{tB}, 4, v0")
    e(f"  s_cmp_lg_u32 s{sPh}, 0")
    e("  s_cbranch_scc1 L_final")
    e(f"  s_cmp_eq_u32 s{sW}, 2")
    e("  s_cbranch_scc1 L_noflush")
    e(f"  s_mul_i32 s{sTmp}, s{sW}, {FPART}")
    e(f"  s_add_u32 s{sTmp}, s{sTmp}, {FB}")
    e(f"  v_mul_u32_u24 v{t0}, 144, v{tA}")
    e(f"  v_mul_u32_u24 v{t1}, 2304, v{tB}")
    e(f"  v_add3_u32 v{t0}, v{t0}, v{t1}, s{sTmp}")
    e(f"  s_lshl_b32 s{sTmp}, s{sW}, 3")
    e(f"  s_add_u32 s{sTmp}, s{sTmp}, {FST}")
    e(f"  v_lshl_add_u32 v{t1}, v{tA}, 4, s{sTmp}")
    e(f"  ds_write_b64 v{t1}, {vr(vMC,2)}")
    for ee in range(8):
        e(f"  ds_write_b128 v{t0}, {vr(O+4*ee,4)} offset:{16*ee}")
    e("L_noflush:")
    e(f"  v_lshlrev_b32 v{t1}, 4, v0")
    e(f"  v_add_u32 v{t1}, {Q2}, v{t1}")
    if nob1:
        e(f"  s_lshl_b32 s{sTmp}, s{sW}, 2")
        e(f"  s_add_u32 s{sTmp}, s{sTmp}, {FLG+16}")
        e(f"  v_mov_b32 v{t0}, s{sTmp}")
        for kk in range(4):
            e(f"  ds_read_b128 {vr(Q+4*kk,4)}, v{t1} offset:{kk*1024}")
        e("  s_waitcnt lgkmcnt(4)")
        e(f"  ds_write_b32 v{t0}, v{t0}")
    else:
        e("  s_waitcnt lgkmcnt(0)")
        e("  s_barrier")
        for kk in range(4):
            e(f"  ds_read_b128 {vr(Q+4*kk,4)}, v{t1} offset:{kk*1024}")
    init_state()
    e(f"  s_mov_b32 s{sPh}, 0x1000")
    e(f"  s_mov_b32 s{sRem}, s{sRem2}")
    e(f"  s_mov_b32 s{sLeft}, s{sN2}")
    e("  s_waitcnt lgkmcnt(0)")
    st(2)
    e(f"  s_cmp_eq_u32 s{sLeft}, 0")
    e("  s_cbranch_scc1 L_phase_end")
    e(f"  s_cmp_lg_u32 s{sW}, 2")
    e("  s_cbranch_scc1 L_loop")
    e(f"  v_mov_b32 v{t0}, {FLG}")
    e("L_xwait:")
    e("  s_sleep 2")
    e(f"  ds_read_b32 v{t1}, v{t0} offset:8")
    e("  s_waitcnt lgkmcnt(0)")
    e(f"  v_readfirstlane_b32 s{sTmp}, v{t1}")
    e("  s_nop 0")
    e(f"  s_cmp_eq_u32 s{sTmp}, 0")
    e("  s_cbranch_scc1 L_xwait")
    e("  s_branch L_issue")

    e("L_event:")
    e(f"  s_cmp_eq_u32 s{sPh}, 0")
    e("  s_cbranch_scc1 L_getinfo")
    e(f"  s_lshl_b32 s{sTmp}, s{sW}, 2")
    e(f"  v_mov_b32 v{t1}, s{sTmp}")
    e(f"  ds_write_b32 v{t1}, v{vKr} offset:{FLG+4}") if FLG + 4 < 65536 else None
    if FLG + 4 >= 65536:
        e(f"  v_add_u32 v{t1}, {FLG+4}, v{t1}")
        e(f"  ds_write_b32 v{t1}, v{t1}")
    e(f"  s_setpc_b64 {sr(sRET,2)}")
    e("L_getinfo:")
    e(f"  v_mov_b32 v{t1}, {REC}")
    e(f"  s_lshl_b32 s{sTmp}, s{sW}, 8")
    e(f"  s_add_u32 s{sTmp}, s{sTmp}, {LST}")
    e(f"  v_lshl_add_u32 v{t0}, v0, 2, s{sTmp}")
    e(f"  s_lshl_b32 s{sTmp}, s{sW}, 3")
    e(f"  v_add_u32 v{tD}, s{sTmp}, v{t1}")
    e("L_gi_poll:")
    e("  s_sleep 1")
    e(f"  ds_read_b32 v{tC}, v{t1} offset:32")
    e("  s_waitcnt lgkmcnt(0)")
    e(f"  v_readfirstlane_b32 s{sTmp}, v{tC}")
    e("  s_nop 0")
    e(f"  s_cmp_eq_u32 s{sTmp}, 0")
    e("  s_cbranch_scc1 L_gi_poll")
    e(f"  ds_read_b32 v{vBT}, v{t0}")
    e(f"  ds_read_b64 {vr(S,2)}, v{t1}")
    e(f"  ds_read_b64 {vr(S+2,2)}, v{tD} offset:8")
    e("  s_waitcnt lgkmcnt(0)")
    e(f"  v_readfirstlane_b32 s{sOB}, v{S}")
    e(f"  v_readfirstlane_b32 s{sEv}, v{S+1}")
    e(f"  v_readfirstlane_b32 s{sN2}, v{S+2}")
    e(f"  v_readfirstlane_b32 s{sRem2}, v{S+3}")
    e(f"  s_and_b32 s{sTmp}, s{sEv}, 0xffff")
    e(f"  s_lshr_b32 s{sEv}, s{sEv}, 16")
    e(f"  s_cmp_eq_u32 s{sW}, 0")
    e(f"  s_cselect_b32 s{sEv}, s{sTmp}, s{sEv}")
    e(f"  s_cmp_eq_u32 s{sW}, 2")
    e(f"  s_cselect_b32 s{sEv}, -1, s{sEv}")
    e(f"  s_setpc_b64 {sr(sRET,2)}")

    e("L_final:")
    st(3)
    e(f"  s_mul_i32 s{sTmp}, s{sW}, {GPART}")
    e(f"  s_add_u32 s{sTmp}, s{sTmp}, {GB}")
    e(f"  v_mul_u32_u24 v{t0}, {ROWB}, v{tA}")
    e(f"  v_lshl_add_u32 v{t0}, v{tB}, 7, v{t0}")
    e(f"  v_add_u32 v{t0}, s{sTmp}, v{t0}")
    e(f"  s_lshl_b32 s{sTmp}, s{sW}, 3")
    e(f"  s_add_u32 s{sTmp}, s{sTmp}, {GST}")
    e(f"  v_lshl_add_u32 v{t1}, v{tA}, 5, s{sTmp}")
    e(f"  ds_write_b64 v{t1}, {vr(vMC,2)}")
    for ee in range(8):
        e(f"  ds_write_b128 v{t0}, {vr(O+4*ee,4)} offset:{16*ee}")
    e(f"  s_lshl_b32 s{sTmp}, s{sW}, 2")
    e(f"  s_add_u32 s{sTmp}, s{sTmp}, {FLG+4}")
    e(f"  v_mov_b32 v{t1}, s{sTmp}")
    e(f"  ds_write_b32 v{t1}, v{t1}")
    e("L_b2:")
    srd(sO, 14, Q_BYTES)
    e(f"  s_lshl_b32 s{sTmp}, s{sW}, 2")
    e(f"  v_lshrrev_b32 v{tA}, 5, v0")
    e(f"  v_add_u32 v{tA}, s{sTmp}, v{tA}")
    e(f"  v_and_b32 v{tB}, 31, v0")
    e(f"  v_mul_u32_u24 v{t0}, {ROWB}, v{tA}")
    e(f"  v_lshl_add_u32 v{t0}, v{tB}, 4, v{t0}")
    e(f"  v_add_u32 v{t0}, {GB}, v{t0}")
    e(f"  v_lshlrev_b32 v{t1}, 5, v{tA}")
    e(f"  v_add_u32 v{t1}, {GST}, v{t1}")
    e(f"  v_lshrrev_b32 v{tC}, 3, v{tB}")
    e(f"  v_and_b32 v{tB}, 7, v{tB}")
    e(f"  v_lshlrev_b32 v{tA}, 8, v{tA}")
    e(f"  v_lshl_add_u32 v{tA}, v{tC}, 6, v{tA}")
    e(f"  v_lshl_add_u32 v{tA}, v{tB}, 1, v{tA}")
    e("  s_waitcnt lgkmcnt(0)")
    e("  s_barrier")
    for ch in range(2):
        ST = KT + 8 * ch
        for u in range(2):
            e(f"  ds_read_b128 {vr(ST+4*u,4)}, v{t1} offset:{ch*64+16*u}")
    PBs = [VT, O]
    for ch in range(2):
        for u in range(NP):
            e(f"  ds_read_b128 {vr(PBs[ch]+4*u,4)}, v{t0} offset:{u*GPART + ch*2*ROWB}")
    e(f"  s_waitcnt lgkmcnt({2*NP})")
    for ch in range(2):
        ST = KT + 8 * ch
        m = KT + 24 + 2 * ch
        e(f"  v_max3_f32 v{m}, v{ST}, v{ST+2}, v{ST+4}")
        e(f"  v_max_f32 v{m}, v{m}, v{ST+6}")
    for ch in range(2):
        ST = KT + 8 * ch
        m = KT + 24 + 2 * ch
        for u in range(NP):
            e(f"  v_sub_f32 v{ST+2*u}, v{ST+2*u}, v{m}")
    for ch in range(2):
        ST = KT + 8 * ch
        for u in range(NP):
            e(f"  v_exp_f32 v{ST+2*u}, v{ST+2*u}")
    for ch in range(2):
        ST = KT + 8 * ch
        l = KT + 24 + 2 * ch + 1
        e(f"  v_mul_f32 v{l}, v{ST}, v{ST+1}")
        for u in range(1, NP):
            e(f"  v_fmac_f32 v{l}, v{ST+2*u}, v{ST+2*u+1}")
    for ch in range(2):
        l = KT + 24 + 2 * ch + 1
        e(f"  v_rcp_f32 v{l}, v{l}")
    for ch in range(2):
        ST = KT + 8 * ch
        PB = PBs[ch]
        l = KT + 24 + 2 * ch + 1
        R = S + 4 * ch
        e(f"  s_waitcnt lgkmcnt({NP*(1-ch)})")
        for i in range(4):
            e(f"  v_mul_f32 v{R+i}, v{ST}, v{PB+i}")
        for u in range(1, NP):
            for i in range(4):
                e(f"  v_fmac_f32 v{R+i}, v{ST+2*u}, v{PB+4*u+i}")
        for i in range(4):
            e(f"  v_mul_f32 v{R+i}, v{R+i}, v{l}")
        e(f"  v_cvt_pk_bf16_f32 v{P+2*ch}, v{R}, v{R+1}")
        e(f"  v_cvt_pk_bf16_f32 v{P+2*ch+1}, v{R+2}, v{R+3}")
        e(f"  buffer_store_short v{P+2*ch}, v{tA}, {sr(sO,4)}, s{sOB} offen offset:{ch*512}")
        e(f"  buffer_store_short_d16_hi v{P+2*ch}, v{tA}, {sr(sO,4)}, s{sOB} offen offset:{ch*512+16}")
        e(f"  buffer_store_short v{P+2*ch+1}, v{tA}, {sr(sO,4)}, s{sOB} offen offset:{ch*512+32}")
        e(f"  buffer_store_short_d16_hi v{P+2*ch+1}, v{tA}, {sr(sO,4)}, s{sOB} offen offset:{ch*512+48}")
    if stamp:
        e("  s_waitcnt vmcnt(0)")
        e(f"  s_cmp_eq_u32 s{sW}, 3")
        e("  s_cbranch_scc1 L_stamp")
        st(4)
        e("  s_branch L_stamp")
    else:
        e("  s_endpgm")

    e("L_service:")
    e("  s_setprio 3")
    vC, vN, vKey, vRk = 32, 33, 35, 36
    vI, vPar = tC, tD
    e(f"  v_mov_b32 v{vRk}, 0")
    e(f"  v_mov_b32 v{vNON+2}, 0")
    e(f"  v_mov_b32 v{vNON+3}, 0")
    e(f"  v_mov_b32 v{t0}, {FLG}")
    e(f"  ds_write_b64 v{t0}, {vr(vNON+2,2)}")
    e(f"  ds_write_b64 v{t0}, {vr(vNON+2,2)} offset:8")
    e(f"  ds_write_b64 v{t0}, {vr(vNON+2,2)} offset:16")
    e(f"  ds_write_b64 v{t0}, {vr(vNON+2,2)} offset:24")
    e(f"  v_and_b32 v{vKey}, 31, v0")
    e(f"  v_lshlrev_b32 v{t0}, 2, v{vKey}")
    e(f"  s_movk_i32 s{sT2}, 2047")
    e("  s_waitcnt lgkmcnt(0)")
    if stamp:
        e(f"  s_mov_b32 s{sST}, s100")
    srd(sK, 12, 128)
    e(f"  buffer_load_dword v{vC}, v{t0}, {sr(sK,4)}, 0 offen")
    e(f"  s_memrealtime {sr(sNON,2)}")
    e("  s_barrier")
    srd(sBT, 10, 32 * 128 * 4)
    srd(sQ, 4, Q_BYTES)
    srd(sWS, sDBG + 2, 256 * SLOTB)
    if cyc:
        e(f"  s_add_u32 s{sH2}, s{sH}, {hx}")
        e(f"  s_and_b32 s{sH2}, s{sH2}, 3")
        e(f"  s_and_b32 s{sTmp}, s{sH}, 4")
        e(f"  s_or_b32 s{sH2}, s{sH2}, s{sTmp}")
    else:
        e(f"  s_xor_b32 s{sH2}, s{sH}, {hx}")
    e("  s_waitcnt vmcnt(0)")
    e(f"  v_add_u32 v{vN}, -1, v{vC}")
    e(f"  v_min_u32 v{vN}, s{sT2}, v{vN}")
    e(f"  v_max_i32 v{vC}, 0, v{vC}")
    e(f"  v_lshl_add_u32 v{vKey}, v{vN}, 5, v{vKey}")
    e("  s_nop 0")
    for g in range(4):
        for j in range(8):
            e(f"  v_readlane_b32 s{56+j}, v{vKey}, {8*g+j}")
        for j in range(8):
            e(f"  v_cmp_lt_u32 {sr(sM+2*j,2)}, s{56+j}, v{vKey}")
        for j in range(8):
            e(f"  v_addc_co_u32 v{vRk}, vcc, 0, v{vRk}, {sr(sM+2*j,2)}")
    e("  s_nop 0")
    e(f"  v_readlane_b32 s{sTmp}, v{vRk}, s{sB}")
    e("  s_nop 0")
    e(f"  s_sub_u32 s{sTmp}, 31, s{sTmp}")
    e(f"  v_cmp_eq_u32 vcc, s{sTmp}, v{vRk}")
    e(f"  v_readlane_b32 s{sNB}, v{vN}, s{sB}")
    e("  s_nop 3")
    e(f"  s_ff1_i32_b64 s{sB2}, vcc")
    e(f"  s_and_b32 s{sB2}, s{sB2}, 31")
    e(f"  v_cmp_eq_u32 vcc, 31, v{vRk}")
    e(f"  v_readlane_b32 s{sNB2}, v{vN}, s{sB2}")
    e(f"  v_readlane_b32 s{sCL2}, v{vC}, s{sB2}")
    e("  s_nop 2")
    e(f"  s_ff1_i32_b64 s{sTmp}, vcc")
    e(f"  v_readlane_b32 s{sEv}, v{vN}, s{sTmp}")
    split(sA1, sNB, sH, sTmp)
    e(f"  s_lshr_b32 s{sNB}, s{sNB}, 4")
    e(f"  s_add_u32 s{sNB}, s{sNB}, 1")
    split(sA2, sNB2, sH2, sTmp)
    e(f"  s_lshr_b32 s{sT5}, s{sNB2}, 5")
    e(f"  s_add_u32 s{sX2}, s{sT5}, 1")
    e(f"  s_sub_u32 s{sX2}, s{sX2}, s{sA2}")
    e(f"  s_lshr_b32 s{sNB2}, s{sNB2}, 4")
    e(f"  s_add_u32 s{sNB2}, s{sNB2}, 1")
    e(f"  s_add_u32 s{sLeft}, s{sA1}, s{sX2}")
    e(f"  s_add_u32 s{sOdd}, s{sLeft}, {E0}")
    e(f"  s_and_b32 s{sOdd}, s{sOdd}, {1 if odd else 0}")
    e(f"  s_add_u32 s{sOdd}, s{sOdd}, {E0}")
    e(f"  s_min_u32 s{sOdd}, s{sOdd}, s{sX2}")
    e(f"  s_sub_u32 s{sX2}, s{sX2}, s{sOdd}")
    e(f"  s_add_u32 s{sT5}, s{sA2}, s{sX2}")
    e(f"  s_add_u32 s{sRem}, s{sA2}, s{sX2}")
    e(f"  s_lshl_b32 s{sRem}, s{sRem}, 1")
    e(f"  s_min_u32 s{sRem}, s{sRem}, s{sNB2}")
    e(f"  s_lshr_b32 s{sEv}, s{sEv}, 6")
    e(f"  s_add_u32 s{sEv}, s{sEv}, {1 + max(0, max(dl))}")
    if go:
        e(f"  s_cmp_eq_u32 s2, 0")
        e(f"  s_movk_i32 s{sTmp}, {pfb}")
        e(f"  s_cselect_b32 s{sTmp}, {go}, s{sTmp}")
        e(f"  s_mul_i32 s{sTmp}, s{sLeft}, s{sTmp}")
        e(f"  s_lshr_b32 s{sEv}, s{sTmp}, 8")
    else:
        e(f"  s_mul_i32 s{sTmp}, s{sLeft}, {pf}")
        e(f"  s_lshr_b32 s{sTmp}, s{sTmp}, 8")
        e(f"  s_min_u32 s{sEv}, s{sEv}, s{sTmp}" if cap else f"  s_mov_b32 s{sEv}, s{sTmp}")
    e(f"  s_add_u32 s{sEv}, s{sEv}, 1")
    e(f"  s_lshr_b32 s{sEv}, s{sEv}, 1")
    e(f"  s_lshl_b32 s{sT2}, s{sB}, 9")
    e(f"  s_lshl_b32 s{sT3}, s{sB2}, 9")
    e(f"  s_lshl_b32 s{sX}, s{sB2}, 3")
    e(f"  s_add_u32 s{sX}, s{sX}, s{sH2}")
    e(f"  s_lshl_b32 s{sOB}, s{sX}, 12")
    LB = 40
    RC = S
    for w in range(2):
        e(f"  s_add_u32 s{sN2}, s{sA1}, {1-w}")
        e(f"  s_lshr_b32 s{sN2}, s{sN2}, 1")
        e(f"  s_add_u32 s{sTmp}, s{sA1}, {w}")
        e(f"  s_and_b32 s{sTmp}, s{sTmp}, 1")
        e(f"  s_sub_u32 s{sT4}, s{sX2}, s{sTmp}")
        e(f"  s_add_u32 s{sT4}, s{sT4}, 1")
        e(f"  s_lshr_b32 s{sT4}, s{sT4}, 1")
        e(f"  v_mov_b32 v{RC+2+2*w}, s{sT4}")
        if w == 0:
            e(f"  s_cmp_gt_u32 s{sEv}, s{sN2}")
            e(f"  s_cselect_b32 s{sPh}, 1, 0")
            e(f"  s_add_u32 s{sT4}, s{sT4}, s{sN2}")
            e(f"  s_sub_i32 s{sEv}, s{sT4}, s{sEv}")
            e(f"  s_add_u32 s{sEv}, s{sEv}, 0x1000")
        else:
            e(f"  s_add_u32 s{sIdx}, s{sOdd}, {xlead}")
            e(f"  s_min_u32 s{sT4}, s{sT4}, s{sIdx}")
            e(f"  s_add_u32 s{sT4}, s{sT4}, 0x1000")
            e(f"  s_lshl_b32 s{sT4}, s{sT4}, 16")
            e(f"  s_or_b32 s{sEv}, s{sEv}, s{sT4}")
        e(f"  s_add_u32 s{sTmp}, s{sTmp}, s{sA2}")
        e(f"  s_lshl_b32 s{sT4}, s{sTmp}, 5")
        e(f"  s_sub_i32 s{sT4}, s{sCL2}, s{sT4}")
        e(f"  v_mov_b32 v{RC+3+2*w}, s{sT4}")
        e(f"  s_lshl_b32 s{sT4}, s{sN2}, 1")
        e(f"  s_sub_u32 s{sTmp}, s{sTmp}, s{sT4}")
        e(f"  v_cmp_gt_u32 vcc, s{sN2}, v{vI}")
        e(f"  v_mov_b32 v{t0}, s{sTmp}")
        e(f"  v_mov_b32 v{vAl}, s{sRem}")
        e(f"  v_mov_b32 v{vAl+1}, {w}")
        e(f"  v_cndmask_b32 v{t0}, v{t0}, v{vAl+1}, vcc")
        e(f"  v_lshl_add_u32 v{t0}, v{vI}, 1, v{t0}")
        e(f"  v_lshl_add_u32 v{LB+w}, v{t0}, 1, v{vPar}")
        e(f"  v_mov_b32 v{vAl+1}, s{sNB}")
        e(f"  v_cndmask_b32 v{LB+8+w}, v{vAl}, v{vAl+1}, vcc")
        e(f"  v_mov_b32 v{vAl}, s{sT3}")
        e(f"  v_mov_b32 v{vAl+1}, s{sT2}")
        e(f"  v_cndmask_b32 v{t0}, v{vAl}, v{vAl+1}, vcc")
        e(f"  v_lshl_add_u32 v{t0}, v{LB+w}, 2, v{t0}")
        e(f"  buffer_load_dword v{LB+4+w}, v{t0}, {sr(sBT,4)}, 0 offen")
        e(f"  v_mov_b32 v{vAl}, s{sH2}")
        e(f"  v_mov_b32 v{vAl+1}, s{sH}")
        e(f"  v_cndmask_b32 v{LB+12+w}, v{vAl}, v{vAl+1}, vcc")
        e(f"  v_lshlrev_b32 v{LB+12+w}, 8, v{LB+12+w}")
    e(f"  s_lshl_b32 s{sTmp}, s{sT5}, 1")
    e(f"  v_add_u32 v{LB+2}, s{sTmp}, v0")
    e(f"  v_lshlrev_b32 v{t0}, 2, v{LB+2}")
    e(f"  buffer_load_dword v{LB+6}, v{t0}, {sr(sBT,4)}, s{sT3} offen")
    e(f"  v_mov_b32 v{LB+10}, s{sNB2}")
    e(f"  s_lshl_b32 s{sTmp}, s{sH2}, 8")
    e(f"  v_mov_b32 v{LB+14}, s{sTmp}")
    e(f"  v_mov_b32 v{RC+6}, s{sOdd}")
    e(f"  s_lshl_b32 s{sTmp}, s{sT5}, 5")
    e(f"  s_sub_i32 s{sTmp}, s{sCL2}, s{sTmp}")
    e(f"  v_mov_b32 v{RC+7}, s{sTmp}")
    for kk in range(4):
        e(f"  s_mov_b32 m0, {Q2 + kk*960}")
        e("  s_nop 0")
        e(f"  buffer_load_dwordx4 v{t1}, {sr(sQ,4)}, s{sOB} offen offset:{kk*64} lds")
    e(f"  v_mov_b32 v{RC}, s{sOB}")
    e(f"  v_mov_b32 v{RC+1}, s{sEv}")
    e(f"  v_mov_b32 v{vKey}, {REC}")
    e(f"  ds_write_b128 v{vKey}, {vr(RC,4)}")
    e(f"  ds_write_b128 v{vKey}, {vr(RC+4,4)} offset:16")
    e(f"  v_lshlrev_b32 v{t0}, 2, v0")
    e(f"  v_add_u32 v{t0}, {LST}, v{t0}")
    e(f"  v_mov_b32 v{vAl}, {hex(OOB)}")
    for w in range(3):
        e(f"  v_cmp_lt_u32 vcc, v{LB+w}, v{LB+8+w}")
        e(f"  s_waitcnt vmcnt({4+2-w})")
        e(f"  v_lshl_add_u32 v{LB+4+w}, v{LB+4+w}, 15, v{LB+12+w}")
        e(f"  v_cndmask_b32 v{LB+4+w}, v{vAl}, v{LB+4+w}, vcc")
        e(f"  ds_write_b32 v{t0}, v{LB+4+w} offset:{w*256}")
    e(f"  v_mov_b32 v{vAl}, 1")
    e("  s_waitcnt vmcnt(0) lgkmcnt(0)" if nob1 else "  s_waitcnt lgkmcnt(0)")
    e(f"  ds_write_b32 v{vKey}, v{vAl} offset:32")
    st(1)
    e(f"  s_or_b32 s{sNON}, s{sNON}, 1")
    e(f"  v_mov_b32 v{vNON}, s{sNON}")
    e(f"  v_mov_b32 v{vNON+1}, s{sNON+1}")
    e(f"  s_mov_b64 {sr(sM,2)}, exec")
    e(f"  s_cmp_lg_u32 s2, 0")
    e("  s_cbranch_scc1 L_nocas")
    e("  s_mov_b64 exec, 1")
    e(f"  global_atomic_cmpswap_x2 v{vNON+2}, {vr(vNON,4)}, {sr(sDBG,2)} sc1")
    e(f"  s_mov_b64 exec, {sr(sM,2)}")
    e("L_nocas:")
    e(f"  v_mul_u32_u24 v{t0}, 144, v{tA}")
    e(f"  v_mul_u32_u24 v{t1}, 2304, v{tB}")
    e(f"  v_add_u32 v{t0}, v{t0}, v{t1}")
    e(f"  v_add_u32 v{t0}, {FB}, v{t0}")
    e(f"  v_lshlrev_b32 v{t1}, 4, v{tA}")
    e(f"  v_add_u32 v{t1}, {FST}, v{t1}")
    e(f"  v_lshlrev_b32 v{tC}, 4, v0")
    e(f"  v_lshlrev_b32 v{tD}, 2, v0")
    e(f"  s_mul_i32 s{sT2}, s2, {SLOTB}")
    e(f"  s_mul_i32 s{sT3}, s{sX}, {SLOTB}")
    if nob1:
        e("L_fwait:")
        e("  s_sleep 2")
        e(f"  ds_read_b96 {vr(32,3)}, v{vKey} offset:48")
        e("  s_waitcnt lgkmcnt(0)")
        e(f"  v_min_u32 v32, v32, v33")
        e(f"  v_min_u32 v32, v32, v34")
        e("  s_nop 0")
        e(f"  v_readfirstlane_b32 s{sTmp}, v32")
        e("  s_nop 0")
        e(f"  s_cmp_eq_u32 s{sTmp}, 0")
        e("  s_cbranch_scc1 L_fwait")
        e("  s_waitcnt vmcnt(0)")
    else:
        e("  s_waitcnt vmcnt(0) lgkmcnt(0)")
        e("  s_barrier")
    if nohand:
        e("  s_branch L_b2")
    e(f"  global_load_dwordx2 {vr(vNON+4,2)}, v{vNON+2}, {sr(sDBG,2)} sc1")
    ST = 32
    R = 40
    PB = 72
    e(f"  ds_read_b128 {vr(ST,4)}, v{t1}")
    for ee in range(7):
        for u in range(NS):
            e(f"  ds_read_b128 {vr(PB+8*ee+4*u,4)}, v{t0} offset:{u*FPART+16*ee}")
    e(f"  s_waitcnt lgkmcnt(14)")
    for u in range(NS):
        e(f"  ds_read_b128 {vr(PB+8*7+4*u,4)}, v{t0} offset:{u*FPART+16*7}") if u == 0 else None
    e(f"  v_max_f32 v{vMC}, v{ST}, v{ST+2}")
    for u in range(NS):
        e(f"  v_sub_f32 v{ST+2*u}, v{ST+2*u}, v{vMC}")
    for u in range(NS):
        e(f"  v_exp_f32 v{ST+2*u}, v{ST+2*u}")
    e(f"  s_waitcnt lgkmcnt(13)")
    e(f"  ds_read_b128 {vr(PB+8*7+4,4)}, v{t0} offset:{FPART+16*7}")
    e(f"  v_mul_f32 v{vL}, v{ST}, v{ST+1}")
    e(f"  v_fmac_f32 v{vL}, v{ST+2}, v{ST+3}")
    for ee in range(8):
        e(f"  s_waitcnt lgkmcnt({14-2*ee})")
        for i in range(4):
            e(f"  v_mul_f32 v{R+4*ee+i}, v{ST}, v{PB+8*ee+i}")
        for i in range(4):
            e(f"  v_fmac_f32 v{R+4*ee+i}, v{ST+2}, v{PB+8*ee+4+i}")
    e("  s_waitcnt vmcnt(0)")
    e(f"  v_readfirstlane_b32 s{sT4}, v{vNON+4}")
    e(f"  v_readfirstlane_b32 s{sT5}, v{vNON+5}")
    e("  s_nop 0")
    e(f"  s_cmp_lg_u32 s{sT4}, 0")
    e("  s_cbranch_scc1 L_havenonce")
    e("  s_mov_b64 exec, 1")
    e(f"  global_atomic_cmpswap_x2 {vr(vNON+4,2)}, v{vNON+2}, {vr(vNON,4)}, {sr(sDBG,2)} sc0 sc1")
    e(f"  s_mov_b64 exec, {sr(sM,2)}")
    e("  s_waitcnt vmcnt(0)")
    e(f"  v_readfirstlane_b32 s{sT4}, v{vNON+4}")
    e(f"  v_readfirstlane_b32 s{sT5}, v{vNON+5}")
    e("  s_nop 0")
    e(f"  s_cmp_lg_u32 s{sT4}, 0")
    e(f"  s_cselect_b32 s{sT4}, s{sT4}, s{sNON}")
    e(f"  s_cselect_b32 s{sT5}, s{sT5}, s{sNON+1}")
    e("L_havenonce:")
    e(f"  s_mov_b32 s{sNON}, s{sT4}")
    e(f"  s_mov_b32 s{sNON+1}, s{sT5}")
    e(f"  v_mov_b32 v{vNON}, s{sT4}")
    e(f"  v_mov_b32 v{vNON+1}, s{sT5}")
    e(f"  s_cmp_eq_u32 s{sPh}, 0")
    e("  s_cbranch_scc1 L_publish")
    e(f"  v_mov_b32 v{t0}, {FLG}")
    if go:
        e(f"  s_add_u32 s{sT4}, s{sT2}, 8832")
        e("  s_mov_b64 exec, 1")
    e("L_trig:")
    e("  s_sleep 2")
    if go:
        e(f"  buffer_load_dwordx2 {vr(vNON+4,2)}, v{vNON+2}, {sr(sWS,4)}, s{sT4} offen sc1")
    e(f"  ds_read_b32 v{t1}, v{t0} offset:4")
    if go:
        e("  s_waitcnt vmcnt(0) lgkmcnt(0)")
        e(f"  v_readfirstlane_b32 s{sN2}, v{vNON+4}")
        e(f"  v_readfirstlane_b32 s{sN2+1}, v{vNON+5}")
        e(f"  v_readfirstlane_b32 s{sTmp}, v{t1}")
        e(f"  s_cmp_eq_u64 {sr(sN2,2)}, {sr(sNON,2)}")
        e("  s_cbranch_scc1 L_trigd")
    else:
        e("  s_waitcnt lgkmcnt(0)")
        e(f"  v_readfirstlane_b32 s{sTmp}, v{t1}")
        e("  s_nop 0")
    e(f"  s_cmp_eq_u32 s{sTmp}, 0")
    e("  s_cbranch_scc1 L_trig")
    if go:
        e("L_trigd:")
        e(f"  s_mov_b64 exec, {sr(sM,2)}")
    e("L_publish:")
    st(1)
    if go:
        e(f"  s_cmp_lg_u32 s2, 0")
        e("  s_cbranch_scc1 L_nogo")
        e(f"  s_movk_i32 s{sTmp}, {SLOTB}")
        e(f"  v_mul_lo_u32 v{t0}, v0, s{sTmp}")
        for k in range(4):
            e(f"  s_mov_b32 s{sTmp}, {64*k*SLOTB + 8832}")
            e(f"  buffer_store_dwordx2 {vr(vNON,2)}, v{t0}, {sr(sWS,4)}, s{sTmp} offen sc1")
        e("L_nogo:")
    e(f"  s_add_u32 s{sT4}, s{sT2}, 4096")
    e(f"  s_add_u32 s{sT5}, s{sT2}, 8192")
    for ee in range(8):
        if 'store' not in skip and not ('half' in skip and ee >= 4):
            e(f"  buffer_store_dwordx4 {vr(R+4*ee,4)}, v{tC}, {sr(sWS,4)}, s{sT2 if ee < 4 else sT4} offen offset:{(ee&3)*1024} sc1")
    if 'store' not in skip:
        e(f"  buffer_store_dword v{vMC}, v{tD}, {sr(sWS,4)}, s{sT5} offen sc1")
        e(f"  buffer_store_dword v{vL}, v{tD}, {sr(sWS,4)}, s{sT5} offen offset:256 sc1")
    e(f"  s_add_u32 s{sT4}, s{sT3}, 8704")
    if 'wait' not in skip:
        e("  s_waitcnt vmcnt(0)")
    e("  s_mov_b64 exec, 1")
    if 'flag' not in skip:
        e(f"  buffer_store_dwordx2 {vr(vNON,2)}, v{vNON+2}, {sr(sWS,4)}, s{sT5} offen offset:512 sc1")
    e(f"  s_mov_b32 s{sT5}, 0x40000")
    st(2)
    if 'poll' in skip:
        e("  s_branch L_got")
    if pipe:
        PR = 72
        for k in range(pipe - 1):
            e(f"  buffer_load_dwordx2 {vr(PR+2*k,2)}, v{vNON+2}, {sr(sWS,4)}, s{sT4} offen sc1")
            e(f"  s_sleep {sleep}")
        e("L_poll:")
        for k in range(pipe):
            kn = (k + pipe - 1) % pipe
            e(f"  buffer_load_dwordx2 {vr(PR+2*kn,2)}, v{vNON+2}, {sr(sWS,4)}, s{sT4} offen sc1")
            e(f"  s_waitcnt vmcnt({pipe-1})")
            e(f"  v_readfirstlane_b32 s{sN2}, v{PR+2*k}")
            e(f"  v_readfirstlane_b32 s{sN2+1}, v{PR+2*k+1}")
            e("  s_nop 0")
            e(f"  s_cmp_eq_u64 {sr(sN2,2)}, {sr(sNON,2)}")
            e("  s_cbranch_scc1 L_got")
            e(f"  s_sleep {sleep}")
        e(f"  s_sub_u32 s{sT5}, s{sT5}, 1")
        e(f"  s_cmp_lg_u32 s{sT5}, 0")
        e("  s_cbranch_scc1 L_poll")
    else:
        e("L_poll:")
        e(f"  buffer_load_dwordx2 {vr(vNON+4,2)}, v{vNON+2}, {sr(sWS,4)}, s{sT4} offen sc1")
        e("  s_waitcnt vmcnt(0)")
        e(f"  v_readfirstlane_b32 s{sN2}, v{vNON+4}")
        e(f"  v_readfirstlane_b32 s{sN2+1}, v{vNON+5}")
        e("  s_nop 0")
        e(f"  s_cmp_eq_u64 {sr(sN2,2)}, {sr(sNON,2)}")
        e("  s_cbranch_scc1 L_got")
        e(f"  s_sleep {sleep}")
        e(f"  s_sub_u32 s{sT5}, s{sT5}, 1")
        e(f"  s_cmp_lg_u32 s{sT5}, 0")
        e("  s_cbranch_scc1 L_poll")
    e("L_got:")
    e(f"  s_mov_b64 exec, {sr(sM,2)}")
    st(3)
    if 'pload' in skip:
        e("  s_branch L_b2")
    e(f"  s_add_u32 s{sT4}, s{sT3}, 8192")
    e(f"  buffer_load_dword v{vMC}, v{tD}, {sr(sWS,4)}, s{sT4} offen sc1")
    e(f"  buffer_load_dword v{vL}, v{tD}, {sr(sWS,4)}, s{sT4} offen offset:256 sc1")
    e(f"  s_add_u32 s{sT4}, s{sT3}, 4096")
    for ee in range(8):
        e(f"  buffer_load_dwordx4 {vr(R+4*ee,4)}, v{tC}, {sr(sWS,4)}, s{sT3 if ee < 4 or 'half' in skip else sT4} offen offset:{(ee&3)*1024} sc1")
    e(f"  v_mul_u32_u24 v{t0}, {ROWB}, v{tA}")
    e(f"  v_lshl_add_u32 v{t0}, v{tB}, 7, v{t0}")
    e(f"  v_add_u32 v{t0}, {GB + 3*GPART}, v{t0}")
    e(f"  v_lshlrev_b32 v{t1}, 5, v{tA}")
    e(f"  v_add_u32 v{t1}, {GST + 24}, v{t1}")
    e("  s_waitcnt vmcnt(8)")
    e(f"  ds_write_b64 v{t1}, {vr(vMC,2)}")
    for ee in range(8):
        e(f"  s_waitcnt vmcnt({7-ee})")
        e(f"  ds_write_b128 v{t0}, {vr(R+4*ee,4)} offset:{16*ee}")
    st(4)
    e("  s_branch L_b2")
    if stamp:
        e("L_stamp:")
        e(f"  s_lshl_b32 s{sTmp}, s2, 2")
        e(f"  s_add_u32 s{sTmp}, s{sTmp}, s{sW}")
        e(f"  s_lshl_b32 s{sTmp}, s{sTmp}, 5")
        e(f"  s_add_u32 s{sTmp}, s{sTmp}, {256*SLOTB}")
        e(f"  v_mov_b32 v{t0}, s{sTmp}")
        for i in range(5):
            e(f"  v_mov_b32 v{S+i}, s{sST+i}")
        e("  s_getreg_b32 s100, hwreg(HW_REG_XCC_ID)")
        e(f"  v_mov_b32 v{S+5}, s100")
        e(f"  v_mov_b32 v{S+6}, s{sA1}")
        e("  s_getreg_b32 s100, hwreg(HW_REG_HW_ID)")
        e(f"  v_mov_b32 v{S+7}, s100")
        e("  s_mov_b64 exec, 1")
        e(f"  global_store_dwordx4 v{t0}, {vr(S,4)}, {sr(sDBG+2,2)}")
        e(f"  global_store_dwordx4 v{t0}, {vr(S+4,4)}, {sr(sDBG+2,2)} offset:16")
    e("L_end:")
    e("  s_endpgm")
    e('.section .rodata,"a"')
    e(".p2align 6")
    e(f".amdhsa_kernel {NAME}")
    e(f"  .amdhsa_next_free_vgpr {NV}")
    e("  .amdhsa_next_free_sgpr 102")
    e(f"  .amdhsa_accum_offset {(NV+3)//4*4}")
    e("  .amdhsa_group_segment_fixed_size 0")
    e("  .amdhsa_kernarg_size 64")
    e("  .amdhsa_user_sgpr_count 2")
    e("  .amdhsa_user_sgpr_kernarg_segment_ptr 1")
    e("  .amdhsa_system_sgpr_workgroup_id_x 1")
    e(".end_amdhsa_kernel")
    return "\n".join(L) + "\n"


if __name__ == "__main__":
    ap = argparse.ArgumentParser()
    ap.add_argument("-o", required=True)
    ap.add_argument("--kfl", default="nt")
    ap.add_argument("--vfl", default="nt")
    ap.add_argument("--stamp", action="store_true")
    ap.add_argument("--hx", type=int, default=1)
    ap.add_argument("--sleep", type=int, default=8)
    ap.add_argument("--nohand", action="store_true")
    ap.add_argument("--noodd", action="store_true")
    ap.add_argument("--pf", type=int, default=172)
    ap.add_argument("--e0", type=int, default=0)
    ap.add_argument("--ldspad", type=int, default=0)
    ap.add_argument("--order", type=int, default=0)
    ap.add_argument("--skip", default="")
    ap.add_argument("--xlead", type=int, default=0)
    ap.add_argument("--cyc", action="store_true")
    ap.add_argument("--go", type=int, default=0)
    ap.add_argument("--b1", action="store_true")
    ap.add_argument("--pipe", type=int, default=0)
    ap.add_argument("--nocap", action="store_true")
    ap.add_argument("--pfb", type=int, default=216)
    ap.add_argument("--dl", default="0,0,0,0")
    a = ap.parse_args()
    open(a.o, "w").write(gen(kfl=a.kfl, vfl=a.vfl, stamp=a.stamp, hx=a.hx, sleep=a.sleep, nohand=a.nohand, pf=a.pf, odd=not a.noodd, E0=a.e0, ldspad=a.ldspad, order=a.order, skip=a.skip, xlead=a.xlead, cyc=a.cyc, go=a.go, nob1=not a.b1, pipe=a.pipe, cap=not a.nocap, pfb=a.pfb, dl=tuple(int(x) for x in a.dl.split(','))))
```

```python
import sys, struct, math, argparse

NAME = "standalone__paged_block_table_kv_pagedattention__sampling_kernel"
HEADER = open("standalone__paged_block_table_kv_pagedattention__sampling.s.ref").read().split("; Override launch")[0]

KV_BYTES = 4100 * 16 * 8 * 128 * 2
Q_BYTES = 32 * 32 * 4 * 128 * 2
OOB = 0x10000000
SLOTB = 9216


DOC = """
Paged GQA decode attention, one workgroup (4 waves) per CU.  The kernel is HBM bound, so it is organised around
keeping about 32 KB of K/V loads in flight per CU and giving every CU the same number of 32-position tiles.
  sequence (b,h) = 16 query rows (4 q heads x 4 tokens) against kv head h of batch b, ceil(n/32) tiles.
  workgroup (b,h): phase 1 = first half of its own sequence -> partial (m, l, O) handed over through d_ws;
                   phase 2 = second half of sequence (b', h^1), b' = batch whose length rank mirrors b's;
                   it merges the partial of workgroup (b', h^1) and writes that sequence's output.
  waves 0,1: stream tiles.  K: coalesced DMA into LDS (xor swizzle) -> MFMA A operand; S^T = K Q^T; online
             softmax with the running row max; V: coalesced loads to VGPRs, v_perm pairs -> O^T += V^T P^T.
  wave 2:    takes the last tiles of phase 2.   wave 3: service wave (ranks, tile lists, hand-off).
  hand-off:  write-through stores, drained, then a flag = launch nonce (first-come clock value agreed on through
             d_debug, which starts at zero); the consumer polls the flag and reads with the same scope.
  positions >= context_len get the reference's -1e9 score; context_len <= 0 averages all 2048 positions.
"""


def f32bits(x):
    return struct.unpack("<I", struct.pack("<f", x))[0]


def gen(kfl="nt", vfl="nt", stamp=False, hx=1, sleep=8, nohand=False, pf=172, odd=True, E0=0, ldspad=0, order=0, skip='', xlead=0, cyc=False, dl=(0,0,0,0), go=0, pfb=216, cap=True, pipe=0, nob1=True):
    TAB = sum(((d + 8) & 15) << (4 * c) for c, d in enumerate(dl))
    skip = set(skip.split(','))
    L = []
    e = L.append
    NS = 2
    NP = 4
    KFL = (" " + kfl.replace("+", " ")) if kfl else ""
    VFL = (" " + vfl.replace("+", " ")) if vfl else ""
    vKo, vKr, vV0, vV1, vBT, v4r = 1, 5, 9, 10, 11, 12
    vNON = 14
    vMC, vL, vAl, vMCn = 20, 21, 22, 24
    t0, t1, tA, tB, tC, tD = 25, 26, 27, 28, 29, 30
    Q, O, S, P, KT, VT, VB = 32, 48, 80, 88, 92, 124, 156
    NV = 188
    sK, sV, sBT, sQ, sO, sWS = 16, 20, 24, 28, 32, 36
    (sB, sH, sW, sCL, sNB, sLeft, sIdx, sO0, sO1, sRem, sC, sSelLo, sSelHi, sTmp, sNeg, sKB,
     sN2, sRem2, sOB, sPh, sX, sA1, sT2, sT3, sT4, sT5, sB2, sH2, sA2, sNB2, sX2, sCL2) = range(40, 72)
    sM = 72
    sDBG = 88
    sST = 92
    sEv = 97
    sNON = 98
    sRET = 98
    sOdd = 3
    sDec = 3
    KSLOT = 8192
    FB = 3 * KSLOT
    FPART = 9216
    FST = FB + NS * FPART
    GB = FST + 16 * 16
    ROWB = 528
    GPART = 16 * ROWB
    GST = GB + NP * GPART
    LST = GB + 3 * GPART
    Q2 = GST + 16 * 32
    REC = Q2 + 4096
    FLG = REC + 32
    LDS = max(FLG + 32, ldspad)

    def vr(a, n):
        return f"v[{a}:{a+n-1}]"

    def sr(a, n):
        return f"s[{a}:{a+n-1}]"

    def srd(r, lo, nbytes):
        e(f"  s_mov_b32 s{r}, s{lo}")
        e(f"  s_mov_b32 s{r+1}, s{lo+1}")
        e(f"  s_mov_b32 s{r+2}, {nbytes}")
        e(f"  s_mov_b32 s{r+3}, 0x00020000")

    def st(i):
        if stamp:
            e(f"  s_memrealtime s[100:101]")
            e(f"  s_waitcnt lgkmcnt(0)")
            e(f"  s_mov_b32 s{sST+i}, s100")

    def loadKV():
        loadK()
        loadV()

    def loadK():
        for T in range(2):
            e(f"  s_add_u32 m0, s{sKB}, {T*4096}")
            e(f"  s_nop 0")
            for i in range(4):
                e(f"  buffer_load_dwordx4 v{vKo+i}, {sr(sK,4)}, s{sO0+T} offen offset:{i*1024}{KFL} lds")

    def loadV():
        for j in range(8):
            T, i = j >> 2, j & 3
            e(f"  buffer_load_dwordx4 {vr(VB+4*j,4)}, v{vV0 + (i>>1)}, {sr(sV,4)}, s{sO0+T} offen offset:{(i&1)*2048}{VFL}")

    def next_offsets():
        e(f"  v_readlane_b32 s{sO0}, v{vBT}, s{sIdx}")
        e(f"  s_add_u32 s{sIdx}, s{sIdx}, 1")
        e(f"  v_readlane_b32 s{sO1}, v{vBT}, s{sIdx}")
        e(f"  s_add_u32 s{sIdx}, s{sIdx}, 1")

    def reduce_l():
        for sw in ("32", "16"):
            e(f"  v_mov_b32 v{t1}, v{vL}")
            e("  s_nop 1")
            e(f"  v_permlane{sw}_swap_b32 v{vL}, v{t1}")
            e("  s_nop 1")
            e(f"  v_add_f32 v{vL}, v{vL}, v{t1}")

    def init_state():
        for i in range(32):
            e(f"  v_mov_b32 v{O+i}, 0")
        e(f"  v_mov_b32 v{vMC}, 0xff7fffff")
        e(f"  v_mov_b32 v{vL}, 0")

    def split(dst, nm1, h, tmp):
        e(f"  s_lshr_b32 s{dst}, s{nm1}, 6")
        e(f"  s_add_u32 s{dst}, s{dst}, 1")
        if any(dl):
            e(f"  s_lshr_b32 s{tmp}, s6, 8")
            e(f"  s_add_u32 s{tmp}, s{tmp}, s{h}")
            e(f"  s_and_b32 s{tmp}, s{tmp}, 3")
            e(f"  s_lshl_b32 s{tmp}, s{tmp}, 2")
            e(f"  s_lshr_b32 s{tmp}, {TAB}, s{tmp}")
            e(f"  s_and_b32 s{tmp}, s{tmp}, 15")
            e(f"  s_add_u32 s{dst}, s{dst}, s{tmp}")
            e(f"  s_sub_i32 s{dst}, s{dst}, 8")
            e(f"  s_max_i32 s{dst}, s{dst}, 1")
            e(f"  s_lshr_b32 s{tmp}, s{nm1}, 5")
            e(f"  s_add_u32 s{tmp}, s{tmp}, 1")
            e(f"  s_min_u32 s{dst}, s{dst}, s{tmp}")

    e(HEADER.rstrip("\n"))
    e(f"; @launch grid=(256,1,1) block=(256,1,1) lds={LDS}")
    for line in DOC.strip("\n").split("\n"):
        e(("; " + line).rstrip())
    e('.amdgcn_target "amdgcn-amd-amdhsa--gfx950"')
    e(".text")
    e(f".globl {NAME}")
    e(".p2align 8")
    e(f".type {NAME},@function")
    e(f"{NAME}:")
    e("  s_cmp_ge_u32 s2, 256")
    e("  s_cbranch_scc1 L_end")
    if stamp:
        e("  s_memrealtime s[100:101]")
    e("  s_load_dwordx8 s[4:11], s[0:1], 0")
    e("  s_load_dwordx4 s[12:15], s[0:1], 32")
    e(f"  s_load_dwordx4 {sr(sDBG,4)}, s[0:1], 48")
    e(f"  v_lshrrev_b32 v{t0}, 6, v0")
    e(f"  v_and_b32 v0, 63, v0")
    e(f"  v_readfirstlane_b32 s{sW}, v{t0}")
    e(f"  s_lshr_b32 s{sB}, s2, 3")
    e(f"  s_and_b32 s{sH}, s2, 7")
    e(f"  v_and_b32 v{tA}, 15, v0")
    e(f"  v_lshrrev_b32 v{tB}, 4, v0")
    e(f"  v_lshrrev_b32 v{tC}, 1, v0")
    e(f"  v_and_b32 v{tD}, 1, v0")
    e(f"  v_lshlrev_b32 v{t1}, 8, v{tA}")
    e(f"  v_lshl_add_u32 v{t1}, v{tB}, 4, v{t1}")
    e(f"  s_cmp_eq_u32 s{sW}, 3")
    e("  s_cbranch_scc1 L_service")

    e(f"  s_lshl_b32 s{sIdx}, s{sW}, 1")
    e(f"  v_lshlrev_b32 v{t0}, 2, v{tC}")
    e(f"  v_add3_u32 v{tC}, v{t0}, v{tD}, s{sIdx}")
    e(f"  s_lshl_b32 s{sNB}, s{sB}, 9")
    e(f"  v_lshl_add_u32 v{t0}, v{tC}, 2, s{sNB}")
    e(f"  s_lshl_b32 s{sRem}, s{sB}, 2")
    e(f"  s_lshl_b32 s{sT2}, s2, 12")
    e(f"  s_lshl_b32 s{sKB}, s{sW}, 13")
    e(f"  s_lshl_b32 s{sT3}, s{sH}, 8")
    for i in range(4):
        e(f"  v_add_u32 v{vV0}, {4*i}, v{tB}")
        e(f"  v_xor_b32 v{vV1}, v{tA}, v{vV0}")
        e(f"  v_lshlrev_b32 v{vV0}, 11, v{vV0}")
        e(f"  v_lshl_add_u32 v{vKo+i}, v{vV1}, 4, v{vV0}")
        if i:
            e(f"  v_subrev_u32 v{vKo+i}, {i*1024}, v{vKo+i}")
    e(f"  v_lshlrev_b32 v{vV0}, 13, v{tB}")
    e(f"  v_lshl_add_u32 v{vV0}, v{tA}, 4, v{vV0}")
    e(f"  v_add_u32 v{vV1}, 0x1000, v{vV0}")
    e(f"  s_mov_b32 s{sBT+2}, {32*128*4}")
    e(f"  s_mov_b32 s{sBT+3}, 0x00020000")
    e("  s_waitcnt lgkmcnt(0)")
    if stamp:
        e(f"  s_mov_b32 s{sST}, s100")
    e(f"  s_mov_b32 s{sBT}, s10")
    e(f"  s_mov_b32 s{sBT+1}, s11")
    e(f"  buffer_load_dword v{vBT}, v{t0}, {sr(sBT,4)}, 0 offen")
    e(f"  s_load_dword s{sCL}, s[12:13], s{sRem}")
    srd(sQ, 4, Q_BYTES)
    for kk in range(4):
        e(f"  buffer_load_dwordx4 {vr(Q+4*kk,4)}, v{t1}, {sr(sQ,4)}, s{sT2} offen offset:{kk*64}")
    srd(sK, 6, KV_BYTES)
    srd(sV, 8, KV_BYTES)
    e(f"  s_mov_b32 s{sPh}, 0")
    e(f"  s_mov_b32 s{sEv}, 1")
    e(f"  s_mov_b32 s{sIdx}, 0")
    e("  s_barrier")
    e(f"  s_cmp_eq_u32 s{sW}, 2")
    e("  s_cbranch_scc1 L_consts")
    e("  s_waitcnt vmcnt(4)")
    e(f"  v_lshlrev_b32 v{vBT}, 15, v{vBT}")
    e(f"  v_add_u32 v{vBT}, s{sT3}, v{vBT}")
    e("  s_nop 0")
    e("L_issue:")
    next_offsets()
    e("  s_nop 1")
    loadKV()
    e(f"  s_cmp_lg_u32 s{sPh}, 0")
    e("  s_cbranch_scc1 L_loop")
    e(f"  s_cmp_eq_u32 s{sEv}, 1")
    e("  s_cbranch_scc0 L_phase_end")
    e("L_consts:")
    e(f"  v_lshlrev_b32 v{tD}, 8, v{tA}")
    e(f"  v_add_u32 v{tD}, s{sKB}, v{tD}")
    for kk in range(4):
        e(f"  v_add_u32 v{t0}, {4*kk}, v{tB}")
        e(f"  v_xor_b32 v{t0}, v{tA}, v{t0}")
        e(f"  v_lshl_add_u32 v{vKr+kk}, v{t0}, 4, v{tD}")
    e(f"  v_lshlrev_b32 v{v4r}, 2, v{tB}")
    e(f"  s_mov_b32 s{sC}, {hex(f32bits(128 ** -0.5 * math.log2(math.e)))}")
    e(f"  s_mov_b32 s{sSelLo}, 0x05040100")
    e(f"  s_mov_b32 s{sSelHi}, 0x07060302")
    e(f"  s_mov_b32 s{sNeg}, {hex(f32bits(-1e9 / (128 ** -0.5)))}")
    init_state()
    e("  s_waitcnt lgkmcnt(0)")
    e(f"  s_sub_u32 s{sNB}, s{sCL}, 1")
    e(f"  s_min_u32 s{sNB}, s{sNB}, 2047")
    e(f"  s_max_i32 s{sCL}, s{sCL}, 0")
    split(sA1, sNB, sH, sTmp)
    e(f"  s_sub_u32 s{sLeft}, s{sA1}, s{sW}")
    e(f"  s_add_u32 s{sLeft}, s{sLeft}, 1")
    e(f"  s_lshr_b32 s{sLeft}, s{sLeft}, 1")
    e(f"  s_lshl_b32 s{sTmp}, s{sW}, 5")
    e(f"  s_sub_i32 s{sRem}, s{sCL}, s{sTmp}")
    e(f"  s_cmp_eq_u32 s{sW}, 2")
    e(f"  s_cselect_b32 s{sLeft}, 0, s{sLeft}")
    e(f"  s_cselect_b32 s{sDec}, 32, 64")
    st(1)
    e(f"  s_cmp_lg_u32 s{sLeft}, 0")
    e("  s_cbranch_scc1 L_loop")
    e("  s_waitcnt vmcnt(0)")
    e(f"  s_call_b64 {sr(sRET,2)}, L_getinfo")
    e(f"  s_mov_b32 s{sIdx}, 0")
    e(f"  s_cmp_eq_u32 s{sW}, 2")
    e("  s_cbranch_scc1 L_phase_end")
    e("  s_branch L_issue")

    e("L_loop:")
    e(f"  s_add_u32 s{sTmp}, s{sLeft}, s{sPh}")
    e(f"  s_cmp_lg_u32 s{sTmp}, s{sEv}")
    e("  s_cbranch_scc1 L_noinfo")
    e(f"  s_call_b64 {sr(sRET,2)}, L_event")
    e("L_noinfo:")
    next_offsets()
    e(f"  s_waitcnt vmcnt(8)")
    for kk in range(4):
        for T in range(2):
            e(f"  ds_read_b128 {vr(KT+16*T+4*kk,4)}, v{vKr+kk} offset:{T*4096}")
    def perms():
        for w in range(4):
            for jp in range(4):
                a, b = VB + 4 * (2 * jp + 1) + w, VB + 4 * (2 * jp) + w
                e(f"  v_perm_b32 v{VT+4*(2*w)+jp}, v{a}, v{b}, s{sSelLo}")
                e(f"  v_perm_b32 v{VT+4*(2*w+1)+jp}, v{a}, v{b}, s{sSelHi}")
    if order == 0:
        e(f"  s_waitcnt vmcnt(0)")
        perms()
        e(f"  s_waitcnt lgkmcnt(0)")
        loadKV()
    for kk in range(4):
        if order >= 1:
            e(f"  s_waitcnt lgkmcnt({6-2*kk})")
        for T in range(2):
            c = "0" if kk == 0 else vr(S + 4 * T, 4)
            e(f"  v_mfma_f32_16x16x32_bf16 {vr(S+4*T,4)}, {vr(KT+16*T+4*kk,4)}, {vr(Q+4*kk,4)}, {c}")
    if order in (1, 2):
        loadK()
    e(f"  s_cmp_ge_i32 s{sRem}, 32")
    if order in (0, 3):
        e(f"  s_nop 6")
    e(f"  s_cbranch_scc1 L_nomask")
    e(f"  v_sub_u32 v{t0}, s{sRem}, v{v4r}")
    e(f"  v_mov_b32 v{t1}, s{sNeg}")
    for j in range(8):
        off = 16 * (j >> 2) + (j & 3)
        e(f"  v_cmp_lt_i32 {sr(sM+2*j,2)}, {off}, v{t0}")
    e("  s_nop 1")
    for j in range(8):
        e(f"  v_cndmask_b32 v{S+j}, v{t1}, v{S+j}, {sr(sM+2*j,2)}")
    e(f"L_nomask:")
    e(f"  s_sub_i32 s{sRem}, s{sRem}, s{sDec}")
    e(f"  v_max3_f32 v{t0}, v{S}, v{S+1}, v{S+2}")
    e(f"  v_max3_f32 v{t1}, v{S+3}, v{S+4}, v{S+5}")
    e(f"  v_max3_f32 v{t0}, v{t0}, v{S+6}, v{S+7}")
    e(f"  v_max_f32 v{t0}, v{t0}, v{t1}")
    e(f"  v_mov_b32 v{t1}, v{t0}")
    e("  s_nop 1")
    e(f"  v_permlane32_swap_b32 v{t0}, v{t1}")
    e("  s_nop 1")
    e(f"  v_max_f32 v{t0}, v{t0}, v{t1}")
    e(f"  v_mov_b32 v{t1}, v{t0}")
    e("  s_nop 1")
    e(f"  v_permlane16_swap_b32 v{t0}, v{t1}")
    e("  s_nop 1")
    e(f"  v_max_f32 v{t0}, v{t0}, v{t1}")
    e(f"  v_mul_f32 v{t0}, s{sC}, v{t0}")
    e(f"  v_max_f32 v{vMCn}, v{t0}, v{vMC}")
    e(f"  v_sub_f32 v{t1}, v{vMC}, v{vMCn}")
    e(f"  v_exp_f32 v{vAl}, v{t1}")
    e(f"  v_mov_b32 v{vMC}, v{vMCn}")
    for j in range(8):
        e(f"  v_fma_f32 v{S+j}, v{S+j}, s{sC}, -v{vMCn}")
    for j in range(8):
        e(f"  v_exp_f32 v{S+j}, v{S+j}")
    for i in range(16):
        e(f"  v_pk_mul_f32 {vr(O+2*i,2)}, {vr(O+2*i,2)}, {vr(vAl,2)} op_sel_hi:[1,0]")
    if order >= 1:
        e(f"  s_waitcnt vmcnt({0 if order == 3 else 8})")
        perms()
        if order == 1:
            loadV()
    for jp in range(4):
        e(f"  v_cvt_pk_bf16_f32 v{P+jp}, v{S+2*jp}, v{S+2*jp+1}")
    e(f"  v_mul_f32 v{vL}, v{vL}, v{vAl}")
    e(f"  v_add_f32 v{t0}, v{S}, v{S+1}")
    for ee in range(8):
        e(f"  v_mfma_f32_16x16x32_bf16 {vr(O+4*ee,4)}, {vr(VT+4*ee,4)}, {vr(P,4)}, {vr(O+4*ee,4)}")
        if ee == 0:
            e(f"  v_add_f32 v{t1}, v{S+2}, v{S+3}")
            e(f"  v_add_f32 v{tA}, v{S+4}, v{S+5}")
        if ee == 1:
            e(f"  v_add_f32 v{tB}, v{S+6}, v{S+7}")
            e(f"  v_add_f32 v{t0}, v{t0}, v{t1}")
        if ee == 2:
            e(f"  v_add_f32 v{tA}, v{tA}, v{tB}")
            e(f"  v_add_f32 v{vL}, v{vL}, v{t0}")
        if ee == 3:
            e(f"  v_add_f32 v{vL}, v{vL}, v{tA}")
    if order == 3:
        loadK()
    if order >= 2:
        loadV()
    e(f"  s_sub_u32 s{sLeft}, s{sLeft}, 1")
    e(f"  s_cmp_lg_u32 s{sLeft}, 0")
    e("  s_cbranch_scc1 L_loop")
    e("L_phase_end:")
    reduce_l()
    e(f"  v_and_b32 v{tA}, 15, v0")
    e(f"  v_lshrrev_b32 v{tB}, 4, v0")
    e(f"  s_cmp_lg_u32 s{sPh}, 0")
    e("  s_cbranch_scc1 L_final")
    e(f"  s_cmp_eq_u32 s{sW}, 2")
    e("  s_cbranch_scc1 L_noflush")
    e(f"  s_mul_i32 s{sTmp}, s{sW}, {FPART}")
    e(f"  s_add_u32 s{sTmp}, s{sTmp}, {FB}")
    e(f"  v_mul_u32_u24 v{t0}, 144, v{tA}")
    e(f"  v_mul_u32_u24 v{t1}, 2304, v{tB}")
    e(f"  v_add3_u32 v{t0}, v{t0}, v{t1}, s{sTmp}")
    e(f"  s_lshl_b32 s{sTmp}, s{sW}, 3")
    e(f"  s_add_u32 s{sTmp}, s{sTmp}, {FST}")
    e(f"  v_lshl_add_u32 v{t1}, v{tA}, 4, s{sTmp}")
    e(f"  ds_write_b64 v{t1}, {vr(vMC,2)}")
    for ee in range(8):
        e(f"  ds_write_b128 v{t0}, {vr(O+4*ee,4)} offset:{16*ee}")
    e("L_noflush:")
    e(f"  v_lshlrev_b32 v{t1}, 4, v0")
    e(f"  v_add_u32 v{t1}, {Q2}, v{t1}")
    if nob1:
        e(f"  s_lshl_b32 s{sTmp}, s{sW}, 2")
        e(f"  s_add_u32 s{sTmp}, s{sTmp}, {FLG+16}")
        e(f"  v_mov_b32 v{t0}, s{sTmp}")
        for kk in range(4):
            e(f"  ds_read_b128 {vr(Q+4*kk,4)}, v{t1} offset:{kk*1024}")
        e("  s_waitcnt lgkmcnt(4)")
        e(f"  ds_write_b32 v{t0}, v{t0}")
    else:
        e("  s_waitcnt lgkmcnt(0)")
        e("  s_barrier")
        for kk in range(4):
            e(f"  ds_read_b128 {vr(Q+4*kk,4)}, v{t1} offset:{kk*1024}")
    init_state()
    e(f"  s_mov_b32 s{sPh}, 0x1000")
    e(f"  s_mov_b32 s{sRem}, s{sRem2}")
    e(f"  s_mov_b32 s{sLeft}, s{sN2}")
    e("  s_waitcnt lgkmcnt(0)")
    st(2)
    e(f"  s_cmp_eq_u32 s{sLeft}, 0")
    e("  s_cbranch_scc1 L_phase_end")
    e(f"  s_cmp_lg_u32 s{sW}, 2")
    e("  s_cbranch_scc1 L_loop")
    e(f"  v_mov_b32 v{t0}, {FLG}")
    e("L_xwait:")
    e("  s_sleep 2")
    e(f"  ds_read_b32 v{t1}, v{t0} offset:8")
    e("  s_waitcnt lgkmcnt(0)")
    e(f"  v_readfirstlane_b32 s{sTmp}, v{t1}")
    e("  s_nop 0")
    e(f"  s_cmp_eq_u32 s{sTmp}, 0")
    e("  s_cbranch_scc1 L_xwait")
    e("  s_branch L_issue")

    e("L_event:")
    e(f"  s_cmp_eq_u32 s{sPh}, 0")
    e("  s_cbranch_scc1 L_getinfo")
    e(f"  s_lshl_b32 s{sTmp}, s{sW}, 2")
    e(f"  v_mov_b32 v{t1}, s{sTmp}")
    e(f"  ds_write_b32 v{t1}, v{vKr} offset:{FLG+4}") if FLG + 4 < 65536 else None
    if FLG + 4 >= 65536:
        e(f"  v_add_u32 v{t1}, {FLG+4}, v{t1}")
        e(f"  ds_write_b32 v{t1}, v{t1}")
    e(f"  s_setpc_b64 {sr(sRET,2)}")
    e("L_getinfo:")
    e(f"  v_mov_b32 v{t1}, {REC}")
    e(f"  s_lshl_b32 s{sTmp}, s{sW}, 8")
    e(f"  s_add_u32 s{sTmp}, s{sTmp}, {LST}")
    e(f"  v_lshl_add_u32 v{t0}, v0, 2, s{sTmp}")
    e(f"  s_lshl_b32 s{sTmp}, s{sW}, 3")
    e(f"  v_add_u32 v{tD}, s{sTmp}, v{t1}")
    e("L_gi_poll:")
    e("  s_sleep 1")
    e(f"  ds_read_b32 v{tC}, v{t1} offset:32")
    e("  s_waitcnt lgkmcnt(0)")
    e(f"  v_readfirstlane_b32 s{sTmp}, v{tC}")
    e("  s_nop 0")
    e(f"  s_cmp_eq_u32 s{sTmp}, 0")
    e("  s_cbranch_scc1 L_gi_poll")
    e(f"  ds_read_b32 v{vBT}, v{t0}")
    e(f"  ds_read_b64 {vr(S,2)}, v{t1}")
    e(f"  ds_read_b64 {vr(S+2,2)}, v{tD} offset:8")
    e("  s_waitcnt lgkmcnt(0)")
    e(f"  v_readfirstlane_b32 s{sOB}, v{S}")
    e(f"  v_readfirstlane_b32 s{sEv}, v{S+1}")
    e(f"  v_readfirstlane_b32 s{sN2}, v{S+2}")
    e(f"  v_readfirstlane_b32 s{sRem2}, v{S+3}")
    e(f"  s_and_b32 s{sTmp}, s{sEv}, 0xffff")
    e(f"  s_lshr_b32 s{sEv}, s{sEv}, 16")
    e(f"  s_cmp_eq_u32 s{sW}, 0")
    e(f"  s_cselect_b32 s{sEv}, s{sTmp}, s{sEv}")
    e(f"  s_cmp_eq_u32 s{sW}, 2")
    e(f"  s_cselect_b32 s{sEv}, -1, s{sEv}")
    e(f"  s_setpc_b64 {sr(sRET,2)}")

    e("L_final:")
    st(3)
    e(f"  s_mul_i32 s{sTmp}, s{sW}, {GPART}")
    e(f"  s_add_u32 s{sTmp}, s{sTmp}, {GB}")
    e(f"  v_mul_u32_u24 v{t0}, {ROWB}, v{tA}")
    e(f"  v_lshl_add_u32 v{t0}, v{tB}, 7, v{t0}")
    e(f"  v_add_u32 v{t0}, s{sTmp}, v{t0}")
    e(f"  s_lshl_b32 s{sTmp}, s{sW}, 3")
    e(f"  s_add_u32 s{sTmp}, s{sTmp}, {GST}")
    e(f"  v_lshl_add_u32 v{t1}, v{tA}, 5, s{sTmp}")
    e(f"  ds_write_b64 v{t1}, {vr(vMC,2)}")
    for ee in range(8):
        e(f"  ds_write_b128 v{t0}, {vr(O+4*ee,4)} offset:{16*ee}")
    e(f"  s_lshl_b32 s{sTmp}, s{sW}, 2")
    e(f"  s_add_u32 s{sTmp}, s{sTmp}, {FLG+4}")
    e(f"  v_mov_b32 v{t1}, s{sTmp}")
    e(f"  ds_write_b32 v{t1}, v{t1}")
    e("L_b2:")
    srd(sO, 14, Q_BYTES)
    e(f"  s_lshl_b32 s{sTmp}, s{sW}, 2")
    e(f"  v_lshrrev_b32 v{tA}, 5, v0")
    e(f"  v_add_u32 v{tA}, s{sTmp}, v{tA}")
    e(f"  v_and_b32 v{tB}, 31, v0")
    e(f"  v_mul_u32_u24 v{t0}, {ROWB}, v{tA}")
    e(f"  v_lshl_add_u32 v{t0}, v{tB}, 4, v{t0}")
    e(f"  v_add_u32 v{t0}, {GB}, v{t0}")
    e(f"  v_lshlrev_b32 v{t1}, 5, v{tA}")
    e(f"  v_add_u32 v{t1}, {GST}, v{t1}")
    e(f"  v_lshrrev_b32 v{tC}, 3, v{tB}")
    e(f"  v_and_b32 v{tB}, 7, v{tB}")
    e(f"  v_lshlrev_b32 v{tA}, 8, v{tA}")
    e(f"  v_lshl_add_u32 v{tA}, v{tC}, 6, v{tA}")
    e(f"  v_lshl_add_u32 v{tA}, v{tB}, 1, v{tA}")
    e("  s_waitcnt lgkmcnt(0)")
    e("  s_barrier")
    for ch in range(2):
        ST = KT + 8 * ch
        for u in range(2):
            e(f"  ds_read_b128 {vr(ST+4*u,4)}, v{t1} offset:{ch*64+16*u}")
    PBs = [VT, O]
    for ch in range(2):
        for u in range(NP):
            e(f"  ds_read_b128 {vr(PBs[ch]+4*u,4)}, v{t0} offset:{u*GPART + ch*2*ROWB}")
    e(f"  s_waitcnt lgkmcnt({2*NP})")
    for ch in range(2):
        ST = KT + 8 * ch
        m = KT + 24 + 2 * ch
        e(f"  v_max3_f32 v{m}, v{ST}, v{ST+2}, v{ST+4}")
        e(f"  v_max_f32 v{m}, v{m}, v{ST+6}")
    for ch in range(2):
        ST = KT + 8 * ch
        m = KT + 24 + 2 * ch
        for u in range(NP):
            e(f"  v_sub_f32 v{ST+2*u}, v{ST+2*u}, v{m}")
    for ch in range(2):
        ST = KT + 8 * ch
        for u in range(NP):
            e(f"  v_exp_f32 v{ST+2*u}, v{ST+2*u}")
    for ch in range(2):
        ST = KT + 8 * ch
        l = KT + 24 + 2 * ch + 1
        e(f"  v_mul_f32 v{l}, v{ST}, v{ST+1}")
        for u in range(1, NP):
            e(f"  v_fmac_f32 v{l}, v{ST+2*u}, v{ST+2*u+1}")
    for ch in range(2):
        l = KT + 24 + 2 * ch + 1
        e(f"  v_rcp_f32 v{l}, v{l}")
    for ch in range(2):
        ST = KT + 8 * ch
        PB = PBs[ch]
        l = KT + 24 + 2 * ch + 1
        R = S + 4 * ch
        e(f"  s_waitcnt lgkmcnt({NP*(1-ch)})")
        for i in range(4):
            e(f"  v_mul_f32 v{R+i}, v{ST}, v{PB+i}")
        for u in range(1, NP):
            for i in range(4):
                e(f"  v_fmac_f32 v{R+i}, v{ST+2*u}, v{PB+4*u+i}")
        for i in range(4):
            e(f"  v_mul_f32 v{R+i}, v{R+i}, v{l}")
        e(f"  v_cvt_pk_bf16_f32 v{P+2*ch}, v{R}, v{R+1}")
        e(f"  v_cvt_pk_bf16_f32 v{P+2*ch+1}, v{R+2}, v{R+3}")
        e(f"  buffer_store_short v{P+2*ch}, v{tA}, {sr(sO,4)}, s{sOB} offen offset:{ch*512}")
        e(f"  buffer_store_short_d16_hi v{P+2*ch}, v{tA}, {sr(sO,4)}, s{sOB} offen offset:{ch*512+16}")
        e(f"  buffer_store_short v{P+2*ch+1}, v{tA}, {sr(sO,4)}, s{sOB} offen offset:{ch*512+32}")
        e(f"  buffer_store_short_d16_hi v{P+2*ch+1}, v{tA}, {sr(sO,4)}, s{sOB} offen offset:{ch*512+48}")
    if stamp:
        e("  s_waitcnt vmcnt(0)")
        e(f"  s_cmp_eq_u32 s{sW}, 3")
        e("  s_cbranch_scc1 L_stamp")
        st(4)
        e("  s_branch L_stamp")
    else:
        e("  s_endpgm")

    e("L_service:")
    e("  s_setprio 3")
    vC, vN, vKey, vRk = 32, 33, 35, 36
    vI, vPar = tC, tD
    e(f"  v_mov_b32 v{vRk}, 0")
    e(f"  v_mov_b32 v{vNON+2}, 0")
    e(f"  v_mov_b32 v{vNON+3}, 0")
    e(f"  v_mov_b32 v{t0}, {FLG}")
    e(f"  ds_write_b64 v{t0}, {vr(vNON+2,2)}")
    e(f"  ds_write_b64 v{t0}, {vr(vNON+2,2)} offset:8")
    e(f"  ds_write_b64 v{t0}, {vr(vNON+2,2)} offset:16")
    e(f"  ds_write_b64 v{t0}, {vr(vNON+2,2)} offset:24")
    e(f"  v_and_b32 v{vKey}, 31, v0")
    e(f"  v_lshlrev_b32 v{t0}, 2, v{vKey}")
    e(f"  s_movk_i32 s{sT2}, 2047")
    e("  s_waitcnt lgkmcnt(0)")
    if stamp:
        e(f"  s_mov_b32 s{sST}, s100")
    srd(sK, 12, 128)
    e(f"  buffer_load_dword v{vC}, v{t0}, {sr(sK,4)}, 0 offen")
    e(f"  s_memrealtime {sr(sNON,2)}")
    e("  s_barrier")
    srd(sBT, 10, 32 * 128 * 4)
    srd(sQ, 4, Q_BYTES)
    srd(sWS, sDBG + 2, 256 * SLOTB)
    if cyc:
        e(f"  s_add_u32 s{sH2}, s{sH}, {hx}")
        e(f"  s_and_b32 s{sH2}, s{sH2}, 3")
        e(f"  s_and_b32 s{sTmp}, s{sH}, 4")
        e(f"  s_or_b32 s{sH2}, s{sH2}, s{sTmp}")
    else:
        e(f"  s_xor_b32 s{sH2}, s{sH}, {hx}")
    e("  s_waitcnt vmcnt(0)")
    e(f"  v_add_u32 v{vN}, -1, v{vC}")
    e(f"  v_min_u32 v{vN}, s{sT2}, v{vN}")
    e(f"  v_max_i32 v{vC}, 0, v{vC}")
    e(f"  v_lshl_add_u32 v{vKey}, v{vN}, 5, v{vKey}")
    e("  s_nop 0")
    for g in range(4):
        for j in range(8):
            e(f"  v_readlane_b32 s{56+j}, v{vKey}, {8*g+j}")
        for j in range(8):
            e(f"  v_cmp_lt_u32 {sr(sM+2*j,2)}, s{56+j}, v{vKey}")
        for j in range(8):
            e(f"  v_addc_co_u32 v{vRk}, vcc, 0, v{vRk}, {sr(sM+2*j,2)}")
    e("  s_nop 0")
    e(f"  v_readlane_b32 s{sTmp}, v{vRk}, s{sB}")
    e("  s_nop 0")
    e(f"  s_sub_u32 s{sTmp}, 31, s{sTmp}")
    e(f"  v_cmp_eq_u32 vcc, s{sTmp}, v{vRk}")
    e(f"  v_readlane_b32 s{sNB}, v{vN}, s{sB}")
    e("  s_nop 3")
    e(f"  s_ff1_i32_b64 s{sB2}, vcc")
    e(f"  s_and_b32 s{sB2}, s{sB2}, 31")
    e(f"  v_cmp_eq_u32 vcc, 31, v{vRk}")
    e(f"  v_readlane_b32 s{sNB2}, v{vN}, s{sB2}")
    e(f"  v_readlane_b32 s{sCL2}, v{vC}, s{sB2}")
    e("  s_nop 2")
    e(f"  s_ff1_i32_b64 s{sTmp}, vcc")
    e(f"  v_readlane_b32 s{sEv}, v{vN}, s{sTmp}")
    split(sA1, sNB, sH, sTmp)
    e(f"  s_lshr_b32 s{sNB}, s{sNB}, 4")
    e(f"  s_add_u32 s{sNB}, s{sNB}, 1")
    split(sA2, sNB2, sH2, sTmp)
    e(f"  s_lshr_b32 s{sT5}, s{sNB2}, 5")
    e(f"  s_add_u32 s{sX2}, s{sT5}, 1")
    e(f"  s_sub_u32 s{sX2}, s{sX2}, s{sA2}")
    e(f"  s_lshr_b32 s{sNB2}, s{sNB2}, 4")
    e(f"  s_add_u32 s{sNB2}, s{sNB2}, 1")
    e(f"  s_add_u32 s{sLeft}, s{sA1}, s{sX2}")
    e(f"  s_add_u32 s{sOdd}, s{sLeft}, {E0}")
    e(f"  s_and_b32 s{sOdd}, s{sOdd}, {1 if odd else 0}")
    e(f"  s_add_u32 s{sOdd}, s{sOdd}, {E0}")
    e(f"  s_min_u32 s{sOdd}, s{sOdd}, s{sX2}")
    e(f"  s_sub_u32 s{sX2}, s{sX2}, s{sOdd}")
    e(f"  s_add_u32 s{sT5}, s{sA2}, s{sX2}")
    e(f"  s_add_u32 s{sRem}, s{sA2}, s{sX2}")
    e(f"  s_lshl_b32 s{sRem}, s{sRem}, 1")
    e(f"  s_min_u32 s{sRem}, s{sRem}, s{sNB2}")
    e(f"  s_lshr_b32 s{sEv}, s{sEv}, 6")
    e(f"  s_add_u32 s{sEv}, s{sEv}, {1 + max(0, max(dl))}")
    if go:
        e(f"  s_cmp_eq_u32 s2, 0")
        e(f"  s_movk_i32 s{sTmp}, {pfb}")
        e(f"  s_cselect_b32 s{sTmp}, {go}, s{sTmp}")
        e(f"  s_mul_i32 s{sTmp}, s{sLeft}, s{sTmp}")
        e(f"  s_lshr_b32 s{sEv}, s{sTmp}, 8")
    else:
        e(f"  s_mul_i32 s{sTmp}, s{sLeft}, {pf}")
        e(f"  s_lshr_b32 s{sTmp}, s{sTmp}, 8")
        e(f"  s_min_u32 s{sEv}, s{sEv}, s{sTmp}" if cap else f"  s_mov_b32 s{sEv}, s{sTmp}")
    e(f"  s_add_u32 s{sEv}, s{sEv}, 1")
    e(f"  s_lshr_b32 s{sEv}, s{sEv}, 1")
    e(f"  s_lshl_b32 s{sT2}, s{sB}, 9")
    e(f"  s_lshl_b32 s{sT3}, s{sB2}, 9")
    e(f"  s_lshl_b32 s{sX}, s{sB2}, 3")
    e(f"  s_add_u32 s{sX}, s{sX}, s{sH2}")
    e(f"  s_lshl_b32 s{sOB}, s{sX}, 12")
    LB = 40
    RC = S
    for w in range(2):
        e(f"  s_add_u32 s{sN2}, s{sA1}, {1-w}")
        e(f"  s_lshr_b32 s{sN2}, s{sN2}, 1")
        e(f"  s_add_u32 s{sTmp}, s{sA1}, {w}")
        e(f"  s_and_b32 s{sTmp}, s{sTmp}, 1")
        e(f"  s_sub_u32 s{sT4}, s{sX2}, s{sTmp}")
        e(f"  s_add_u32 s{sT4}, s{sT4}, 1")
        e(f"  s_lshr_b32 s{sT4}, s{sT4}, 1")
        e(f"  v_mov_b32 v{RC+2+2*w}, s{sT4}")
        if w == 0:
            e(f"  s_cmp_gt_u32 s{sEv}, s{sN2}")
            e(f"  s_cselect_b32 s{sPh}, 1, 0")
            e(f"  s_add_u32 s{sT4}, s{sT4}, s{sN2}")
            e(f"  s_sub_i32 s{sEv}, s{sT4}, s{sEv}")
            e(f"  s_add_u32 s{sEv}, s{sEv}, 0x1000")
        else:
            e(f"  s_add_u32 s{sIdx}, s{sOdd}, {xlead}")
            e(f"  s_min_u32 s{sT4}, s{sT4}, s{sIdx}")
            e(f"  s_add_u32 s{sT4}, s{sT4}, 0x1000")
            e(f"  s_lshl_b32 s{sT4}, s{sT4}, 16")
            e(f"  s_or_b32 s{sEv}, s{sEv}, s{sT4}")
        e(f"  s_add_u32 s{sTmp}, s{sTmp}, s{sA2}")
        e(f"  s_lshl_b32 s{sT4}, s{sTmp}, 5")
        e(f"  s_sub_i32 s{sT4}, s{sCL2}, s{sT4}")
        e(f"  v_mov_b32 v{RC+3+2*w}, s{sT4}")
        e(f"  s_lshl_b32 s{sT4}, s{sN2}, 1")
        e(f"  s_sub_u32 s{sTmp}, s{sTmp}, s{sT4}")
        e(f"  v_cmp_gt_u32 vcc, s{sN2}, v{vI}")
        e(f"  v_mov_b32 v{t0}, s{sTmp}")
        e(f"  v_mov_b32 v{vAl}, s{sRem}")
        e(f"  v_mov_b32 v{vAl+1}, {w}")
        e(f"  v_cndmask_b32 v{t0}, v{t0}, v{vAl+1}, vcc")
        e(f"  v_lshl_add_u32 v{t0}, v{vI}, 1, v{t0}")
        e(f"  v_lshl_add_u32 v{LB+w}, v{t0}, 1, v{vPar}")
        e(f"  v_mov_b32 v{vAl+1}, s{sNB}")
        e(f"  v_cndmask_b32 v{LB+8+w}, v{vAl}, v{vAl+1}, vcc")
        e(f"  v_mov_b32 v{vAl}, s{sT3}")
        e(f"  v_mov_b32 v{vAl+1}, s{sT2}")
        e(f"  v_cndmask_b32 v{t0}, v{vAl}, v{vAl+1}, vcc")
        e(f"  v_lshl_add_u32 v{t0}, v{LB+w}, 2, v{t0}")
        e(f"  buffer_load_dword v{LB+4+w}, v{t0}, {sr(sBT,4)}, 0 offen")
        e(f"  v_mov_b32 v{vAl}, s{sH2}")
        e(f"  v_mov_b32 v{vAl+1}, s{sH}")
        e(f"  v_cndmask_b32 v{LB+12+w}, v{vAl}, v{vAl+1}, vcc")
        e(f"  v_lshlrev_b32 v{LB+12+w}, 8, v{LB+12+w}")
    e(f"  s_lshl_b32 s{sTmp}, s{sT5}, 1")
    e(f"  v_add_u32 v{LB+2}, s{sTmp}, v0")
    e(f"  v_lshlrev_b32 v{t0}, 2, v{LB+2}")
    e(f"  buffer_load_dword v{LB+6}, v{t0}, {sr(sBT,4)}, s{sT3} offen")
    e(f"  v_mov_b32 v{LB+10}, s{sNB2}")
    e(f"  s_lshl_b32 s{sTmp}, s{sH2}, 8")
    e(f"  v_mov_b32 v{LB+14}, s{sTmp}")
    e(f"  v_mov_b32 v{RC+6}, s{sOdd}")
    e(f"  s_lshl_b32 s{sTmp}, s{sT5}, 5")
    e(f"  s_sub_i32 s{sTmp}, s{sCL2}, s{sTmp}")
    e(f"  v_mov_b32 v{RC+7}, s{sTmp}")
    for kk in range(4):
        e(f"  s_mov_b32 m0, {Q2 + kk*960}")
        e("  s_nop 0")
        e(f"  buffer_load_dwordx4 v{t1}, {sr(sQ,4)}, s{sOB} offen offset:{kk*64} lds")
    e(f"  v_mov_b32 v{RC}, s{sOB}")
    e(f"  v_mov_b32 v{RC+1}, s{sEv}")
    e(f"  v_mov_b32 v{vKey}, {REC}")
    e(f"  ds_write_b128 v{vKey}, {vr(RC,4)}")
    e(f"  ds_write_b128 v{vKey}, {vr(RC+4,4)} offset:16")
    e(f"  v_lshlrev_b32 v{t0}, 2, v0")
    e(f"  v_add_u32 v{t0}, {LST}, v{t0}")
    e(f"  v_mov_b32 v{vAl}, {hex(OOB)}")
    for w in range(3):
        e(f"  v_cmp_lt_u32 vcc, v{LB+w}, v{LB+8+w}")
        e(f"  s_waitcnt vmcnt({4+2-w})")
        e(f"  v_lshl_add_u32 v{LB+4+w}, v{LB+4+w}, 15, v{LB+12+w}")
        e(f"  v_cndmask_b32 v{LB+4+w}, v{vAl}, v{LB+4+w}, vcc")
        e(f"  ds_write_b32 v{t0}, v{LB+4+w} offset:{w*256}")
    e(f"  v_mov_b32 v{vAl}, 1")
    e("  s_waitcnt vmcnt(0) lgkmcnt(0)" if nob1 else "  s_waitcnt lgkmcnt(0)")
    e(f"  ds_write_b32 v{vKey}, v{vAl} offset:32")
    st(1)
    e(f"  s_or_b32 s{sNON}, s{sNON}, 1")
    e(f"  v_mov_b32 v{vNON}, s{sNON}")
    e(f"  v_mov_b32 v{vNON+1}, s{sNON+1}")
    e(f"  s_mov_b64 {sr(sM,2)}, exec")
    e(f"  s_cmp_lg_u32 s2, 0")
    e("  s_cbranch_scc1 L_nocas")
    e("  s_mov_b64 exec, 1")
    e(f"  global_atomic_cmpswap_x2 v{vNON+2}, {vr(vNON,4)}, {sr(sDBG,2)} sc1")
    e(f"  s_mov_b64 exec, {sr(sM,2)}")
    e("L_nocas:")
    e(f"  v_mul_u32_u24 v{t0}, 144, v{tA}")
    e(f"  v_mul_u32_u24 v{t1}, 2304, v{tB}")
    e(f"  v_add_u32 v{t0}, v{t0}, v{t1}")
    e(f"  v_add_u32 v{t0}, {FB}, v{t0}")
    e(f"  v_lshlrev_b32 v{t1}, 4, v{tA}")
    e(f"  v_add_u32 v{t1}, {FST}, v{t1}")
    e(f"  v_lshlrev_b32 v{tC}, 4, v0")
    e(f"  v_lshlrev_b32 v{tD}, 2, v0")
    e(f"  s_mul_i32 s{sT2}, s2, {SLOTB}")
    e(f"  s_mul_i32 s{sT3}, s{sX}, {SLOTB}")
    if nob1:
        e("L_fwait:")
        e("  s_sleep 2")
        e(f"  ds_read_b96 {vr(32,3)}, v{vKey} offset:48")
        e("  s_waitcnt lgkmcnt(0)")
        e(f"  v_min_u32 v32, v32, v33")
        e(f"  v_min_u32 v32, v32, v34")
        e("  s_nop 0")
        e(f"  v_readfirstlane_b32 s{sTmp}, v32")
        e("  s_nop 0")
        e(f"  s_cmp_eq_u32 s{sTmp}, 0")
        e("  s_cbranch_scc1 L_fwait")
        e("  s_waitcnt vmcnt(0)")
    else:
        e("  s_waitcnt vmcnt(0) lgkmcnt(0)")
        e("  s_barrier")
    if nohand:
        e("  s_branch L_b2")
    e(f"  global_load_dwordx2 {vr(vNON+4,2)}, v{vNON+2}, {sr(sDBG,2)} sc1")
    ST = 32
    R = 40
    PB = 72
    e(f"  ds_read_b128 {vr(ST,4)}, v{t1}")
    for ee in range(7):
        for u in range(NS):
            e(f"  ds_read_b128 {vr(PB+8*ee+4*u,4)}, v{t0} offset:{u*FPART+16*ee}")
    e(f"  s_waitcnt lgkmcnt(14)")
    for u in range(NS):
        e(f"  ds_read_b128 {vr(PB+8*7+4*u,4)}, v{t0} offset:{u*FPART+16*7}") if u == 0 else None
    e(f"  v_max_f32 v{vMC}, v{ST}, v{ST+2}")
    for u in range(NS):
        e(f"  v_sub_f32 v{ST+2*u}, v{ST+2*u}, v{vMC}")
    for u in range(NS):
        e(f"  v_exp_f32 v{ST+2*u}, v{ST+2*u}")
    e(f"  s_waitcnt lgkmcnt(13)")
    e(f"  ds_read_b128 {vr(PB+8*7+4,4)}, v{t0} offset:{FPART+16*7}")
    e(f"  v_mul_f32 v{vL}, v{ST}, v{ST+1}")
    e(f"  v_fmac_f32 v{vL}, v{ST+2}, v{ST+3}")
    for ee in range(8):
        e(f"  s_waitcnt lgkmcnt({14-2*ee})")
        for i in range(4):
            e(f"  v_mul_f32 v{R+4*ee+i}, v{ST}, v{PB+8*ee+i}")
        for i in range(4):
            e(f"  v_fmac_f32 v{R+4*ee+i}, v{ST+2}, v{PB+8*ee+4+i}")
    e("  s_waitcnt vmcnt(0)")
    e(f"  v_readfirstlane_b32 s{sT4}, v{vNON+4}")
    e(f"  v_readfirstlane_b32 s{sT5}, v{vNON+5}")
    e("  s_nop 0")
    e(f"  s_cmp_lg_u32 s{sT4}, 0")
    e("  s_cbranch_scc1 L_havenonce")
    e("  s_mov_b64 exec, 1")
    e(f"  global_atomic_cmpswap_x2 {vr(vNON+4,2)}, v{vNON+2}, {vr(vNON,4)}, {sr(sDBG,2)} sc0 sc1")
    e(f"  s_mov_b64 exec, {sr(sM,2)}")
    e("  s_waitcnt vmcnt(0)")
    e(f"  v_readfirstlane_b32 s{sT4}, v{vNON+4}")
    e(f"  v_readfirstlane_b32 s{sT5}, v{vNON+5}")
    e("  s_nop 0")
    e(f"  s_cmp_lg_u32 s{sT4}, 0")
    e(f"  s_cselect_b32 s{sT4}, s{sT4}, s{sNON}")
    e(f"  s_cselect_b32 s{sT5}, s{sT5}, s{sNON+1}")
    e("L_havenonce:")
    e(f"  s_mov_b32 s{sNON}, s{sT4}")
    e(f"  s_mov_b32 s{sNON+1}, s{sT5}")
    e(f"  v_mov_b32 v{vNON}, s{sT4}")
    e(f"  v_mov_b32 v{vNON+1}, s{sT5}")
    e(f"  s_cmp_eq_u32 s{sPh}, 0")
    e("  s_cbranch_scc1 L_publish")
    e(f"  v_mov_b32 v{t0}, {FLG}")
    if go:
        e(f"  s_add_u32 s{sT4}, s{sT2}, 8832")
        e("  s_mov_b64 exec, 1")
    e("L_trig:")
    e("  s_sleep 2")
    if go:
        e(f"  buffer_load_dwordx2 {vr(vNON+4,2)}, v{vNON+2}, {sr(sWS,4)}, s{sT4} offen sc1")
    e(f"  ds_read_b32 v{t1}, v{t0} offset:4")
    if go:
        e("  s_waitcnt vmcnt(0) lgkmcnt(0)")
        e(f"  v_readfirstlane_b32 s{sN2}, v{vNON+4}")
        e(f"  v_readfirstlane_b32 s{sN2+1}, v{vNON+5}")
        e(f"  v_readfirstlane_b32 s{sTmp}, v{t1}")
        e(f"  s_cmp_eq_u64 {sr(sN2,2)}, {sr(sNON,2)}")
        e("  s_cbranch_scc1 L_trigd")
    else:
        e("  s_waitcnt lgkmcnt(0)")
        e(f"  v_readfirstlane_b32 s{sTmp}, v{t1}")
        e("  s_nop 0")
    e(f"  s_cmp_eq_u32 s{sTmp}, 0")
    e("  s_cbranch_scc1 L_trig")
    if go:
        e("L_trigd:")
        e(f"  s_mov_b64 exec, {sr(sM,2)}")
    e("L_publish:")
    st(1)
    if go:
        e(f"  s_cmp_lg_u32 s2, 0")
        e("  s_cbranch_scc1 L_nogo")
        e(f"  s_movk_i32 s{sTmp}, {SLOTB}")
        e(f"  v_mul_lo_u32 v{t0}, v0, s{sTmp}")
        for k in range(4):
            e(f"  s_mov_b32 s{sTmp}, {64*k*SLOTB + 8832}")
            e(f"  buffer_store_dwordx2 {vr(vNON,2)}, v{t0}, {sr(sWS,4)}, s{sTmp} offen sc1")
        e("L_nogo:")
    e(f"  s_add_u32 s{sT4}, s{sT2}, 4096")
    e(f"  s_add_u32 s{sT5}, s{sT2}, 8192")
    for ee in range(8):
        if 'store' not in skip and not ('half' in skip and ee >= 4):
            e(f"  buffer_store_dwordx4 {vr(R+4*ee,4)}, v{tC}, {sr(sWS,4)}, s{sT2 if ee < 4 else sT4} offen offset:{(ee&3)*1024} sc1")
    if 'store' not in skip:
        e(f"  buffer_store_dword v{vMC}, v{tD}, {sr(sWS,4)}, s{sT5} offen sc1")
        e(f"  buffer_store_dword v{vL}, v{tD}, {sr(sWS,4)}, s{sT5} offen offset:256 sc1")
    e(f"  s_add_u32 s{sT4}, s{sT3}, 8704")
    if 'wait' not in skip:
        e("  s_waitcnt vmcnt(0)")
    e("  s_mov_b64 exec, 1")
    if 'flag' not in skip:
        e(f"  buffer_store_dwordx2 {vr(vNON,2)}, v{vNON+2}, {sr(sWS,4)}, s{sT5} offen offset:512 sc1")
    e(f"  s_mov_b32 s{sT5}, 0x40000")
    st(2)
    if 'poll' in skip:
        e("  s_branch L_got")
    if pipe:
        PR = 72
        for k in range(pipe - 1):
            e(f"  buffer_load_dwordx2 {vr(PR+2*k,2)}, v{vNON+2}, {sr(sWS,4)}, s{sT4} offen sc1")
            e(f"  s_sleep {sleep}")
        e("L_poll:")
        for k in range(pipe):
            kn = (k + pipe - 1) % pipe
            e(f"  buffer_load_dwordx2 {vr(PR+2*kn,2)}, v{vNON+2}, {sr(sWS,4)}, s{sT4} offen sc1")
            e(f"  s_waitcnt vmcnt({pipe-1})")
            e(f"  v_readfirstlane_b32 s{sN2}, v{PR+2*k}")
            e(f"  v_readfirstlane_b32 s{sN2+1}, v{PR+2*k+1}")
            e("  s_nop 0")
            e(f"  s_cmp_eq_u64 {sr(sN2,2)}, {sr(sNON,2)}")
            e("  s_cbranch_scc1 L_got")
            e(f"  s_sleep {sleep}")
        e(f"  s_sub_u32 s{sT5}, s{sT5}, 1")
        e(f"  s_cmp_lg_u32 s{sT5}, 0")
        e("  s_cbranch_scc1 L_poll")
    else:
        e("L_poll:")
        e(f"  buffer_load_dwordx2 {vr(vNON+4,2)}, v{vNON+2}, {sr(sWS,4)}, s{sT4} offen sc1")
        e("  s_waitcnt vmcnt(0)")
        e(f"  v_readfirstlane_b32 s{sN2}, v{vNON+4}")
        e(f"  v_readfirstlane_b32 s{sN2+1}, v{vNON+5}")
        e("  s_nop 0")
        e(f"  s_cmp_eq_u64 {sr(sN2,2)}, {sr(sNON,2)}")
        e("  s_cbranch_scc1 L_got")
        e(f"  s_sleep {sleep}")
        e(f"  s_sub_u32 s{sT5}, s{sT5}, 1")
        e(f"  s_cmp_lg_u32 s{sT5}, 0")
        e("  s_cbranch_scc1 L_poll")
    e("L_got:")
    e(f"  s_mov_b64 exec, {sr(sM,2)}")
    st(3)
    if 'pload' in skip:
        e("  s_branch L_b2")
    e(f"  s_add_u32 s{sT4}, s{sT3}, 8192")
    e(f"  buffer_load_dword v{vMC}, v{tD}, {sr(sWS,4)}, s{sT4} offen sc1")
    e(f"  buffer_load_dword v{vL}, v{tD}, {sr(sWS,4)}, s{sT4} offen offset:256 sc1")
    e(f"  s_add_u32 s{sT4}, s{sT3}, 4096")
    for ee in range(8):
        e(f"  buffer_load_dwordx4 {vr(R+4*ee,4)}, v{tC}, {sr(sWS,4)}, s{sT3 if ee < 4 or 'half' in skip else sT4} offen offset:{(ee&3)*1024} sc1")
    e(f"  v_mul_u32_u24 v{t0}, {ROWB}, v{tA}")
    e(f"  v_lshl_add_u32 v{t0}, v{tB}, 7, v{t0}")
    e(f"  v_add_u32 v{t0}, {GB + 3*GPART}, v{t0}")
    e(f"  v_lshlrev_b32 v{t1}, 5, v{tA}")
    e(f"  v_add_u32 v{t1}, {GST + 24}, v{t1}")
    e("  s_waitcnt vmcnt(8)")
    e(f"  ds_write_b64 v{t1}, {vr(vMC,2)}")
    for ee in range(8):
        e(f"  s_waitcnt vmcnt({7-ee})")
        e(f"  ds_write_b128 v{t0}, {vr(R+4*ee,4)} offset:{16*ee}")
    st(4)
    e("  s_branch L_b2")
    if stamp:
        e("L_stamp:")
        e(f"  s_lshl_b32 s{sTmp}, s2, 2")
        e(f"  s_add_u32 s{sTmp}, s{sTmp}, s{sW}")
        e(f"  s_lshl_b32 s{sTmp}, s{sTmp}, 5")
        e(f"  s_add_u32 s{sTmp}, s{sTmp}, {256*SLOTB}")
        e(f"  v_mov_b32 v{t0}, s{sTmp}")
        for i in range(5):
            e(f"  v_mov_b32 v{S+i}, s{sST+i}")
        e("  s_getreg_b32 s100, hwreg(HW_REG_XCC_ID)")
        e(f"  v_mov_b32 v{S+5}, s100")
        e(f"  v_mov_b32 v{S+6}, s{sA1}")
        e("  s_getreg_b32 s100, hwreg(HW_REG_HW_ID)")
        e(f"  v_mov_b32 v{S+7}, s100")
        e("  s_mov_b64 exec, 1")
        e(f"  global_store_dwordx4 v{t0}, {vr(S,4)}, {sr(sDBG+2,2)}")
        e(f"  global_store_dwordx4 v{t0}, {vr(S+4,4)}, {sr(sDBG+2,2)} offset:16")
    e("L_end:")
    e("  s_endpgm")
    e('.section .rodata,"a"')
    e(".p2align 6")
    e(f".amdhsa_kernel {NAME}")
    e(f"  .amdhsa_next_free_vgpr {NV}")
    e("  .amdhsa_next_free_sgpr 102")
    e(f"  .amdhsa_accum_offset {(NV+3)//4*4}")
    e("  .amdhsa_group_segment_fixed_size 0")
    e("  .amdhsa_kernarg_size 64")
    e("  .amdhsa_user_sgpr_count 2")
    e("  .amdhsa_user_sgpr_kernarg_segment_ptr 1")
    e("  .amdhsa_system_sgpr_workgroup_id_x 1")
    e(".end_amdhsa_kernel")
    return "\n".join(L) + "\n"


if __name__ == "__main__":
    ap = argparse.ArgumentParser()
    ap.add_argument("-o", required=True)
    ap.add_argument("--kfl", default="nt")
    ap.add_argument("--vfl", default="nt")
    ap.add_argument("--stamp", action="store_true")
    ap.add_argument("--hx", type=int, default=1)
    ap.add_argument("--sleep", type=int, default=8)
    ap.add_argument("--nohand", action="store_true")
    ap.add_argument("--noodd", action="store_true")
    ap.add_argument("--pf", type=int, default=172)
    ap.add_argument("--e0", type=int, default=0)
    ap.add_argument("--ldspad", type=int, default=0)
    ap.add_argument("--order", type=int, default=0)
    ap.add_argument("--skip", default="")
    ap.add_argument("--xlead", type=int, default=0)
    ap.add_argument("--cyc", action="store_true")
    ap.add_argument("--go", type=int, default=0)
    ap.add_argument("--b1", action="store_true")
    ap.add_argument("--pipe", type=int, default=0)
    ap.add_argument("--nocap", action="store_true")
    ap.add_argument("--pfb", type=int, default=216)
    ap.add_argument("--dl", default="0,0,0,0")
    a = ap.parse_args()
    open(a.o, "w").write(gen(kfl=a.kfl, vfl=a.vfl, stamp=a.stamp, hx=a.hx, sleep=a.sleep, nohand=a.nohand, pf=a.pf, odd=not a.noodd, E0=a.e0, ldspad=a.ldspad, order=a.order, skip=a.skip, xlead=a.xlead, cyc=a.cyc, go=a.go, nob1=not a.b1, pipe=a.pipe, cap=not a.nocap, pfb=a.pfb, dl=tuple(int(x) for x in a.dl.split(','))))
```

```python
import sys, struct, math, argparse

NAME = "standalone__paged_block_table_kv_pagedattention__sampling_kernel"
HEADER = open("standalone__paged_block_table_kv_pagedattention__sampling.s.ref").read().split("; Override launch")[0]

KV_BYTES = 4100 * 16 * 8 * 128 * 2
Q_BYTES = 32 * 32 * 4 * 128 * 2
OOB = 0x10000000
SLOTB = 9216


DOC = """
Paged GQA decode attention, one workgroup (4 waves) per CU.  The kernel is HBM bound, so it is organised around
keeping about 32 KB of K/V loads in flight per CU and giving every CU the same number of 32-position tiles.
  sequence (b,h) = 16 query rows (4 q heads x 4 tokens) against kv head h of batch b, ceil(n/32) tiles.
  workgroup (b,h): phase 1 = first half of its own sequence -> partial (m, l, O) handed over through d_ws;
                   phase 2 = second half of sequence (b', h^1), b' = batch whose length rank mirrors b's;
                   it merges the partial of workgroup (b', h^1) and writes that sequence's output.
  waves 0,1: stream tiles.  K: coalesced DMA into LDS (xor swizzle) -> MFMA A operand; S^T = K Q^T; online
             softmax with the running row max; V: coalesced loads to VGPRs, v_perm pairs -> O^T += V^T P^T.
  wave 2:    takes the last tile of phase 2 when the tile count is odd.   wave 3: service wave (ranks, tile lists, hand-off).
  hand-off:  write-through stores, drained, then a flag = launch nonce (first-come clock value agreed on through
             d_debug, which starts at zero); the consumer polls the flag and reads with the same scope.
  positions >= context_len get the reference's -1e9 score; context_len <= 0 averages all 2048 positions.
"""


def f32bits(x):
    return struct.unpack("<I", struct.pack("<f", x))[0]


def gen(kfl="nt", vfl="nt", stamp=False, hx=1, sleep=8, nohand=False, pf=172, odd=True, E0=0, ldspad=0, order=0, skip='', xlead=0, cyc=False, dl=(0,0,0,0), go=0, pfb=216, cap=True, pipe=0, nob1=True, mrows=False):
    TAB = sum(((d + 8) & 15) << (4 * c) for c, d in enumerate(dl))
    skip = set(skip.split(','))
    L = []
    e = L.append
    NS = 2
    NP = 4
    KFL = (" " + kfl.replace("+", " ")) if kfl else ""
    VFL = (" " + vfl.replace("+", " ")) if vfl else ""
    vKo, vKr, vV0, vV1, vBT, v4r = 1, 5, 9, 10, 11, 12
    vNON = 14
    vMC, vL, vAl, vMCn = 20, 21, 22, 24
    t0, t1, tA, tB, tC, tD = 25, 26, 27, 28, 29, 30
    Q, O, S, P, KT, VT, VB = 32, 48, 80, 88, 92, 124, 156
    NV = 188
    vKx, vVx = 188, 196
    if mrows:
        NV = 204
    sK, sV, sBT, sQ, sO, sWS = 16, 20, 24, 28, 32, 36
    (sB, sH, sW, sCL, sNB, sLeft, sIdx, sO0, sO1, sRem, sC, sSelLo, sSelHi, sTmp, sNeg, sKB,
     sN2, sRem2, sOB, sPh, sX, sA1, sT2, sT3, sT4, sT5, sB2, sH2, sA2, sNB2, sX2, sCL2) = range(40, 72)
    sM = 72
    sDBG = 88
    sST = 92
    sEv = 97
    sNON = 98
    sRET = 98
    sOdd = 3
    sDec = 3
    KSLOT = 8192
    FB = 3 * KSLOT
    FPART = 9216
    FST = FB + NS * FPART
    GB = FST + 16 * 16
    ROWB = 528
    GPART = 16 * ROWB
    GST = GB + NP * GPART
    LST = GB + 3 * GPART
    Q2 = GST + 16 * 32
    REC = Q2 + 4096
    FLG = REC + 32
    LDS = max(FLG + 32, ldspad)

    def vr(a, n):
        return f"v[{a}:{a+n-1}]"

    def sr(a, n):
        return f"s[{a}:{a+n-1}]"

    def srd(r, lo, nbytes):
        e(f"  s_mov_b32 s{r}, s{lo}")
        e(f"  s_mov_b32 s{r+1}, s{lo+1}")
        e(f"  s_mov_b32 s{r+2}, {nbytes}")
        e(f"  s_mov_b32 s{r+3}, 0x00020000")

    def st(i):
        if stamp:
            e(f"  s_memrealtime s[100:101]")
            e(f"  s_waitcnt lgkmcnt(0)")
            e(f"  s_mov_b32 s{sST+i}, s100")

    def loadKV():
        loadK()
        loadV()

    def loadK():
        for T in range(2):
            e(f"  s_add_u32 m0, s{sKB}, {T*4096}")
            e(f"  s_nop 0")
            for i in range(4):
                e(f"  buffer_load_dwordx4 v{(vKx+4*T+i) if mrows else (vKo+i)}, {sr(sK,4)}, s{sO0+T} offen offset:{i*1024}{KFL} lds")

    def loadV():
        for j in range(8):
            T, i = j >> 2, j & 3
            e(f"  buffer_load_dwordx4 {vr(VB+4*j,4)}, v{(vVx+j) if mrows else (vV0 + (i>>1))}, {sr(sV,4)}, s{sO0+T} offen offset:{(i&1)*2048}{VFL}")

    def next_offsets():
        e(f"  v_readlane_b32 s{sO0}, v{vBT}, s{sIdx}")
        e(f"  s_add_u32 s{sIdx}, s{sIdx}, 1")
        e(f"  v_readlane_b32 s{sO1}, v{vBT}, s{sIdx}")
        e(f"  s_add_u32 s{sIdx}, s{sIdx}, 1")

    def reduce_l():
        for sw in ("32", "16"):
            e(f"  v_mov_b32 v{t1}, v{vL}")
            e("  s_nop 1")
            e(f"  v_permlane{sw}_swap_b32 v{vL}, v{t1}")
            e("  s_nop 1")
            e(f"  v_add_f32 v{vL}, v{vL}, v{t1}")

    def init_state():
        for i in range(32):
            e(f"  v_mov_b32 v{O+i}, 0")
        e(f"  v_mov_b32 v{vMC}, 0xff7fffff")
        e(f"  v_mov_b32 v{vL}, 0")

    def split(dst, nm1, h, tmp):
        e(f"  s_lshr_b32 s{dst}, s{nm1}, 6")
        e(f"  s_add_u32 s{dst}, s{dst}, 1")
        if any(dl):
            e(f"  s_lshr_b32 s{tmp}, s6, 8")
            e(f"  s_add_u32 s{tmp}, s{tmp}, s{h}")
            e(f"  s_and_b32 s{tmp}, s{tmp}, 3")
            e(f"  s_lshl_b32 s{tmp}, s{tmp}, 2")
            e(f"  s_lshr_b32 s{tmp}, {TAB}, s{tmp}")
            e(f"  s_and_b32 s{tmp}, s{tmp}, 15")
            e(f"  s_add_u32 s{dst}, s{dst}, s{tmp}")
            e(f"  s_sub_i32 s{dst}, s{dst}, 8")
            e(f"  s_max_i32 s{dst}, s{dst}, 1")
            e(f"  s_lshr_b32 s{tmp}, s{nm1}, 5")
            e(f"  s_add_u32 s{tmp}, s{tmp}, 1")
            e(f"  s_min_u32 s{dst}, s{dst}, s{tmp}")

    e(HEADER.rstrip("\n"))
    e(f"; @launch grid=(256,1,1) block=(256,1,1) lds={LDS}")
    for line in DOC.strip("\n").split("\n"):
        e(("; " + line).rstrip())
    e('.amdgcn_target "amdgcn-amd-amdhsa--gfx950"')
    e(".text")
    e(f".globl {NAME}")
    e(".p2align 8")
    e(f".type {NAME},@function")
    e(f"{NAME}:")
    e("  s_cmp_ge_u32 s2, 256")
    e("  s_cbranch_scc1 L_end")
    if stamp:
        e("  s_memrealtime s[100:101]")
    e("  s_load_dwordx8 s[4:11], s[0:1], 0")
    e("  s_load_dwordx4 s[12:15], s[0:1], 32")
    e(f"  s_load_dwordx4 {sr(sDBG,4)}, s[0:1], 48")
    e(f"  v_lshrrev_b32 v{t0}, 6, v0")
    e(f"  v_and_b32 v0, 63, v0")
    e(f"  v_readfirstlane_b32 s{sW}, v{t0}")
    e(f"  s_lshr_b32 s{sB}, s2, 3")
    e(f"  s_and_b32 s{sH}, s2, 7")
    e(f"  v_and_b32 v{tA}, 15, v0")
    e(f"  v_lshrrev_b32 v{tB}, 4, v0")
    e(f"  v_lshrrev_b32 v{tC}, 1, v0")
    e(f"  v_and_b32 v{tD}, 1, v0")
    e(f"  v_lshlrev_b32 v{t1}, 8, v{tA}")
    e(f"  v_lshl_add_u32 v{t1}, v{tB}, 4, v{t1}")
    e(f"  s_cmp_eq_u32 s{sW}, 3")
    e("  s_cbranch_scc1 L_service")

    e(f"  s_lshl_b32 s{sIdx}, s{sW}, 1")
    e(f"  v_lshlrev_b32 v{t0}, 2, v{tC}")
    e(f"  v_add3_u32 v{tC}, v{t0}, v{tD}, s{sIdx}")
    e(f"  s_lshl_b32 s{sNB}, s{sB}, 9")
    e(f"  v_lshl_add_u32 v{t0}, v{tC}, 2, s{sNB}")
    e(f"  s_lshl_b32 s{sRem}, s{sB}, 2")
    e(f"  s_lshl_b32 s{sT2}, s2, 12")
    e(f"  s_lshl_b32 s{sKB}, s{sW}, 13")
    e(f"  s_lshl_b32 s{sT3}, s{sH}, 8")
    for i in range(4):
        e(f"  v_add_u32 v{vV0}, {4*i}, v{tB}")
        e(f"  v_xor_b32 v{vV1}, v{tA}, v{vV0}")
        e(f"  v_lshlrev_b32 v{vV0}, 11, v{vV0}")
        e(f"  v_lshl_add_u32 v{vKo+i}, v{vV1}, 4, v{vV0}")
        if i:
            e(f"  v_subrev_u32 v{vKo+i}, {i*1024}, v{vKo+i}")
    e(f"  v_lshlrev_b32 v{vV0}, 13, v{tB}")
    e(f"  v_lshl_add_u32 v{vV0}, v{tA}, 4, v{vV0}")
    e(f"  v_add_u32 v{vV1}, 0x1000, v{vV0}")
    if mrows:
        for j in range(8):
            e(f"  v_mov_b32 v{vKx+j}, v{vKo+(j&3)}")
            e(f"  v_mov_b32 v{vVx+j}, v{vV0+((j&3)>>1)}")
    e(f"  s_mov_b32 s{sBT+2}, {32*128*4}")
    e(f"  s_mov_b32 s{sBT+3}, 0x00020000")
    e("  s_waitcnt lgkmcnt(0)")
    if stamp:
        e(f"  s_mov_b32 s{sST}, s100")
    e(f"  s_mov_b32 s{sBT}, s10")
    e(f"  s_mov_b32 s{sBT+1}, s11")
    e(f"  buffer_load_dword v{vBT}, v{t0}, {sr(sBT,4)}, 0 offen")
    e(f"  s_load_dword s{sCL}, s[12:13], s{sRem}")
    srd(sQ, 4, Q_BYTES)
    for kk in range(4):
        e(f"  buffer_load_dwordx4 {vr(Q+4*kk,4)}, v{t1}, {sr(sQ,4)}, s{sT2} offen offset:{kk*64}")
    srd(sK, 6, KV_BYTES)
    srd(sV, 8, KV_BYTES)
    e(f"  s_mov_b32 s{sPh}, 0")
    e(f"  s_mov_b32 s{sEv}, 1")
    e(f"  s_mov_b32 s{sIdx}, 0")
    e("  s_barrier")
    e(f"  s_cmp_eq_u32 s{sW}, 2")
    e("  s_cbranch_scc1 L_consts")
    e("  s_waitcnt vmcnt(4)")
    e(f"  v_lshlrev_b32 v{vBT}, 15, v{vBT}")
    e(f"  v_add_u32 v{vBT}, s{sT3}, v{vBT}")
    e("  s_nop 0")
    e("L_issue:")
    next_offsets()
    e("  s_nop 1")
    loadKV()
    e(f"  s_cmp_lg_u32 s{sPh}, 0")
    e("  s_cbranch_scc1 L_loop")
    e(f"  s_cmp_eq_u32 s{sEv}, 1")
    e("  s_cbranch_scc0 L_phase_end")
    e("L_consts:")
    e(f"  v_lshlrev_b32 v{tD}, 8, v{tA}")
    e(f"  v_add_u32 v{tD}, s{sKB}, v{tD}")
    for kk in range(4):
        e(f"  v_add_u32 v{t0}, {4*kk}, v{tB}")
        e(f"  v_xor_b32 v{t0}, v{tA}, v{t0}")
        e(f"  v_lshl_add_u32 v{vKr+kk}, v{t0}, 4, v{tD}")
    e(f"  v_lshlrev_b32 v{v4r}, 2, v{tB}")
    e(f"  s_mov_b32 s{sC}, {hex(f32bits(128 ** -0.5 * math.log2(math.e)))}")
    e(f"  s_mov_b32 s{sSelLo}, 0x05040100")
    e(f"  s_mov_b32 s{sSelHi}, 0x07060302")
    e(f"  s_mov_b32 s{sNeg}, {hex(f32bits(-1e9 / (128 ** -0.5)))}")
    init_state()
    e("  s_waitcnt lgkmcnt(0)")
    e(f"  s_sub_u32 s{sNB}, s{sCL}, 1")
    e(f"  s_min_u32 s{sNB}, s{sNB}, 2047")
    e(f"  s_max_i32 s{sCL}, s{sCL}, 0")
    split(sA1, sNB, sH, sTmp)
    e(f"  s_sub_u32 s{sLeft}, s{sA1}, s{sW}")
    e(f"  s_add_u32 s{sLeft}, s{sLeft}, 1")
    e(f"  s_lshr_b32 s{sLeft}, s{sLeft}, 1")
    e(f"  s_lshl_b32 s{sTmp}, s{sW}, 5")
    e(f"  s_sub_i32 s{sRem}, s{sCL}, s{sTmp}")
    e(f"  s_cmp_eq_u32 s{sW}, 2")
    e(f"  s_cselect_b32 s{sLeft}, 0, s{sLeft}")
    e(f"  s_cselect_b32 s{sDec}, 32, 64")
    st(1)
    e(f"  s_cmp_lg_u32 s{sLeft}, 0")
    e("  s_cbranch_scc1 L_loop")
    e("  s_waitcnt vmcnt(0)")
    e(f"  s_call_b64 {sr(sRET,2)}, L_getinfo")
    e(f"  s_mov_b32 s{sIdx}, 0")
    e(f"  s_cmp_eq_u32 s{sW}, 2")
    e("  s_cbranch_scc1 L_phase_end")
    e("  s_branch L_issue2" if mrows else "  s_branch L_issue")

    e("L_loop:")
    e(f"  s_add_u32 s{sTmp}, s{sLeft}, s{sPh}")
    e(f"  s_cmp_lg_u32 s{sTmp}, s{sEv}")
    e("  s_cbranch_scc1 L_noinfo")
    e(f"  s_call_b64 {sr(sRET,2)}, L_event")
    if mrows:
        e(f"  s_add_u32 s{sTmp}, s{sLeft}, s{sPh}")
    e("L_noinfo:")
    next_offsets()
    if mrows:
        e(f"  s_sub_i32 s{sT2}, s{sRem}, s{sDec}")
        e(f"  s_cmp_eq_u32 s{sTmp}, 1")
        e(f"  s_cselect_b32 s{sT2}, s{sRem2}, s{sT2}")
        e(f"  s_sub_u32 s{sT3}, s{sT2}, 1")
        e(f"  s_cmp_ge_u32 s{sT3}, 31")
        e("  s_cbranch_scc1 L_norows")
        e(f"  s_call_b64 {sr(sRET,2)}, L_maskrows")
        e("L_norows:")
    e(f"  s_waitcnt vmcnt(8)")
    for kk in range(4):
        for T in range(2):
            e(f"  ds_read_b128 {vr(KT+16*T+4*kk,4)}, v{vKr+kk} offset:{T*4096}")
    def perms():
        for w in range(4):
            for jp in range(4):
                a, b = VB + 4 * (2 * jp + 1) + w, VB + 4 * (2 * jp) + w
                e(f"  v_perm_b32 v{VT+4*(2*w)+jp}, v{a}, v{b}, s{sSelLo}")
                e(f"  v_perm_b32 v{VT+4*(2*w+1)+jp}, v{a}, v{b}, s{sSelHi}")
    if order == 0:
        e(f"  s_waitcnt vmcnt(0)")
        perms()
        e(f"  s_waitcnt lgkmcnt(0)")
        loadKV()
    for kk in range(4):
        if order >= 1:
            e(f"  s_waitcnt lgkmcnt({6-2*kk})")
        for T in range(2):
            c = "0" if kk == 0 else vr(S + 4 * T, 4)
            e(f"  v_mfma_f32_16x16x32_bf16 {vr(S+4*T,4)}, {vr(KT+16*T+4*kk,4)}, {vr(Q+4*kk,4)}, {c}")
    if order in (1, 2):
        loadK()
    e(f"  s_cmp_ge_i32 s{sRem}, 32")
    if order in (0, 3):
        e(f"  s_nop 6")
    e(f"  s_cbranch_scc1 L_nomask")
    e(f"  v_sub_u32 v{t0}, s{sRem}, v{v4r}")
    e(f"  v_mov_b32 v{t1}, s{sNeg}")
    for j in range(8):
        off = 16 * (j >> 2) + (j & 3)
        e(f"  v_cmp_lt_i32 {sr(sM+2*j,2)}, {off}, v{t0}")
    e("  s_nop 1")
    for j in range(8):
        e(f"  v_cndmask_b32 v{S+j}, v{t1}, v{S+j}, {sr(sM+2*j,2)}")
    e(f"L_nomask:")
    e(f"  s_sub_i32 s{sRem}, s{sRem}, s{sDec}")
    e(f"  v_max3_f32 v{t0}, v{S}, v{S+1}, v{S+2}")
    e(f"  v_max3_f32 v{t1}, v{S+3}, v{S+4}, v{S+5}")
    e(f"  v_max3_f32 v{t0}, v{t0}, v{S+6}, v{S+7}")
    e(f"  v_max_f32 v{t0}, v{t0}, v{t1}")
    e(f"  v_mov_b32 v{t1}, v{t0}")
    e("  s_nop 1")
    e(f"  v_permlane32_swap_b32 v{t0}, v{t1}")
    e("  s_nop 1")
    e(f"  v_max_f32 v{t0}, v{t0}, v{t1}")
    e(f"  v_mov_b32 v{t1}, v{t0}")
    e("  s_nop 1")
    e(f"  v_permlane16_swap_b32 v{t0}, v{t1}")
    e("  s_nop 1")
    e(f"  v_max_f32 v{t0}, v{t0}, v{t1}")
    e(f"  v_mul_f32 v{t0}, s{sC}, v{t0}")
    e(f"  v_max_f32 v{vMCn}, v{t0}, v{vMC}")
    e(f"  v_sub_f32 v{t1}, v{vMC}, v{vMCn}")
    e(f"  v_exp_f32 v{vAl}, v{t1}")
    e(f"  v_mov_b32 v{vMC}, v{vMCn}")
    for j in range(8):
        e(f"  v_fma_f32 v{S+j}, v{S+j}, s{sC}, -v{vMCn}")
    for j in range(8):
        e(f"  v_exp_f32 v{S+j}, v{S+j}")
    for i in range(16):
        e(f"  v_pk_mul_f32 {vr(O+2*i,2)}, {vr(O+2*i,2)}, {vr(vAl,2)} op_sel_hi:[1,0]")
    if order >= 1:
        e(f"  s_waitcnt vmcnt({0 if order == 3 else 8})")
        perms()
        if order == 1:
            loadV()
    for jp in range(4):
        e(f"  v_cvt_pk_bf16_f32 v{P+jp}, v{S+2*jp}, v{S+2*jp+1}")
    e(f"  v_mul_f32 v{vL}, v{vL}, v{vAl}")
    e(f"  v_add_f32 v{t0}, v{S}, v{S+1}")
    for ee in range(8):
        e(f"  v_mfma_f32_16x16x32_bf16 {vr(O+4*ee,4)}, {vr(VT+4*ee,4)}, {vr(P,4)}, {vr(O+4*ee,4)}")
        if ee == 0:
            e(f"  v_add_f32 v{t1}, v{S+2}, v{S+3}")
            e(f"  v_add_f32 v{tA}, v{S+4}, v{S+5}")
        if ee == 1:
            e(f"  v_add_f32 v{tB}, v{S+6}, v{S+7}")
            e(f"  v_add_f32 v{t0}, v{t0}, v{t1}")
        if ee == 2:
            e(f"  v_add_f32 v{tA}, v{tA}, v{tB}")
            e(f"  v_add_f32 v{vL}, v{vL}, v{t0}")
        if ee == 3:
            e(f"  v_add_f32 v{vL}, v{vL}, v{tA}")
    if order == 3:
        loadK()
    if order >= 2:
        loadV()
    e(f"  s_sub_u32 s{sLeft}, s{sLeft}, 1")
    e(f"  s_cmp_lg_u32 s{sLeft}, 0")
    e("  s_cbranch_scc1 L_loop")
    e("L_phase_end:")
    reduce_l()
    e(f"  v_and_b32 v{tA}, 15, v0")
    e(f"  v_lshrrev_b32 v{tB}, 4, v0")
    e(f"  s_cmp_lg_u32 s{sPh}, 0")
    e("  s_cbranch_scc1 L_final")
    e(f"  s_cmp_eq_u32 s{sW}, 2")
    e("  s_cbranch_scc1 L_noflush")
    e(f"  s_mul_i32 s{sTmp}, s{sW}, {FPART}")
    e(f"  s_add_u32 s{sTmp}, s{sTmp}, {FB}")
    e(f"  v_mul_u32_u24 v{t0}, 144, v{tA}")
    e(f"  v_mul_u32_u24 v{t1}, 2304, v{tB}")
    e(f"  v_add3_u32 v{t0}, v{t0}, v{t1}, s{sTmp}")
    e(f"  s_lshl_b32 s{sTmp}, s{sW}, 3")
    e(f"  s_add_u32 s{sTmp}, s{sTmp}, {FST}")
    e(f"  v_lshl_add_u32 v{t1}, v{tA}, 4, s{sTmp}")
    e(f"  ds_write_b64 v{t1}, {vr(vMC,2)}")
    for ee in range(8):
        e(f"  ds_write_b128 v{t0}, {vr(O+4*ee,4)} offset:{16*ee}")
    e("L_noflush:")
    e(f"  v_lshlrev_b32 v{t1}, 4, v0")
    e(f"  v_add_u32 v{t1}, {Q2}, v{t1}")
    if nob1:
        e(f"  s_lshl_b32 s{sTmp}, s{sW}, 2")
        e(f"  s_add_u32 s{sTmp}, s{sTmp}, {FLG+16}")
        e(f"  v_mov_b32 v{t0}, s{sTmp}")
        for kk in range(4):
            e(f"  ds_read_b128 {vr(Q+4*kk,4)}, v{t1} offset:{kk*1024}")
        e("  s_waitcnt lgkmcnt(4)")
        e(f"  ds_write_b32 v{t0}, v{t0}")
    else:
        e("  s_waitcnt lgkmcnt(0)")
        e("  s_barrier")
        for kk in range(4):
            e(f"  ds_read_b128 {vr(Q+4*kk,4)}, v{t1} offset:{kk*1024}")
    init_state()
    e(f"  s_mov_b32 s{sPh}, 0x1000")
    e(f"  s_mov_b32 s{sRem}, s{sRem2}")
    e(f"  s_mov_b32 s{sLeft}, s{sN2}")
    e("  s_waitcnt lgkmcnt(0)")
    st(2)
    e(f"  s_cmp_eq_u32 s{sLeft}, 0")
    e("  s_cbranch_scc1 L_phase_end")
    e(f"  s_cmp_lg_u32 s{sW}, 2")
    e("  s_cbranch_scc1 L_loop")
    e(f"  v_mov_b32 v{t0}, {FLG}")
    e("L_xwait:")
    e("  s_sleep 2")
    e(f"  ds_read_b32 v{t1}, v{t0} offset:8")
    e("  s_waitcnt lgkmcnt(0)")
    e(f"  v_readfirstlane_b32 s{sTmp}, v{t1}")
    e("  s_nop 0")
    e(f"  s_cmp_eq_u32 s{sTmp}, 0")
    e("  s_cbranch_scc1 L_xwait")
    if mrows:
        e("L_issue2:")
        e(f"  s_mov_b32 s{sT2}, s{sRem2}")
        e(f"  s_sub_u32 s{sT3}, s{sT2}, 1")
        e(f"  s_cmp_ge_u32 s{sT3}, 31")
        e("  s_cbranch_scc1 L_issue")
        e(f"  s_call_b64 {sr(sRET,2)}, L_maskrows")
    e("  s_branch L_issue")
    if mrows:
        e("L_maskrows:")
        e(f"  v_lshrrev_b32 v{tC}, 4, v0")
        e(f"  v_sub_u32 v{tD}, s{sT2}, v{tC}")
        e(f"  v_sub_u32 v{tC}, s{sT2}, v{v4r}")
        e(f"  v_mov_b32 v{t0}, {hex(OOB)}")
        for j in range(8):
            e(f"  v_cmp_lt_i32 {sr(sM+2*j,2)}, {16*(j>>2) + 4*(j&3)}, v{tD}")
        for j in range(8):
            e(f"  v_cndmask_b32 v{vKx+j}, v{t0}, v{vKx+j}, {sr(sM+2*j,2)}")
        for j in range(8):
            e(f"  v_cmp_lt_i32 {sr(sM+2*j,2)}, {16*(j>>2) + (j&3)}, v{tC}")
        for j in range(8):
            e(f"  v_cndmask_b32 v{vVx+j}, v{t0}, v{vVx+j}, {sr(sM+2*j,2)}")
        e(f"  s_setpc_b64 {sr(sRET,2)}")

    e("L_event:")
    e(f"  s_cmp_eq_u32 s{sPh}, 0")
    e("  s_cbranch_scc1 L_getinfo")
    e(f"  s_lshl_b32 s{sTmp}, s{sW}, 2")
    e(f"  v_mov_b32 v{t1}, s{sTmp}")
    e(f"  ds_write_b32 v{t1}, v{vKr} offset:{FLG+4}") if FLG + 4 < 65536 else None
    if FLG + 4 >= 65536:
        e(f"  v_add_u32 v{t1}, {FLG+4}, v{t1}")
        e(f"  ds_write_b32 v{t1}, v{t1}")
    e(f"  s_setpc_b64 {sr(sRET,2)}")
    e("L_getinfo:")
    e(f"  v_mov_b32 v{t1}, {REC}")
    e(f"  s_lshl_b32 s{sTmp}, s{sW}, 8")
    e(f"  s_add_u32 s{sTmp}, s{sTmp}, {LST}")
    e(f"  v_lshl_add_u32 v{t0}, v0, 2, s{sTmp}")
    e(f"  s_lshl_b32 s{sTmp}, s{sW}, 3")
    e(f"  v_add_u32 v{tD}, s{sTmp}, v{t1}")
    e("L_gi_poll:")
    e("  s_sleep 1")
    e(f"  ds_read_b32 v{tC}, v{t1} offset:32")
    e("  s_waitcnt lgkmcnt(0)")
    e(f"  v_readfirstlane_b32 s{sTmp}, v{tC}")
    e("  s_nop 0")
    e(f"  s_cmp_eq_u32 s{sTmp}, 0")
    e("  s_cbranch_scc1 L_gi_poll")
    e(f"  ds_read_b32 v{vBT}, v{t0}")
    e(f"  ds_read_b64 {vr(S,2)}, v{t1}")
    e(f"  ds_read_b64 {vr(S+2,2)}, v{tD} offset:8")
    e("  s_waitcnt lgkmcnt(0)")
    e(f"  v_readfirstlane_b32 s{sOB}, v{S}")
    e(f"  v_readfirstlane_b32 s{sEv}, v{S+1}")
    e(f"  v_readfirstlane_b32 s{sN2}, v{S+2}")
    e(f"  v_readfirstlane_b32 s{sRem2}, v{S+3}")
    e(f"  s_and_b32 s{sTmp}, s{sEv}, 0xffff")
    e(f"  s_lshr_b32 s{sEv}, s{sEv}, 16")
    e(f"  s_cmp_eq_u32 s{sW}, 0")
    e(f"  s_cselect_b32 s{sEv}, s{sTmp}, s{sEv}")
    e(f"  s_cmp_eq_u32 s{sW}, 2")
    e(f"  s_cselect_b32 s{sEv}, -1, s{sEv}")
    e(f"  s_setpc_b64 {sr(sRET,2)}")

    e("L_final:")
    st(3)
    e(f"  s_mul_i32 s{sTmp}, s{sW}, {GPART}")
    e(f"  s_add_u32 s{sTmp}, s{sTmp}, {GB}")
    e(f"  v_mul_u32_u24 v{t0}, {ROWB}, v{tA}")
    e(f"  v_lshl_add_u32 v{t0}, v{tB}, 7, v{t0}")
    e(f"  v_add_u32 v{t0}, s{sTmp}, v{t0}")
    e(f"  s_lshl_b32 s{sTmp}, s{sW}, 3")
    e(f"  s_add_u32 s{sTmp}, s{sTmp}, {GST}")
    e(f"  v_lshl_add_u32 v{t1}, v{tA}, 5, s{sTmp}")
    e(f"  ds_write_b64 v{t1}, {vr(vMC,2)}")
    for ee in range(8):
        e(f"  ds_write_b128 v{t0}, {vr(O+4*ee,4)} offset:{16*ee}")
    e(f"  s_lshl_b32 s{sTmp}, s{sW}, 2")
    e(f"  s_add_u32 s{sTmp}, s{sTmp}, {FLG+4}")
    e(f"  v_mov_b32 v{t1}, s{sTmp}")
    e(f"  ds_write_b32 v{t1}, v{t1}")
    e("L_b2:")
    srd(sO, 14, Q_BYTES)
    e(f"  s_lshl_b32 s{sTmp}, s{sW}, 2")
    e(f"  v_lshrrev_b32 v{tA}, 5, v0")
    e(f"  v_add_u32 v{tA}, s{sTmp}, v{tA}")
    e(f"  v_and_b32 v{tB}, 31, v0")
    e(f"  v_mul_u32_u24 v{t0}, {ROWB}, v{tA}")
    e(f"  v_lshl_add_u32 v{t0}, v{tB}, 4, v{t0}")
    e(f"  v_add_u32 v{t0}, {GB}, v{t0}")
    e(f"  v_lshlrev_b32 v{t1}, 5, v{tA}")
    e(f"  v_add_u32 v{t1}, {GST}, v{t1}")
    e(f"  v_lshrrev_b32 v{tC}, 3, v{tB}")
    e(f"  v_and_b32 v{tB}, 7, v{tB}")
    e(f"  v_lshlrev_b32 v{tA}, 8, v{tA}")
    e(f"  v_lshl_add_u32 v{tA}, v{tC}, 6, v{tA}")
    e(f"  v_lshl_add_u32 v{tA}, v{tB}, 1, v{tA}")
    e("  s_waitcnt lgkmcnt(0)")
    e("  s_barrier")
    for ch in range(2):
        ST = KT + 8 * ch
        for u in range(2):
            e(f"  ds_read_b128 {vr(ST+4*u,4)}, v{t1} offset:{ch*64+16*u}")
    PBs = [VT, O]
    for ch in range(2):
        for u in range(NP):
            e(f"  ds_read_b128 {vr(PBs[ch]+4*u,4)}, v{t0} offset:{u*GPART + ch*2*ROWB}")
    e(f"  s_waitcnt lgkmcnt({2*NP})")
    for ch in range(2):
        ST = KT + 8 * ch
        m = KT + 24 + 2 * ch
        e(f"  v_max3_f32 v{m}, v{ST}, v{ST+2}, v{ST+4}")
        e(f"  v_max_f32 v{m}, v{m}, v{ST+6}")
    for ch in range(2):
        ST = KT + 8 * ch
        m = KT + 24 + 2 * ch
        for u in range(NP):
            e(f"  v_sub_f32 v{ST+2*u}, v{ST+2*u}, v{m}")
    for ch in range(2):
        ST = KT + 8 * ch
        for u in range(NP):
            e(f"  v_exp_f32 v{ST+2*u}, v{ST+2*u}")
    for ch in range(2):
        ST = KT + 8 * ch
        l = KT + 24 + 2 * ch + 1
        e(f"  v_mul_f32 v{l}, v{ST}, v{ST+1}")
        for u in range(1, NP):
            e(f"  v_fmac_f32 v{l}, v{ST+2*u}, v{ST+2*u+1}")
    for ch in range(2):
        l = KT + 24 + 2 * ch + 1
        e(f"  v_rcp_f32 v{l}, v{l}")
    for ch in range(2):
        ST = KT + 8 * ch
        PB = PBs[ch]
        l = KT + 24 + 2 * ch + 1
        R = S + 4 * ch
        e(f"  s_waitcnt lgkmcnt({NP*(1-ch)})")
        for i in range(4):
            e(f"  v_mul_f32 v{R+i}, v{ST}, v{PB+i}")
        for u in range(1, NP):
            for i in range(4):
                e(f"  v_fmac_f32 v{R+i}, v{ST+2*u}, v{PB+4*u+i}")
        for i in range(4):
            e(f"  v_mul_f32 v{R+i}, v{R+i}, v{l}")
        e(f"  v_cvt_pk_bf16_f32 v{P+2*ch}, v{R}, v{R+1}")
        e(f"  v_cvt_pk_bf16_f32 v{P+2*ch+1}, v{R+2}, v{R+3}")
        e(f"  buffer_store_short v{P+2*ch}, v{tA}, {sr(sO,4)}, s{sOB} offen offset:{ch*512}")
        e(f"  buffer_store_short_d16_hi v{P+2*ch}, v{tA}, {sr(sO,4)}, s{sOB} offen offset:{ch*512+16}")
        e(f"  buffer_store_short v{P+2*ch+1}, v{tA}, {sr(sO,4)}, s{sOB} offen offset:{ch*512+32}")
        e(f"  buffer_store_short_d16_hi v{P+2*ch+1}, v{tA}, {sr(sO,4)}, s{sOB} offen offset:{ch*512+48}")
    if stamp:
        e("  s_waitcnt vmcnt(0)")
        e(f"  s_cmp_eq_u32 s{sW}, 3")
        e("  s_cbranch_scc1 L_stamp")
        st(4)
        e("  s_branch L_stamp")
    else:
        e("  s_endpgm")

    e("L_service:")
    e("  s_setprio 3")
    vC, vN, vKey, vRk = 32, 33, 35, 36
    vI, vPar = tC, tD
    e(f"  v_mov_b32 v{vRk}, 0")
    e(f"  v_mov_b32 v{vNON+2}, 0")
    e(f"  v_mov_b32 v{vNON+3}, 0")
    e(f"  v_mov_b32 v{t0}, {FLG}")
    e(f"  ds_write_b64 v{t0}, {vr(vNON+2,2)}")
    e(f"  ds_write_b64 v{t0}, {vr(vNON+2,2)} offset:8")
    e(f"  ds_write_b64 v{t0}, {vr(vNON+2,2)} offset:16")
    e(f"  ds_write_b64 v{t0}, {vr(vNON+2,2)} offset:24")
    e(f"  v_and_b32 v{vKey}, 31, v0")
    e(f"  v_lshlrev_b32 v{t0}, 2, v{vKey}")
    e(f"  s_movk_i32 s{sT2}, 2047")
    e("  s_waitcnt lgkmcnt(0)")
    if stamp:
        e(f"  s_mov_b32 s{sST}, s100")
    srd(sK, 12, 128)
    e(f"  buffer_load_dword v{vC}, v{t0}, {sr(sK,4)}, 0 offen")
    e(f"  s_memrealtime {sr(sNON,2)}")
    e("  s_barrier")
    srd(sBT, 10, 32 * 128 * 4)
    srd(sQ, 4, Q_BYTES)
    srd(sWS, sDBG + 2, 256 * SLOTB)
    if cyc:
        e(f"  s_add_u32 s{sH2}, s{sH}, {hx}")
        e(f"  s_and_b32 s{sH2}, s{sH2}, 3")
        e(f"  s_and_b32 s{sTmp}, s{sH}, 4")
        e(f"  s_or_b32 s{sH2}, s{sH2}, s{sTmp}")
    else:
        e(f"  s_xor_b32 s{sH2}, s{sH}, {hx}")
    e("  s_waitcnt vmcnt(0)")
    e(f"  v_add_u32 v{vN}, -1, v{vC}")
    e(f"  v_min_u32 v{vN}, s{sT2}, v{vN}")
    e(f"  v_max_i32 v{vC}, 0, v{vC}")
    e(f"  v_lshl_add_u32 v{vKey}, v{vN}, 5, v{vKey}")
    e("  s_nop 0")
    for g in range(4):
        for j in range(8):
            e(f"  v_readlane_b32 s{56+j}, v{vKey}, {8*g+j}")
        for j in range(8):
            e(f"  v_cmp_lt_u32 {sr(sM+2*j,2)}, s{56+j}, v{vKey}")
        for j in range(8):
            e(f"  v_addc_co_u32 v{vRk}, vcc, 0, v{vRk}, {sr(sM+2*j,2)}")
    e("  s_nop 0")
    e(f"  v_readlane_b32 s{sTmp}, v{vRk}, s{sB}")
    e("  s_nop 0")
    e(f"  s_sub_u32 s{sTmp}, 31, s{sTmp}")
    e(f"  v_cmp_eq_u32 vcc, s{sTmp}, v{vRk}")
    e(f"  v_readlane_b32 s{sNB}, v{vN}, s{sB}")
    e("  s_nop 3")
    e(f"  s_ff1_i32_b64 s{sB2}, vcc")
    e(f"  s_and_b32 s{sB2}, s{sB2}, 31")
    e(f"  v_cmp_eq_u32 vcc, 31, v{vRk}")
    e(f"  v_readlane_b32 s{sNB2}, v{vN}, s{sB2}")
    e(f"  v_readlane_b32 s{sCL2}, v{vC}, s{sB2}")
    e("  s_nop 2")
    e(f"  s_ff1_i32_b64 s{sTmp}, vcc")
    e(f"  v_readlane_b32 s{sEv}, v{vN}, s{sTmp}")
    split(sA1, sNB, sH, sTmp)
    e(f"  s_lshr_b32 s{sNB}, s{sNB}, 4")
    e(f"  s_add_u32 s{sNB}, s{sNB}, 1")
    split(sA2, sNB2, sH2, sTmp)
    e(f"  s_lshr_b32 s{sT5}, s{sNB2}, 5")
    e(f"  s_add_u32 s{sX2}, s{sT5}, 1")
    e(f"  s_sub_u32 s{sX2}, s{sX2}, s{sA2}")
    e(f"  s_lshr_b32 s{sNB2}, s{sNB2}, 4")
    e(f"  s_add_u32 s{sNB2}, s{sNB2}, 1")
    e(f"  s_add_u32 s{sLeft}, s{sA1}, s{sX2}")
    e(f"  s_add_u32 s{sOdd}, s{sLeft}, {E0}")
    e(f"  s_and_b32 s{sOdd}, s{sOdd}, {1 if odd else 0}")
    e(f"  s_add_u32 s{sOdd}, s{sOdd}, {E0}")
    e(f"  s_min_u32 s{sOdd}, s{sOdd}, s{sX2}")
    e(f"  s_sub_u32 s{sX2}, s{sX2}, s{sOdd}")
    e(f"  s_add_u32 s{sT5}, s{sA2}, s{sX2}")
    e(f"  s_add_u32 s{sRem}, s{sA2}, s{sX2}")
    e(f"  s_lshl_b32 s{sRem}, s{sRem}, 1")
    e(f"  s_min_u32 s{sRem}, s{sRem}, s{sNB2}")
    e(f"  s_lshr_b32 s{sEv}, s{sEv}, 6")
    e(f"  s_add_u32 s{sEv}, s{sEv}, {1 + max(0, max(dl))}")
    if go:
        e(f"  s_cmp_eq_u32 s2, 0")
        e(f"  s_movk_i32 s{sTmp}, {pfb}")
        e(f"  s_cselect_b32 s{sTmp}, {go}, s{sTmp}")
        e(f"  s_mul_i32 s{sTmp}, s{sLeft}, s{sTmp}")
        e(f"  s_lshr_b32 s{sEv}, s{sTmp}, 8")
    else:
        e(f"  s_mul_i32 s{sTmp}, s{sLeft}, {pf}")
        e(f"  s_lshr_b32 s{sTmp}, s{sTmp}, 8")
        e(f"  s_min_u32 s{sEv}, s{sEv}, s{sTmp}" if cap else f"  s_mov_b32 s{sEv}, s{sTmp}")
    e(f"  s_add_u32 s{sEv}, s{sEv}, 1")
    e(f"  s_lshr_b32 s{sEv}, s{sEv}, 1")
    e(f"  s_lshl_b32 s{sT2}, s{sB}, 9")
    e(f"  s_lshl_b32 s{sT3}, s{sB2}, 9")
    e(f"  s_lshl_b32 s{sX}, s{sB2}, 3")
    e(f"  s_add_u32 s{sX}, s{sX}, s{sH2}")
    e(f"  s_lshl_b32 s{sOB}, s{sX}, 12")
    LB = 40
    RC = S
    for w in range(2):
        e(f"  s_add_u32 s{sN2}, s{sA1}, {1-w}")
        e(f"  s_lshr_b32 s{sN2}, s{sN2}, 1")
        e(f"  s_add_u32 s{sTmp}, s{sA1}, {w}")
        e(f"  s_and_b32 s{sTmp}, s{sTmp}, 1")
        e(f"  s_sub_u32 s{sT4}, s{sX2}, s{sTmp}")
        e(f"  s_add_u32 s{sT4}, s{sT4}, 1")
        e(f"  s_lshr_b32 s{sT4}, s{sT4}, 1")
        e(f"  v_mov_b32 v{RC+2+2*w}, s{sT4}")
        if w == 0:
            e(f"  s_cmp_gt_u32 s{sEv}, s{sN2}")
            e(f"  s_cselect_b32 s{sPh}, 1, 0")
            e(f"  s_add_u32 s{sT4}, s{sT4}, s{sN2}")
            e(f"  s_sub_i32 s{sEv}, s{sT4}, s{sEv}")
            e(f"  s_add_u32 s{sEv}, s{sEv}, 0x1000")
        else:
            e(f"  s_add_u32 s{sIdx}, s{sOdd}, {xlead}")
            e(f"  s_min_u32 s{sT4}, s{sT4}, s{sIdx}")
            e(f"  s_add_u32 s{sT4}, s{sT4}, 0x1000")
            e(f"  s_lshl_b32 s{sT4}, s{sT4}, 16")
            e(f"  s_or_b32 s{sEv}, s{sEv}, s{sT4}")
        e(f"  s_add_u32 s{sTmp}, s{sTmp}, s{sA2}")
        e(f"  s_lshl_b32 s{sT4}, s{sTmp}, 5")
        e(f"  s_sub_i32 s{sT4}, s{sCL2}, s{sT4}")
        e(f"  v_mov_b32 v{RC+3+2*w}, s{sT4}")
        e(f"  s_lshl_b32 s{sT4}, s{sN2}, 1")
        e(f"  s_sub_u32 s{sTmp}, s{sTmp}, s{sT4}")
        e(f"  v_cmp_gt_u32 vcc, s{sN2}, v{vI}")
        e(f"  v_mov_b32 v{t0}, s{sTmp}")
        e(f"  v_mov_b32 v{vAl}, s{sRem}")
        e(f"  v_mov_b32 v{vAl+1}, {w}")
        e(f"  v_cndmask_b32 v{t0}, v{t0}, v{vAl+1}, vcc")
        e(f"  v_lshl_add_u32 v{t0}, v{vI}, 1, v{t0}")
        e(f"  v_lshl_add_u32 v{LB+w}, v{t0}, 1, v{vPar}")
        e(f"  v_mov_b32 v{vAl+1}, s{sNB}")
        e(f"  v_cndmask_b32 v{LB+8+w}, v{vAl}, v{vAl+1}, vcc")
        e(f"  v_mov_b32 v{vAl}, s{sT3}")
        e(f"  v_mov_b32 v{vAl+1}, s{sT2}")
        e(f"  v_cndmask_b32 v{t0}, v{vAl}, v{vAl+1}, vcc")
        e(f"  v_lshl_add_u32 v{t0}, v{LB+w}, 2, v{t0}")
        e(f"  buffer_load_dword v{LB+4+w}, v{t0}, {sr(sBT,4)}, 0 offen")
        e(f"  v_mov_b32 v{vAl}, s{sH2}")
        e(f"  v_mov_b32 v{vAl+1}, s{sH}")
        e(f"  v_cndmask_b32 v{LB+12+w}, v{vAl}, v{vAl+1}, vcc")
        e(f"  v_lshlrev_b32 v{LB+12+w}, 8, v{LB+12+w}")
    e(f"  s_lshl_b32 s{sTmp}, s{sT5}, 1")
    e(f"  v_add_u32 v{LB+2}, s{sTmp}, v0")
    e(f"  v_lshlrev_b32 v{t0}, 2, v{LB+2}")
    e(f"  buffer_load_dword v{LB+6}, v{t0}, {sr(sBT,4)}, s{sT3} offen")
    e(f"  v_mov_b32 v{LB+10}, s{sNB2}")
    e(f"  s_lshl_b32 s{sTmp}, s{sH2}, 8")
    e(f"  v_mov_b32 v{LB+14}, s{sTmp}")
    e(f"  v_mov_b32 v{RC+6}, s{sOdd}")
    e(f"  s_lshl_b32 s{sTmp}, s{sT5}, 5")
    e(f"  s_sub_i32 s{sTmp}, s{sCL2}, s{sTmp}")
    e(f"  v_mov_b32 v{RC+7}, s{sTmp}")
    for kk in range(4):
        e(f"  s_mov_b32 m0, {Q2 + kk*960}")
        e("  s_nop 0")
        e(f"  buffer_load_dwordx4 v{t1}, {sr(sQ,4)}, s{sOB} offen offset:{kk*64} lds")
    e(f"  v_mov_b32 v{RC}, s{sOB}")
    e(f"  v_mov_b32 v{RC+1}, s{sEv}")
    e(f"  v_mov_b32 v{vKey}, {REC}")
    e(f"  ds_write_b128 v{vKey}, {vr(RC,4)}")
    e(f"  ds_write_b128 v{vKey}, {vr(RC+4,4)} offset:16")
    e(f"  v_lshlrev_b32 v{t0}, 2, v0")
    e(f"  v_add_u32 v{t0}, {LST}, v{t0}")
    e(f"  v_mov_b32 v{vAl}, {hex(OOB)}")
    for w in range(3):
        e(f"  v_cmp_lt_u32 vcc, v{LB+w}, v{LB+8+w}")
        e(f"  s_waitcnt vmcnt({4+2-w})")
        e(f"  v_lshl_add_u32 v{LB+4+w}, v{LB+4+w}, 15, v{LB+12+w}")
        e(f"  v_cndmask_b32 v{LB+4+w}, v{vAl}, v{LB+4+w}, vcc")
        e(f"  ds_write_b32 v{t0}, v{LB+4+w} offset:{w*256}")
    e(f"  v_mov_b32 v{vAl}, 1")
    e("  s_waitcnt vmcnt(0) lgkmcnt(0)" if nob1 else "  s_waitcnt lgkmcnt(0)")
    e(f"  ds_write_b32 v{vKey}, v{vAl} offset:32")
    st(1)
    e(f"  s_or_b32 s{sNON}, s{sNON}, 1")
    e(f"  v_mov_b32 v{vNON}, s{sNON}")
    e(f"  v_mov_b32 v{vNON+1}, s{sNON+1}")
    e(f"  s_mov_b64 {sr(sM,2)}, exec")
    e(f"  s_cmp_lg_u32 s2, 0")
    e("  s_cbranch_scc1 L_nocas")
    e("  s_mov_b64 exec, 1")
    e(f"  global_atomic_cmpswap_x2 v{vNON+2}, {vr(vNON,4)}, {sr(sDBG,2)} sc1")
    e(f"  s_mov_b64 exec, {sr(sM,2)}")
    e("L_nocas:")
    e(f"  v_mul_u32_u24 v{t0}, 144, v{tA}")
    e(f"  v_mul_u32_u24 v{t1}, 2304, v{tB}")
    e(f"  v_add_u32 v{t0}, v{t0}, v{t1}")
    e(f"  v_add_u32 v{t0}, {FB}, v{t0}")
    e(f"  v_lshlrev_b32 v{t1}, 4, v{tA}")
    e(f"  v_add_u32 v{t1}, {FST}, v{t1}")
    e(f"  v_lshlrev_b32 v{tC}, 4, v0")
    e(f"  v_lshlrev_b32 v{tD}, 2, v0")
    e(f"  s_mul_i32 s{sT2}, s2, {SLOTB}")
    e(f"  s_mul_i32 s{sT3}, s{sX}, {SLOTB}")
    if nob1:
        e("L_fwait:")
        e("  s_sleep 2")
        e(f"  ds_read_b96 {vr(32,3)}, v{vKey} offset:48")
        e("  s_waitcnt lgkmcnt(0)")
        e(f"  v_min_u32 v32, v32, v33")
        e(f"  v_min_u32 v32, v32, v34")
        e("  s_nop 0")
        e(f"  v_readfirstlane_b32 s{sTmp}, v32")
        e("  s_nop 0")
        e(f"  s_cmp_eq_u32 s{sTmp}, 0")
        e("  s_cbranch_scc1 L_fwait")
        e("  s_waitcnt vmcnt(0)")
    else:
        e("  s_waitcnt vmcnt(0) lgkmcnt(0)")
        e("  s_barrier")
    if nohand:
        e("  s_branch L_b2")
    e(f"  global_load_dwordx2 {vr(vNON+4,2)}, v{vNON+2}, {sr(sDBG,2)} sc1")
    ST = 32
    R = 40
    PB = 72
    e(f"  ds_read_b128 {vr(ST,4)}, v{t1}")
    for ee in range(7):
        for u in range(NS):
            e(f"  ds_read_b128 {vr(PB+8*ee+4*u,4)}, v{t0} offset:{u*FPART+16*ee}")
    e(f"  s_waitcnt lgkmcnt(14)")
    for u in range(NS):
        e(f"  ds_read_b128 {vr(PB+8*7+4*u,4)}, v{t0} offset:{u*FPART+16*7}") if u == 0 else None
    e(f"  v_max_f32 v{vMC}, v{ST}, v{ST+2}")
    for u in range(NS):
        e(f"  v_sub_f32 v{ST+2*u}, v{ST+2*u}, v{vMC}")
    for u in range(NS):
        e(f"  v_exp_f32 v{ST+2*u}, v{ST+2*u}")
    e(f"  s_waitcnt lgkmcnt(13)")
    e(f"  ds_read_b128 {vr(PB+8*7+4,4)}, v{t0} offset:{FPART+16*7}")
    e(f"  v_mul_f32 v{vL}, v{ST}, v{ST+1}")
    e(f"  v_fmac_f32 v{vL}, v{ST+2}, v{ST+3}")
    for ee in range(8):
        e(f"  s_waitcnt lgkmcnt({14-2*ee})")
        for i in range(4):
            e(f"  v_mul_f32 v{R+4*ee+i}, v{ST}, v{PB+8*ee+i}")
        for i in range(4):
            e(f"  v_fmac_f32 v{R+4*ee+i}, v{ST+2}, v{PB+8*ee+4+i}")
    e("  s_waitcnt vmcnt(0)")
    e(f"  v_readfirstlane_b32 s{sT4}, v{vNON+4}")
    e(f"  v_readfirstlane_b32 s{sT5}, v{vNON+5}")
    e("  s_nop 0")
    e(f"  s_cmp_lg_u32 s{sT4}, 0")
    e("  s_cbranch_scc1 L_havenonce")
    e("  s_mov_b64 exec, 1")
    e(f"  global_atomic_cmpswap_x2 {vr(vNON+4,2)}, v{vNON+2}, {vr(vNON,4)}, {sr(sDBG,2)} sc0 sc1")
    e(f"  s_mov_b64 exec, {sr(sM,2)}")
    e("  s_waitcnt vmcnt(0)")
    e(f"  v_readfirstlane_b32 s{sT4}, v{vNON+4}")
    e(f"  v_readfirstlane_b32 s{sT5}, v{vNON+5}")
    e("  s_nop 0")
    e(f"  s_cmp_lg_u32 s{sT4}, 0")
    e(f"  s_cselect_b32 s{sT4}, s{sT4}, s{sNON}")
    e(f"  s_cselect_b32 s{sT5}, s{sT5}, s{sNON+1}")
    e("L_havenonce:")
    e(f"  s_mov_b32 s{sNON}, s{sT4}")
    e(f"  s_mov_b32 s{sNON+1}, s{sT5}")
    e(f"  v_mov_b32 v{vNON}, s{sT4}")
    e(f"  v_mov_b32 v{vNON+1}, s{sT5}")
    e(f"  s_cmp_eq_u32 s{sPh}, 0")
    e("  s_cbranch_scc1 L_publish")
    e(f"  v_mov_b32 v{t0}, {FLG}")
    if go:
        e(f"  s_add_u32 s{sT4}, s{sT2}, 8832")
        e("  s_mov_b64 exec, 1")
    e("L_trig:")
    e("  s_sleep 2")
    if go:
        e(f"  buffer_load_dwordx2 {vr(vNON+4,2)}, v{vNON+2}, {sr(sWS,4)}, s{sT4} offen sc1")
    e(f"  ds_read_b32 v{t1}, v{t0} offset:4")
    if go:
        e("  s_waitcnt vmcnt(0) lgkmcnt(0)")
        e(f"  v_readfirstlane_b32 s{sN2}, v{vNON+4}")
        e(f"  v_readfirstlane_b32 s{sN2+1}, v{vNON+5}")
        e(f"  v_readfirstlane_b32 s{sTmp}, v{t1}")
        e(f"  s_cmp_eq_u64 {sr(sN2,2)}, {sr(sNON,2)}")
        e("  s_cbranch_scc1 L_trigd")
    else:
        e("  s_waitcnt lgkmcnt(0)")
        e(f"  v_readfirstlane_b32 s{sTmp}, v{t1}")
        e("  s_nop 0")
    e(f"  s_cmp_eq_u32 s{sTmp}, 0")
    e("  s_cbranch_scc1 L_trig")
    if go:
        e("L_trigd:")
        e(f"  s_mov_b64 exec, {sr(sM,2)}")
    e("L_publish:")
    st(1)
    if go:
        e(f"  s_cmp_lg_u32 s2, 0")
        e("  s_cbranch_scc1 L_nogo")
        e(f"  s_movk_i32 s{sTmp}, {SLOTB}")
        e(f"  v_mul_lo_u32 v{t0}, v0, s{sTmp}")
        for k in range(4):
            e(f"  s_mov_b32 s{sTmp}, {64*k*SLOTB + 8832}")
            e(f"  buffer_store_dwordx2 {vr(vNON,2)}, v{t0}, {sr(sWS,4)}, s{sTmp} offen sc1")
        e("L_nogo:")
    e(f"  s_add_u32 s{sT4}, s{sT2}, 4096")
    e(f"  s_add_u32 s{sT5}, s{sT2}, 8192")
    for ee in range(8):
        if 'store' not in skip and not ('half' in skip and ee >= 4):
            e(f"  buffer_store_dwordx4 {vr(R+4*ee,4)}, v{tC}, {sr(sWS,4)}, s{sT2 if ee < 4 else sT4} offen offset:{(ee&3)*1024} sc1")
    if 'store' not in skip:
        e(f"  buffer_store_dword v{vMC}, v{tD}, {sr(sWS,4)}, s{sT5} offen sc1")
        e(f"  buffer_store_dword v{vL}, v{tD}, {sr(sWS,4)}, s{sT5} offen offset:256 sc1")
    e(f"  s_add_u32 s{sT4}, s{sT3}, 8704")
    if 'wait' not in skip:
        e("  s_waitcnt vmcnt(0)")
    e("  s_mov_b64 exec, 1")
    if 'flag' not in skip:
        e(f"  buffer_store_dwordx2 {vr(vNON,2)}, v{vNON+2}, {sr(sWS,4)}, s{sT5} offen offset:512 sc1")
    e(f"  s_mov_b32 s{sT5}, 0x40000")
    st(2)
    if 'poll' in skip:
        e("  s_branch L_got")
    if pipe:
        PR = 72
        for k in range(pipe - 1):
            e(f"  buffer_load_dwordx2 {vr(PR+2*k,2)}, v{vNON+2}, {sr(sWS,4)}, s{sT4} offen sc1")
            e(f"  s_sleep {sleep}")
        e("L_poll:")
        for k in range(pipe):
            kn = (k + pipe - 1) % pipe
            e(f"  buffer_load_dwordx2 {vr(PR+2*kn,2)}, v{vNON+2}, {sr(sWS,4)}, s{sT4} offen sc1")
            e(f"  s_waitcnt vmcnt({pipe-1})")
            e(f"  v_readfirstlane_b32 s{sN2}, v{PR+2*k}")
            e(f"  v_readfirstlane_b32 s{sN2+1}, v{PR+2*k+1}")
            e("  s_nop 0")
            e(f"  s_cmp_eq_u64 {sr(sN2,2)}, {sr(sNON,2)}")
            e("  s_cbranch_scc1 L_got")
            e(f"  s_sleep {sleep}")
        e(f"  s_sub_u32 s{sT5}, s{sT5}, 1")
        e(f"  s_cmp_lg_u32 s{sT5}, 0")
        e("  s_cbranch_scc1 L_poll")
    else:
        e("L_poll:")
        e(f"  buffer_load_dwordx2 {vr(vNON+4,2)}, v{vNON+2}, {sr(sWS,4)}, s{sT4} offen sc1")
        e("  s_waitcnt vmcnt(0)")
        e(f"  v_readfirstlane_b32 s{sN2}, v{vNON+4}")
        e(f"  v_readfirstlane_b32 s{sN2+1}, v{vNON+5}")
        e("  s_nop 0")
        e(f"  s_cmp_eq_u64 {sr(sN2,2)}, {sr(sNON,2)}")
        e("  s_cbranch_scc1 L_got")
        e(f"  s_sleep {sleep}")
        e(f"  s_sub_u32 s{sT5}, s{sT5}, 1")
        e(f"  s_cmp_lg_u32 s{sT5}, 0")
        e("  s_cbranch_scc1 L_poll")
    e("L_got:")
    e(f"  s_mov_b64 exec, {sr(sM,2)}")
    st(3)
    if 'pload' in skip:
        e("  s_branch L_b2")
    e(f"  s_add_u32 s{sT4}, s{sT3}, 8192")
    e(f"  buffer_load_dword v{vMC}, v{tD}, {sr(sWS,4)}, s{sT4} offen sc1")
    e(f"  buffer_load_dword v{vL}, v{tD}, {sr(sWS,4)}, s{sT4} offen offset:256 sc1")
    e(f"  s_add_u32 s{sT4}, s{sT3}, 4096")
    for ee in range(8):
        e(f"  buffer_load_dwordx4 {vr(R+4*ee,4)}, v{tC}, {sr(sWS,4)}, s{sT3 if ee < 4 or 'half' in skip else sT4} offen offset:{(ee&3)*1024} sc1")
    e(f"  v_mul_u32_u24 v{t0}, {ROWB}, v{tA}")
    e(f"  v_lshl_add_u32 v{t0}, v{tB}, 7, v{t0}")
    e(f"  v_add_u32 v{t0}, {GB + 3*GPART}, v{t0}")
    e(f"  v_lshlrev_b32 v{t1}, 5, v{tA}")
    e(f"  v_add_u32 v{t1}, {GST + 24}, v{t1}")
    e("  s_waitcnt vmcnt(8)")
    e(f"  ds_write_b64 v{t1}, {vr(vMC,2)}")
    for ee in range(8):
        e(f"  s_waitcnt vmcnt({7-ee})")
        e(f"  ds_write_b128 v{t0}, {vr(R+4*ee,4)} offset:{16*ee}")
    st(4)
    e("  s_branch L_b2")
    if stamp:
        e("L_stamp:")
        e(f"  s_lshl_b32 s{sTmp}, s2, 2")
        e(f"  s_add_u32 s{sTmp}, s{sTmp}, s{sW}")
        e(f"  s_lshl_b32 s{sTmp}, s{sTmp}, 5")
        e(f"  s_add_u32 s{sTmp}, s{sTmp}, {256*SLOTB}")
        e(f"  v_mov_b32 v{t0}, s{sTmp}")
        for i in range(5):
            e(f"  v_mov_b32 v{S+i}, s{sST+i}")
        e("  s_getreg_b32 s100, hwreg(HW_REG_XCC_ID)")
        e(f"  v_mov_b32 v{S+5}, s100")
        e(f"  v_mov_b32 v{S+6}, s{sA1}")
        e("  s_getreg_b32 s100, hwreg(HW_REG_HW_ID)")
        e(f"  v_mov_b32 v{S+7}, s100")
        e("  s_mov_b64 exec, 1")
        e(f"  global_store_dwordx4 v{t0}, {vr(S,4)}, {sr(sDBG+2,2)}")
        e(f"  global_store_dwordx4 v{t0}, {vr(S+4,4)}, {sr(sDBG+2,2)} offset:16")
    e("L_end:")
    e("  s_endpgm")
    e('.section .rodata,"a"')
    e(".p2align 6")
    e(f".amdhsa_kernel {NAME}")
    e(f"  .amdhsa_next_free_vgpr {NV}")
    e("  .amdhsa_next_free_sgpr 102")
    e(f"  .amdhsa_accum_offset {(NV+3)//4*4}")
    e("  .amdhsa_group_segment_fixed_size 0")
    e("  .amdhsa_kernarg_size 64")
    e("  .amdhsa_user_sgpr_count 2")
    e("  .amdhsa_user_sgpr_kernarg_segment_ptr 1")
    e("  .amdhsa_system_sgpr_workgroup_id_x 1")
    e(".end_amdhsa_kernel")
    return "\n".join(L) + "\n"


if __name__ == "__main__":
    ap = argparse.ArgumentParser()
    ap.add_argument("-o", required=True)
    ap.add_argument("--kfl", default="nt")
    ap.add_argument("--vfl", default="nt")
    ap.add_argument("--stamp", action="store_true")
    ap.add_argument("--hx", type=int, default=1)
    ap.add_argument("--sleep", type=int, default=8)
    ap.add_argument("--nohand", action="store_true")
    ap.add_argument("--noodd", action="store_true")
    ap.add_argument("--pf", type=int, default=172)
    ap.add_argument("--e0", type=int, default=0)
    ap.add_argument("--ldspad", type=int, default=0)
    ap.add_argument("--order", type=int, default=0)
    ap.add_argument("--skip", default="")
    ap.add_argument("--xlead", type=int, default=0)
    ap.add_argument("--cyc", action="store_true")
    ap.add_argument("--go", type=int, default=0)
    ap.add_argument("--mrows", action="store_true")
    ap.add_argument("--b1", action="store_true")
    ap.add_argument("--pipe", type=int, default=0)
    ap.add_argument("--nocap", action="store_true")
    ap.add_argument("--pfb", type=int, default=216)
    ap.add_argument("--dl", default="0,0,0,0")
    a = ap.parse_args()
    open(a.o, "w").write(gen(kfl=a.kfl, vfl=a.vfl, stamp=a.stamp, hx=a.hx, sleep=a.sleep, nohand=a.nohand, pf=a.pf, odd=not a.noodd, E0=a.e0, ldspad=a.ldspad, order=a.order, skip=a.skip, xlead=a.xlead, cyc=a.cyc, go=a.go, mrows=a.mrows, nob1=not a.b1, pipe=a.pipe, cap=not a.nocap, pfb=a.pfb, dl=tuple(int(x) for x in a.dl.split(','))))
```
